```python
import torch

def _softmax(x, axis=-1):
    return torch.softmax(x, dim=axis)
def _gelu(x):
    return torch.nn.functional.gelu(x, approximate="tanh")
def _silu(x):
    return torch.nn.functional.silu(x)
def _sigmoid(x):
    return torch.sigmoid(x)
def _layernorm(x, axis=-1, eps=1e-5):
    m = x.mean(dim=axis, keepdim=True)
    v = x.var(dim=axis, keepdim=True, unbiased=False)
    return (x - m) / torch.sqrt(v + eps)
def _scatter_add(tgt, idx, src, axis=0):
    return tgt.clone().index_add_(axis, idx, src)
def _segment_sum(src, seg, n):
    out = torch.zeros((n,) + src.shape[1:], dtype=src.dtype)
    return out.index_add_(0, seg, src)
def _pad(x, pw):
    flat = tuple(v for pair in reversed(pw) for v in pair)
    return torch.nn.functional.pad(x, flat)

kernel_name = 'concat_heads__grouped_kv_mqa__ssm_conv_h3__prompt'

def setup_inputs():

    _w = (lambda a: (lambda t: t.to(torch.bfloat16) if t.is_floating_point() else t)(torch.as_tensor(a)))
    def _A_setup():
        B, S, D, H = 1, 2048, 576, 32
        Dh = D // H
        return {
            "x": _w((lambda *s: torch.randn(*s, dtype=torch.bfloat16) * 0.05)(B, S, D)),
            "wq": _w((lambda *s: torch.randn(*s, dtype=torch.bfloat16) * 0.8)(D, H * Dh)),
            "wk": _w((lambda *s: torch.randn(*s, dtype=torch.bfloat16) * 0.8)(D, Dh)),
            "wv": _w((lambda *s: torch.randn(*s, dtype=torch.bfloat16) * 0.05)(D, Dh)),
            "wo": _w((lambda *s: torch.randn(*s, dtype=torch.bfloat16) * 0.05)(H * Dh, D)),
        }
    _A_in = _A_setup()

    def _B_setup():
        B, S, D = 1, 2048, 576
        ks = 4
        return {
            "q": _w((lambda *s: torch.randn(*s, dtype=torch.bfloat16) * 0.05)(B, S, D)),
            "k": _w((lambda *s: torch.randn(*s, dtype=torch.bfloat16) * 0.2)(B, S, D)),
            "v": _w((lambda *s: torch.randn(*s, dtype=torch.bfloat16) * 0.2)(B, S, D)),
            "shift_k": _w((lambda *s: torch.randn(*s, dtype=torch.bfloat16) * 0.2)(D, ks) * 0.5),
            "ssm_k": _w((lambda *s: torch.randn(*s, dtype=torch.bfloat16) * 0.8)(D, S) * (1.0 / S ** 0.5)),
            "ssm_D": _w((lambda *s: torch.randn(*s, dtype=torch.bfloat16) * 0.2)(D)),
        }
    _B_in = _B_setup()

    return {
        "A_x": _A_in["x"],
        "A_wq": _A_in["wq"],
        "A_wk": _A_in["wk"],
        "A_wv": _A_in["wv"],
        "A_wo": _A_in["wo"],
        "B_q": _B_in["q"],
        "B_k": _B_in["k"],
        "B_v": _B_in["v"],
        "B_shift_k": _B_in["shift_k"],
        "B_ssm_k": _B_in["ssm_k"],
        "B_ssm_D": _B_in["ssm_D"],
    }

def reference(A_x, A_wq, A_wk, A_wv, A_wo, B_q, B_k, B_v, B_shift_k, B_ssm_k, B_ssm_D):
    def _A_ref(x, wq, wk, wv, wo):
        B, S, D = x.shape
        H = 32
        Dh = D // H
        q = (lambda x, *d: x.permute(*d))((x @ wq).reshape(B, S, H, Dh), 0, 2, 1, 3)
        k = x @ wk
        v = x @ wv
        scores = torch.einsum("bhqd,bkd->bhqk", q, k) * (Dh ** -0.5)
        p = _softmax(scores, axis=-1)
        o = torch.einsum("bhqk,bkd->bhqd", p, v)
        return (lambda x, *d: x.permute(*d))(o, 0, 2, 1, 3).reshape(B, S, H * Dh) @ wo

    def _B_ref(q, k, v, shift_k, ssm_k, ssm_D):
        B, S, D = q.shape
        ks = shift_k.shape[-1]
        k_pad = _pad(k, ((0, 0), (ks - 1, 0), (0, 0)))
        k_shift = torch.zeros_like(k)
        for t in range(ks):
            k_shift = k_shift + k_pad[:, t:t + S, :] * shift_k[:, ks - 1 - t][None, None, :]
        kv = k_shift * v
        L = 2 * S
        kv_pad = _pad(kv, ((0, 0), (0, S), (0, 0)))
        kf_pad = _pad(ssm_k, ((0, 0), (0, S)))
        kv_f = (lambda x, axes=(-2,-1): torch.fft.rfft2(x.float(), dim=axes))(kv_pad[:, None, :, :], axes=(1, 2))
        kf_f = (lambda x, axes=(-2,-1): torch.fft.rfft2(x.float(), dim=axes))(kf_pad[:, None, :], axes=(1, 2))
        kf_f = (lambda x, *d: x.permute(*d))(kf_f, 1, 2, 0)
        y_f = kv_f * kf_f[None, :, :, :]
        y = (lambda x, s, axes=(-2,-1): torch.fft.irfft2(x, s=s, dim=axes).to(torch.bfloat16))(y_f, (1, L), axes=(1, 2))[:, 0, :S, :]
        y = y + kv * ssm_D[None, None, :]
        return q * y

    a = _A_ref(A_x, A_wq, A_wk, A_wv, A_wo)
    b = _B_ref(B_q, B_k, B_v, B_shift_k, B_ssm_k, B_ssm_D)
    return torch.concatenate([a, b], axis=-1)
```

```python
import sys, subprocess, struct, os
sys.path.insert(0, "cdna_kernels")
import numpy as np
from cdna_launch import AsmKernel, DeviceBuffer, with_harness_metadata, pack_ptr_kernargs, _hip, _check

HEAD = """; @launch grid=({grid},1,1) block=({block},1,1) lds={lds}
.amdgcn_target "amdgcn-amd-amdhsa--gfx950"
.text
.globl mb_kernel
.p2align 8
.type mb_kernel,@function
mb_kernel:
    s_load_dwordx2 s[4:5], s[0:1], 0
    s_waitcnt lgkmcnt(0)
    s_mov_b32 s8, s4
    s_mov_b32 s9, s5
    s_mov_b32 s10, {outbytes}
    s_mov_b32 s11, 0x00020000
    v_lshrrev_b32 v1, 6, v0
    s_nop 1
    v_readfirstlane_b32 s20, v1
    v_lshlrev_b32 v2, 4, v0
    v_and_b32 v2, 0x3ff, v2
{init}
    s_barrier
    s_memrealtime s[24:25]
    s_memtime s[12:13]
    s_waitcnt lgkmcnt(0)
    s_mov_b32 s16, {iters}
.p2align 6
L_loop:
{body}
    s_sub_u32 s16, s16, 1
    s_cmp_lg_u32 s16, 0
    s_cbranch_scc1 L_loop
    s_nop 15
    s_nop 15
    s_memtime s[14:15]
    s_memrealtime s[26:27]
    s_waitcnt lgkmcnt(0)
    s_sub_u32 s14, s14, s12
    s_sub_u32 s26, s26, s24
    s_mul_i32 s17, s2, {nw}
    s_add_u32 s17, s17, s20
    s_lshl_b32 s17, s17, 3
    v_mov_b32 v1, s17
    v_mov_b32 v4, s14
    v_mov_b32 v5, s26
    v_and_b32 v0, 63, v0
    v_cmp_eq_u32 vcc, 0, v0
    s_and_saveexec_b64 s[18:19], vcc
    buffer_store_dwordx2 v[4:5], v1, s[8:11], 0 offen
    s_waitcnt vmcnt(0)
    s_endpgm
.section .rodata,"a"
.p2align 6
.amdhsa_kernel mb_kernel
  .amdhsa_next_free_vgpr {vgpr}
  .amdhsa_next_free_sgpr 64
  .amdhsa_accum_offset {vgpr}
  .amdhsa_group_segment_fixed_size 0
  .amdhsa_kernarg_size 8
  .amdhsa_user_sgpr_count 2
  .amdhsa_user_sgpr_kernarg_segment_ptr 1
  .amdhsa_system_sgpr_workgroup_id_x 1
.end_amdhsa_kernel
"""

def run(name, body, nw, init="", iters=2000, grid=256, vgpr=128, lds=65536*2, nl=2):
    outbytes = grid*nw*8
    init0 = "\n".join(f"    v_mov_b32 v{i}, 0" for i in range(4, vgpr))
    asm = HEAD.format(grid=grid, block=nw*64, lds=lds, outbytes=outbytes, init=init0+"\n"+init, iters=iters, body=body, nw=nw, vgpr=vgpr)
    asm = with_harness_metadata(asm, "mb_kernel", 1)
    open("mb.s","w").write(asm)
    r = subprocess.run(["clang","-x","assembler","-target","amdgcn-amd-amdhsa","-mcpu=gfx950","mb.s","-o","mb.co"],capture_output=True,text=True)
    if r.returncode:
        print(r.stderr[:600]); raise SystemExit(1)
    if not os.path.exists('/dev/kfd'):
        print(name, "assembled"); return
    k = AsmKernel("mb.co","mb_kernel")
    out = DeviceBuffer(outbytes)
    for _ in range(nl):
        k.launch((grid,1,1),(nw*64,1,1),pack_ptr_kernargs([out.ptr]),lds)
        _check(_hip.hipDeviceSynchronize())
    oo = out.to_numpy(np.uint32,(grid*nw,2)); o = oo[:,0]
    print(f"{name:50s} nw={nw:2d} cyc/iter: med {np.median(o)/iters:8.2f} min {o.min()/iters:8.2f} max {o.max()/iters:8.2f} clk {np.median(oo[:,0]/oo[:,1])/10:.3f} GHz ({oo[:,1].max()/100:.1f} us)", flush=True)
    k.unload()
```

```python
from mb import run
S=[8,24]; P=40; O=48; K1=64; K2=68; V0=72; V1=76; Q1=80; Q2=84
TS=2320
def tile(t, qk=True, pv=True, ex=True, rd=True, cvt=True):
    s=S[t&1]; sn=S[(t+1)&1]
    e=lambda i: f"    v_exp_f32 v{s+i}, v{s+i}" if ex else ""
    c=lambda i: f"    v_cvt_pk_bf16_f32 v{P+i}, v{s+2*i}, v{s+2*i+1}" if cvt else ""
    w="    s_waitcnt lgkmcnt(2)"
    M1=f"    v_mfma_f32_32x32x16_bf16 v[{sn}:{sn+15}], v[{K1}:{K1+3}], v[{Q1}:{Q1+3}], 0" if qk else ""
    M3=f"    v_mfma_f32_32x32x8_bf16 v[{sn}:{sn+15}], v[{K2}:{K2+1}], v[{Q2}:{Q2+1}], v[{sn}:{sn+15}]" if qk else ""
    M2=f"    v_mfma_f32_32x32x16_bf16 v[{O}:{O+15}], v[{V1}:{V1+3}], v[{P+4}:{P+7}], v[{O}:{O+15}]" if pv else ""
    M4=f"    v_mfma_f32_32x32x16_bf16 v[{O}:{O+15}], v[{V0}:{V0+3}], v[{P}:{P+3}], v[{O}:{O+15}]" if pv else ""
    r1=f"    ds_read_b128 v[{K1}:{K1+3}], v2 offset:{TS*(t+2)}" if rd else ""
    r3=f"    ds_read_b32 v{K2}, v3 offset:{TS*(t+2)}" if rd else ""
    r2=f"    ds_read_b128 v[{V1}:{V1+3}], v5 offset:{TS*t}" if rd else ""
    r4=f"    ds_read_b128 v[{V0}:{V0+3}], v4 offset:{TS*(t+1)}" if rd else ""
    L=[w,M1,r1,e(0),e(1),e(2),e(3),c(0),
       M2,r2,e(4),e(5),c(1),e(6),e(7),c(2),
       w,M3,r3,e(8),c(3),e(9),e(10),e(11),c(4),
       M4,r4,e(12),e(13),c(5),e(14),e(15),c(6),c(7)]
    return "\n".join(x for x in L if x)
def init(padmode):
    s = """    s_mov_b32 s31, 1664525
    v_mul_u32_u24 v90, 0x9E3F, v0
    v_add_u32 v90, 0x1234567, v90
    v_lshlrev_b32 v91, 2, v0
    s_mov_b32 s30, 0
L_fill:
    v_mul_lo_u32 v90, v90, s31
    v_add_u32 v90, 0x3C6EF35F, v90
    v_and_b32 v92, 0x807f807f, v90
    v_or_b32 v92, 0x3f003f00, v92
    ds_write_b32 v91, v92
    v_add_u32 v91, 512*4, v91
    s_add_u32 s30, s30, 1
    s_cmp_lt_u32 s30, 72
    s_cbranch_scc1 L_fill
    v_mov_b32 v80, v92
    v_xor_b32 v81, 0x00550055, v92
    v_xor_b32 v82, 0x80338011, v92
    v_xor_b32 v83, 0x00228044, v92
    v_xor_b32 v84, 0x80118066, v92
    v_and_b32 v6, 63, v0
    v_cmp_gt_u32 vcc, 32, v6
    v_cndmask_b32 v84, 0, v84, vcc
    v_mov_b32 v85, 0
    s_waitcnt lgkmcnt(0)
    s_barrier
    v_and_b32 v6, 63, v0
    v_mul_u32_u24 v6, 2320, v6
    v_mov_b32 v92, 0
    v_mov_b32 v93, 0
    v_mov_b32 v94, 0
    v_mov_b32 v95, 0
    ds_write_b128 v6, v[92:95] offset:2288
    v_mov_b32 v92, 0x3f803f80
    v_mov_b32 v93, 0x3f803f80
    v_mov_b32 v94, 0x3f803f80
    v_mov_b32 v95, 0x3f803f80
    ds_write_b128 v6, v[92:95] offset:2304
    s_waitcnt lgkmcnt(0)
    s_barrier
    v_and_b32 v6, 63, v0
    v_lshlrev_b32 v2, 4, v6
    v_and_b32 v7, 31, v6
    v_lshlrev_b32 v3, 2, v7
    v_add_u32 v3, 1024, v3
    v_lshrrev_b32 v6, 5, v6
    v_mul_u32_u24 v6, 288, v6
    v_lshl_add_u32 v4, v7, 4, v6
    v_add_u32 v4, 1152, v4
    v_add_u32 v5, 500, v4
    v_and_b32 v5, 0xfffffff0, v5
"""
    if padmode >= 1:
        s += """    v_cmp_gt_u32 vcc, 18, v7
    v_mov_b32 v6, 2304
    v_cndmask_b32 v4, v6, v4, vcc
    v_cndmask_b32 v5, v6, v5, vcc
"""
    if padmode == 2:
        s += """    v_cmp_gt_u32 vcc, 19, v7
    v_mov_b32 v6, 2288
    v_cndmask_b32 v4, v6, v4, vcc
    v_cndmask_b32 v5, v6, v5, vcc
"""
    s += """    ds_read_b128 v[64:67], v2
    ds_read_b128 v[76:79], v5
    ds_read_b32 v68, v3
    ds_read_b128 v[72:75], v4
"""
    return s
def go(name, pad=1, **kw):
    body = "\n".join(tile(t, **kw) for t in range(16))
    run(name, body, 8, init=init(pad), iters=4, lds=160*1024, nl=3)
go("full pad=random", 0)
go("full pad=ones", 1)
go("full pad=zeros", 2)
go("no pv", 2, pv=False)
go("no qk", 2, qk=False)
go("no mfma", 2, qk=False, pv=False)
go("no reads", 2, rd=False)
go("mfma only", 2, ex=False, cvt=False)
go("full pad=zeros again", 2)
```

```python
import re

TRANS = ("v_exp_f32", "v_log_f32", "v_rcp_f32", "v_rsq_f32", "v_sqrt_f32", "v_sin_f32", "v_cos_f32")

def regs(tok):
    tok = tok.strip()
    tok = tok.lstrip("-")
    m = re.fullmatch(r"abs\((.*)\)|\|(.*)\|", tok)
    if m: tok = m.group(1) or m.group(2)
    m = re.fullmatch(r"([vsa])(\d+)", tok)
    if m: return {(m.group(1), int(m.group(2)))}
    m = re.fullmatch(r"([vsa])\[(\d+):(\d+)\]", tok)
    if m: return {(m.group(1), i) for i in range(int(m.group(2)), int(m.group(3)) + 1)}
    if tok in ("vcc", "exec", "m0", "scc"): return {(tok, 0)}
    if tok in ("vcc_lo", "vcc_hi"): return {("vcc", 0)}
    if tok in ("exec_lo", "exec_hi"): return {("exec", 0)}
    return set()

class Ins:
    def __init__(self, text):
        self.text = text
        t = text.split(";")[0].strip()
        parts = t.split(None, 1)
        self.op = parts[0]
        rest = parts[1] if len(parts) > 1 else ""
        ops = [o.strip() for o in rest.split(",")] if rest else []
        if ops:
            last = ops[-1].split()
            ops[-1] = last[0] if last else ""
            self.mods = last[1:]
        else:
            self.mods = []
        self.ops = ops
        op = self.op
        self.defs, self.uses = set(), set()
        self.kind = "other"
        self.passes = 0
        self.srcc = set(); self.srcab = set()
        self.dpp = any(m.startswith(("row_", "quad_perm", "wave_")) for m in self.mods) or op.endswith("_dpp")
        R = [regs(o) for o in ops]
        if op.startswith("v_mfma"):
            self.kind = "mfma"
            self.passes = 8 if "32x32" in op else 4
            self.defs = R[0]; self.srcab = R[1] | R[2]; self.srcc = R[3]
            self.uses = self.srcab | self.srcc
        elif op.startswith("v_"):
            self.kind = "trans" if op.replace("_e32", "").replace("_e64", "") in TRANS else "valu"
            if op.startswith("v_cmp"):
                self.defs = R[0]; self.uses = set().union(*R[1:])
                if op.startswith("v_cmpx"): self.defs |= {("exec", 0)}
            elif op.startswith("v_permlane") and "swap" in op:
                self.defs = R[0] | R[1]; self.uses = R[0] | R[1]
            elif op.startswith(("v_add_co", "v_sub_co", "v_addc_co", "v_subb_co")):
                self.defs = R[0] | R[1]; self.uses = set().union(*R[2:])
            elif op == "v_nop":
                pass
            else:
                self.defs = R[0]; self.uses = set().union(*R[1:]) if len(R) > 1 else set()
                if op.startswith(("v_fmac", "v_pk_fmac", "v_dot2c")) or self.dpp or "sdwa" in op or op.startswith("v_writelane"):
                    self.uses |= R[0]
                if op.startswith("v_cndmask") and len(ops) == 3: self.uses |= {("vcc", 0)}
        elif op.startswith("ds_"):
            self.kind = "ds"
            if op.startswith(("ds_read", "ds_bpermute", "ds_permute", "ds_swizzle")) or "_rtn" in op:
                self.defs = R[0]; self.uses = set().union(*R[1:])
            else:
                self.uses = set().union(*R)
        elif op.startswith(("buffer_", "global_")):
            self.kind = "vmem"
            if op in ("buffer_inv", "buffer_wbl2"):
                pass
            elif "load" in op and "lds" in self.mods:
                self.uses = set().union(*R) | {("m0", 0)}
                self.kind = "vmem_lds"
            elif "load" in op:
                self.defs = R[0]; self.uses = set().union(*R[1:])
            else:
                self.uses = set().union(*R)
                self.store_data = R[0] if op.startswith("buffer_") else R[1]
                self.wide_store = op.endswith(("x3", "x4"))
        elif op.startswith("s_"):
            self.kind = "salu"
            if op in ("s_nop", "s_waitcnt", "s_barrier", "s_endpgm", "s_sleep", "s_setprio") or op.startswith(("s_branch", "s_cbranch")):
                pass
            elif op.startswith("s_cmp"):
                self.uses = set().union(*R)
            else:
                self.defs = R[0] if R else set()
                self.uses = set().union(*R[1:]) if len(R) > 1 else set()
                if "saveexec" in op: self.defs |= {("exec", 0)}
    def ws(self):
        if self.op == "s_nop": return int(self.ops[0], 0) + 1
        return 1

def need(p, c):
    n = 0
    isv = lambda s: {r for r in s if r[0] in ("v", "a")}
    iss = lambda s: {r for r in s if r[0] in ("s", "vcc")}
    pv = p.kind in ("valu", "trans")
    cv = c.kind in ("valu", "trans")
    if pv:
        vd = isv(p.defs); sd = iss(p.defs)
        if c.kind == "mfma" and vd & c.uses: n = max(n, 2)
        if c.kind == "mfma" and ("exec", 0) in p.defs: n = max(n, 4)
        if p.kind == "trans" and cv and vd & c.uses: n = max(n, 1)
        if cv and c.dpp and vd & c.uses: n = max(n, 2)
        if cv and c.dpp and ("exec", 0) in p.defs: n = max(n, 5)
        if c.op.startswith("v_permlane") and vd & c.uses: n = max(n, 2)
        if c.op.startswith(("v_readlane", "v_readfirstlane")) and vd & c.uses: n = max(n, 1)
        if sd:
            if c.kind in ("vmem", "vmem_lds") and sd & c.uses: n = max(n, 5)
            if cv and sd & c.uses:
                n = max(n, 4 if c.op.startswith(("v_readlane", "v_writelane")) else 2)
            if c.kind == "salu" and sd & c.uses: n = max(n, 1)
        if ("exec", 0) in p.defs and c.op.startswith(("v_readlane", "v_readfirstlane", "v_writelane", "v_permlane")): n = max(n, 4)
        if "sdwa" in p.op and cv and vd & (c.uses | c.defs): n = max(n, 1)
    if p.kind == "salu" and ("m0", 0) in p.defs and c.kind == "vmem_lds": n = max(n, 1)
    if p.kind == "mfma":
        big = {8: 12, 4: 8}[p.passes]
        if c.kind == "mfma":
            if p.defs & c.srcab: n = max(n, big)
            if p.defs & c.srcc:
                same = (p.defs == c.srcc and p.passes == c.passes)
                if not same: n = max(n, {8: 10, 4: 6}[p.passes])
            elif p.defs & c.defs and not (p.defs == c.defs):
                n = max(n, big)
        elif cv:
            if p.defs & (c.uses | c.defs): n = max(n, big)
            if p.srcc & c.defs: n = max(n, {8: 7, 4: 3}[p.passes])
        elif c.kind in ("ds", "vmem", "vmem_lds"):
            if p.defs & (c.uses | c.defs): n = max(n, big)
    if p.kind == "vmem" and getattr(p, "wide_store", False):
        if cv and p.store_data & c.defs: n = max(n, 2)
        elif c.kind in ("ds", "vmem", "mfma") and p.store_data & c.defs: n = max(n, 1)
    return n

class Emitter:
    def __init__(self):
        self.lines = []
        self.alts = [[]]
        self.snap = {}
        self.seen = {}
        self.nops = 0
        self.dead = False
    def raw(self, text):
        self.lines.append(text)
    def label(self, name):
        alts = [] if self.dead else self.alts
        alts = alts + self.snap.pop(name, [])
        self.alts = alts if alts else [[]]
        self.dead = False
        self.seen[name] = len(self.lines)
        self.lines.append(name + ":")
    def __call__(self, text):
        for ln in text.split("\n"):
            ln = ln.strip()
            if not ln or ln.startswith(";"):
                continue
            if ln.endswith(":"):
                self.label(ln[:-1]); continue
            if ln.startswith("."):
                self.lines.append(ln); continue
            self.ins(ln)
    def _req(self, hist, c):
        dist = 0; req = 0
        for p in reversed(hist):
            n = need(p, c)
            if n > dist: req = max(req, n - dist)
            dist += p.ws()
            if dist > 24: break
        return req
    def _push(self, c):
        for h in self.alts:
            h.append(c)
            if len(h) > 64: del h[:24]
        if len(self.alts) > 1:
            keep = []
            for h in self.alts:
                if not any(len(h) >= 25 and len(k) >= 25 and all(a is b for a, b in zip(h[-25:], k[-25:])) for k in keep):
                    keep.append(h)
            self.alts = keep
    def ins(self, text):
        c = Ins(text)
        req = max(self._req(h, c) for h in self.alts)
        while req > 0:
            k = min(req, 16)
            self.lines.append(f"    s_nop {k-1}")
            self._push(Ins(f"s_nop {k-1}")); self.nops += 1
            req -= k
        self.lines.append("    " + text)
        self._push(c)
        if c.op.startswith(("s_branch", "s_cbranch")):
            tgt = c.ops[0]
            if tgt in self.seen:
                self.check_backedge(self.seen[tgt])
            else:
                self.snap.setdefault(tgt, []).extend([list(h) for h in self.alts])
        self.dead = c.op in ("s_branch", "s_endpgm")
    def check_backedge(self, head_idx):
        for hist0 in self.alts:
            hist = list(hist0)
            cnt = 0
            for ln in self.lines[head_idx:]:
                t = ln.strip()
                if not t or t.endswith(":") or t.startswith((".", ";")): continue
                c = Ins(t)
                assert self._req(hist, c) == 0, f"back-edge hazard at {c.text}"
                hist.append(c); cnt += c.ws()
                if cnt > 24 or c.op.startswith(("s_branch", "s_cbranch")): break
    def text(self):
        assert not self.snap, f"unresolved labels {list(self.snap)}"
        return "\n".join(self.lines) + "\n"
```

```python
import sys, struct, math
sys.path.insert(0, "gen")
from emit import Emitter

NAME = "concat_heads__grouped_kv_mqa__ssm_conv_h3__prompt"
STAMPS = "--stamps" in sys.argv
def opt(name, default):
    for a in sys.argv:
        if a.startswith(f"--{name}="): return int(a.split("=")[1])
    return default
OUT = [a for a in sys.argv[1:] if not a.startswith("--")]
OUT = OUT[0] if OUT else f"cdna_kernels/{NAME}.s"
PSW = opt("psw", 44)
P1C = opt("p1c", 0)
PLC = opt("plc", 5)
CS = opt("cs", 3)
PLO = opt("plo", 6)

def f32(x): return struct.unpack("<I", struct.pack("<f", x))[0]
def magic(d, n):
    m = -(-65536 // d)
    assert all((c * m) >> 16 == c // d for c in range(n)), (d, n)
    return m

WS_G, WS_KVF, WS_KVTF, WS_YF = 0, 0x40000, 0x50000, 0x60000
WS_KV, WS_U, WS_Y, WS_O, WS_ST, WS_Y2 = 0x10000, 0x100000, 0x400000, 0x700000, 0xA00000, 0xB00000
WS_SIZE = 0x1000000
TAGC = 0x9E3779B9
TS = 2320
LXA, LXB, LW = 0, 40960, 73728
NDEF = 53
LWKV = LW + NDEF * 1024
LCONV = 64 * TS
LMISC = LCONV + 8 * 1088
(C_W, C_R, C_KV, C_KVT, C_A, C_B, C_K, C_P, L_MAXLO, L_MAXHI, L_KC, L_TAG, C_F, C_Y, C_YW, C_Q,
 C_K0, C_U, C_WO, C_L, C_X, C_T, C_Q1, C_G) = [LMISC + 4 * i for i in range(24)]
LDS_BYTES = 163840
LFAR = 0x40000
LEX = 90112
SPIN = 0x200000
SHIFT, THR = 60.0, 45.0

e = Emitter()
uid = [0]
def L(p):
    uid[0] += 1
    return f"L_{p}{uid[0]}"
def stamp(i):
    if STAMPS: e(f"s_memrealtime s[98:99]\ns_waitcnt lgkmcnt(0)\ns_mov_b32 s{72+i}, s98")
def cstamp(i):
    if STAMPS: e(f"s_memtime s[98:99]\ns_waitcnt lgkmcnt(0)\ns_mov_b32 s{72+i}, s98")
def stamp_flush():
    if not STAMPS: return
    e(f"""s_mul_i32 s60, s2, 12
s_add_u32 s60, s60, s3
s_lshl_b32 s60, s60, 6
s_add_u32 s60, s60, {WS_ST}
s_mov_b64 exec, -1
v_mov_b32 v3, 0""")
    for i in range(16):
        e(f"v_mov_b32 v4, s{72+i}\nbuffer_store_dword v4, v3, s[36:39], s60 offen offset:{4*i}")
def srd(n, plo, nbytes):
    e(f"s_mov_b32 s{n}, s{plo}\ns_mov_b32 s{n+1}, s{plo+1}\ns_mov_b32 s{n+2}, {nbytes}\ns_mov_b32 s{n+3}, 0x00020000")
def srd_off(n, plo, soff, nbytes):
    e(f"s_add_u32 s{n}, s{plo}, {soff}\ns_addc_u32 s{n+1}, s{plo+1}, 0\ns_mov_b32 s{n+2}, {nbytes}\ns_mov_b32 s{n+3}, 0x00020000")
def lds_add(addr, va=3, vb=6, rtn=None, also=None):
    e(f"v_mov_b32 v{va}, {addr}\nv_mov_b32 v{vb}, 1\ns_mov_b64 exec, 1")
    if also is not None: e(f"ds_add_u32 v{va}, v{vb} offset:{also - addr}")
    if rtn is None:
        e(f"ds_add_u32 v{va}, v{vb}\ns_mov_b64 exec, -1")
    else:
        e(f"ds_add_rtn_u32 v{vb}, v{va}, v{vb}\ns_waitcnt lgkmcnt(0)\nv_readfirstlane_b32 s{rtn}, v{vb}\ns_mov_b64 exec, -1")
def lds_spin(addr, n, va=3, vb=6, sleep=1):
    l = L("spin"); d = L("spun")
    e(f"""v_mov_b32 v{va}, {addr}
s_mov_b32 s89, {SPIN}
{l}:
ds_read_b32 v{vb}, v{va}
s_waitcnt lgkmcnt(0)
v_readfirstlane_b32 s88, v{vb}
s_cmp_ge_u32 s88, {n}
s_cbranch_scc1 {d}
s_sleep {sleep}
s_sub_u32 s89, s89, 1
s_cbranch_scc0 {l}
{d}:""")
def poll_all(base, sleep):
    l, d = L("poll"), L("polled")
    e(f"v_lshlrev_b32 v3, 5, v1\ns_mov_b32 s60, {base}\ns_mov_b32 s61, {base + 4096}\ns_mov_b32 s62, {SPIN}\n{l}:")
    for i in range(4):
        e(f"buffer_load_dwordx2 v[{8+2*i}:{9+2*i}], v3, s[36:39], s{60 + (i >> 1)} offen offset:{2048*(i & 1)} sc1")
    e(f"""s_waitcnt vmcnt(0)
v_cmp_ne_u32 vcc, s6, v8
v_cmp_ne_u32 s[64:65], s6, v10
s_or_b64 vcc, vcc, s[64:65]
v_cmp_ne_u32 s[64:65], s6, v12
s_or_b64 vcc, vcc, s[64:65]
v_cmp_ne_u32 s[64:65], s6, v14
s_or_b64 vcc, vcc, s[64:65]
s_sub_u32 s62, s62, 1
s_cbranch_scc1 {d}
s_cbranch_vccz {d}
s_sleep {sleep}
s_branch {l}
{d}:""")
P_X, P_WQ, P_WK, P_WV, P_WO, P_BQ, P_BK, P_BV, P_SK, P_H, P_D, P_OUT, P_DBG, P_WS = range(8, 36, 2)
M9 = magic(9, 5632)
def wslice_off(dst, cexpr):
    e(f"""{cexpr}
v_mul_u32_u24 v6, {M9}, v5
v_lshrrev_b32 v6, 16, v6
v_mul_u32_u24 v7, 1008, v6
v_lshl_add_u32 v{dst}, v5, 4, v7""")
def get_tag():
    e(f"v_readfirstlane_b32 s6, v2\ns_add_u32 s6, s6, {TAGC}")
def half(dst, src, hi):
    if hi: e(f"v_and_b32 v{dst}, 0xffff0000, v{src}")
    else: e(f"v_lshlrev_b32 v{dst}, 16, v{src}")

e(f"""s_cmp_ge_u32 s2, 256
s_cbranch_scc1 L_end
s_load_dwordx16 s[8:23], s[0:1], 0
s_load_dwordx8 s[24:31], s[0:1], 64
s_load_dwordx4 s[32:35], s[0:1], 96
v_and_b32 v1, 63, v0
v_lshrrev_b32 v2, 6, v0
v_mov_b32 v3, 0
v_readfirstlane_b32 s3, v2
s_and_b32 s4, s2, 31
s_lshr_b32 s5, s2, 5""")
if STAMPS:
    for i in range(16): e(f"s_mov_b32 s{72+i}, 0")
e("s_cmp_lt_u32 s3, 8\ns_cbranch_scc1 L_att")

M3 = magic(3, 1792)
e(f"""s_sub_u32 s7, s3, 8
s_setprio 2
v_subrev_u32 v5, 512, v0""")
for m in range(7):
    e(f"""v_mul_u32_u24 v6, {M3}, v5
v_lshrrev_b32 v6, 16, v6
v_mul_u32_u24 v6, 12, v6
v_lshlrev_b32 v7, 4, v5
v_sub_u32 v{16+m}, v7, v6""")
    if m < 6: e("v_add_u32 v5, 256, v5")
e(f"""v_lshlrev_b32 v4, 4, v1
s_and_b32 s61, s5, 3
s_lshl_b32 s61, s61, 2
s_add_u32 s61, s61, s7
s_lshl_b32 s61, s61, 2
s_lshl_b32 s60, s4, 6
s_add_u32 s60, s60, s61
s_mul_i32 s60, s60, 1152
s_lshl_b32 s62, s7, 5
v_xor_b32 v24, s62, v4
s_add_u32 s62, s62, 16
v_xor_b32 v25, s62, v4
v_lshrrev_b32 v6, 5, v1
s_lshl_b32 s62, s7, 2
v_add_u32 v7, s62, v6
v_and_b32 v5, 31, v1
v_xor_b32 v26, v5, v7
v_xor_b32 v27, 2, v26
v_mul_u32_u24 v6, 1152, v6
v_lshl_add_u32 v26, v26, 4, v6
v_lshl_add_u32 v27, v27, 4, v6
s_lshl_b32 s63, s7, 10
s_waitcnt lgkmcnt(0)""")
stamp(0)
e(f"""s_cmp_lt_u32 s5, 4
s_cselect_b32 s48, s{P_WK}, s{P_WV}
s_cselect_b32 s49, s{P_WK+1}, s{P_WV+1}
s_mov_b32 s50, 20736
s_mov_b32 s51, 0x00020000""")
srd(40, P_X, 2359296)
for m in range(7):
    e(f"s_add_u32 m0, s63, {LWKV + 4096*m}\nbuffer_load_dwordx4 v{16+m}, s[48:51], 0 offen lds")
e(f"s_mul_i32 s62, s61, 640\ns_mov_b32 exec_hi, 0xff")
for i in range(4):
    e(f"s_add_u32 m0, s62, {LXA + 640*i}\ns_add_u32 s64, s60, {1152*i}\nbuffer_load_dwordx4 v{24 + (i >> 1)}, s[40:43], s64 offen lds")
e(f"s_mov_b32 exec_hi, -1\ns_lshl_b32 s62, s61, 9")
for p in range(2):
    e(f"s_add_u32 m0, s62, {LXB + 1024*p}\ns_add_u32 s64, s60, {2304*p + 640}\nbuffer_load_dwordx4 v{26+p}, s[40:43], s64 offen lds")
srd(36, P_WS, WS_SIZE)
e(f"""buffer_load_dword v2, v3, s[36:39], 0 offen sc1
v_and_b32 v4, 15, v1
v_lshrrev_b32 v5, 4, v1
s_cmp_ge_u32 s7, 2
s_cbranch_scc1 L_h_sent
s_cmp_lg_u32 s7, 0
s_cbranch_scc1 L_h_b0
v_lshlrev_b32 v7, 2, v1
v_add_u32 v7, {LMISC}, v7
ds_write_b32 v7, v3
s_waitcnt lgkmcnt(0)
s_branch L_h_b0
L_h_sent:""")
e(f"""s_lshl_b32 s60, s4, 2
s_lshl_b32 s61, s7, 1
s_add_u32 s60, s60, s61
s_sub_u32 s60, s60, 4
s_mul_i32 s60, s60, 18432
s_lshl_b32 s61, s5, 11
s_add_u32 s60, s60, s61
s_add_u32 s60, s60, {WS_O}
v_lshlrev_b32 v6, 4, v1
v_mov_b32 v8, -1
v_mov_b32 v9, -1
v_mov_b32 v10, -1
v_mov_b32 v11, -1
buffer_store_dwordx4 v[8:11], v6, s[36:39], s60 offen sc1
buffer_store_dwordx4 v[8:11], v6, s[36:39], s60 offen offset:1024 sc1
s_add_u32 s60, s60, 18432
buffer_store_dwordx4 v[8:11], v6, s[36:39], s60 offen sc1
buffer_store_dwordx4 v[8:11], v6, s[36:39], s60 offen offset:1024 sc1
s_mul_i32 s60, s4, {4*18432}
s_lshl_b32 s61, s5, 8
s_add_u32 s60, s60, s61
s_add_u32 s60, s60, {WS_O + 16*1024}
v_mul_u32_u24 v6, 18432, v5
v_lshl_add_u32 v6, v4, 4, v6
buffer_store_dwordx4 v[8:11], v6, s[36:39], s60 offen sc1""")
M18 = magic(18, 192)
def task_regs(stask, vt0, vd):
    e(f"""v_add_u32 v6, {stask}, v1
v_mul_u32_u24 v7, {M18}, v6
v_lshrrev_b32 v7, 16, v7
s_lshl_b32 s60, s4, 6
v_lshl_add_u32 v{vt0}, v7, 3, s60
v_mul_u32_u24 v7, 18, v7
v_sub_u32 v6, v6, v7
s_mul_i32 s60, s5, 72
v_lshl_add_u32 v{vd}, v6, 2, s60""")
def p1_regs(slot):
    return (8, 30, 48, 56, 57) if slot == 0 else (120, 142, 160, 58, 59)
def p1_loads(stask, slot=0):
    PK, PV_, PS, T0, DD_ = p1_regs(slot)
    task_regs(stask, T0, DD_)
    e(f"v_mul_u32_u24 v6, 1152, v{T0}\nv_lshl_add_u32 v6, v{DD_}, 1, v6")
    for i in range(3):
        e(f"v_subrev_u32 v7, {1152*(3-i)}, v6\nbuffer_load_dwordx2 v[{PK+2*i}:{PK+2*i+1}], v7, s[44:47], 0 offen")
    for i in range(8):
        e(f"s_mov_b32 s60, {1152*i}\nbuffer_load_dwordx2 v[{PK+6+2*i}:{PK+7+2*i}], v6, s[44:47], s60 offen\nbuffer_load_dwordx2 v[{PV_+2*i}:{PV_+2*i+1}], v6, s[52:55], s60 offen")
    e(f"v_lshlrev_b32 v7, 3, v{DD_}\nbuffer_load_dwordx4 v[{PS}:{PS+3}], v7, s[56:59], 0 offen\nbuffer_load_dwordx4 v[{PS+4}:{PS+7}], v7, s[56:59], 0 offen offset:16")
UK, UW, UA = 64, 88, 96
def u_addr(vt0, vd, dst):
    e(f"""v_sub_u32 v7, 2040, v{vt0}
v_lshrrev_b32 v{dst}, 5, v7
v_lshlrev_b32 v{dst}, 5, v{dst}
v_bfe_u32 v3, v7, 4, 1
v_lshl_add_u32 v{dst}, v3, 11, v{dst}
v_bfe_u32 v3, v7, 3, 1
v_lshl_add_u32 v{dst}, v3, 4, v{dst}
v_lshl_add_u32 v{dst}, v{vd}, 12, v{dst}""")
def p1_compute(slot=0):
    if "--nop1c" in sys.argv: return
    PK, PV_, PS, T0, DD_ = p1_regs(slot)
    u_addr(T0, DD_, 6)
    pr = lambda x: f"v[{x}:{x+1}]"
    for ee in range(2):
        for i in range(11):
            half(UK + 2*i, PK + 2*i + ee, 0); half(UK + 2*i + 1, PK + 2*i + ee, 1)
        for j in range(4):
            for c in range(2):
                half(UW + 2*j + c, PS + 4*ee + 2*c + (j >> 1), j & 1)
        for i in range(8):
            a = UA + 2*i
            e(f"v_pk_mul_f32 {pr(a)}, {pr(UK+2*i)}, {pr(UW+6)}")
            for j in (2, 1, 0):
                e(f"v_pk_fma_f32 {pr(a)}, {pr(UK+2*(i+3-j))}, {pr(UW+2*j)}, {pr(a)}")
            half(112, PV_ + 2*i + ee, 0); half(113, PV_ + 2*i + ee, 1)
            e(f"v_pk_mul_f32 {pr(a)}, {pr(a)}, v[112:113]")
        for c in range(2):
            r = (60, 116)[c]
            for m in range(4):
                e(f"v_cvt_pk_bf16_f32 v{r+m}, v{UA+2*(7-2*m)+c}, v{UA+2*(6-2*m)+c}")
            e(f"s_mov_b32 s60, {WS_U + 4096*(2*ee+c)}\nbuffer_store_dwordx4 v[{r}:{r+3}], v6, s[36:39], s60 offen sc1")
def p1_issue():
    srd(44, P_BK, 2359296)
    srd(52, P_BV, 2359296)
    srd(56, P_SK, 4608)
    l = L("p1a")
    e("s_sub_u32 s63, 3, s7\ns_lshl_b32 s63, s63, 6")
    p1_loads("s63")
    e(f"s_cmp_lg_u32 s7, 3\ns_cbranch_scc1 {l}\ns_mov_b64 exec, 0xffff")
    p1_loads("0x80", 1)
    e(f"s_mov_b64 exec, -1\n{l}:")
if P1C == 2: p1_issue()
e("L_h_b0:\ns_barrier")
def publish_kv():
    nl = L("nl")
    lds_add(C_KV, rtn=60)
    e(f"""s_cmp_lg_u32 s60, 3
s_cbranch_scc1 {nl}
v_mov_b32 v3, {L_MAXLO}
ds_read_b64 v[6:7], v3
s_lshl_b32 s60, s2, 5
s_add_u32 s60, s60, {WS_KVF}
v_mov_b32 v3, 0
s_waitcnt lgkmcnt(0)
v_add_f32 v7, v6, v7
v_mov_b32 v6, s6
s_mov_b64 exec, 1
buffer_store_dwordx2 v[6:7], v3, s[36:39], s60 offen sc1
s_mov_b64 exec, -1
{nl}:""")

e("s_cmp_lt_u32 s7, 2\ns_cbranch_scc1 L_h_kv")
if P1C == 2: e("s_cmp_eq_u32 s7, 3\ns_cbranch_scc1 L_h_w3\ns_waitcnt vmcnt(26)\ns_branch L_h_w4\nL_h_w3:\ns_waitcnt vmcnt(47)\nL_h_w4:")
else: e("s_waitcnt vmcnt(5)")
lds_add(C_W, also=C_A)
if P1C == 2: e("s_cmp_eq_u32 s7, 3\ns_cbranch_scc1 L_h_w5\ns_waitcnt vmcnt(21)\ns_branch L_h_w6\nL_h_w5:\ns_waitcnt vmcnt(42)\nL_h_w6:")
else: e("s_waitcnt vmcnt(0)")
get_tag()
publish_kv()
stamp(1)
e("s_cmp_eq_u32 s7, 3\ns_cbranch_scc1 L_h_p1")
srd(40, P_WQ, 663552)
for n in range(NDEF, 81): wslice_off(120 + n - NDEF, f"v_add_u32 v5, {64*n}, v1")
e("s_mul_i32 s63, s5, 144")
lds_spin(C_R, 2)
e("s_setprio 0")
for n in range(NDEF, 81):
    e(f"s_mov_b32 m0, {LW + 1024*n}\nbuffer_load_dwordx4 v{120 + n - NDEF}, s[40:43], s63 offen lds")
e("s_setprio 2")
if P1C == 2:
    e("s_waitcnt vmcnt(28)")
    p1_compute()
    e("s_waitcnt vmcnt(4)")
    lds_add(C_B)
    e("s_branch L_h_p1b")
else:
    e("s_waitcnt vmcnt(0)")
    lds_add(C_B)
e("L_h_p1:")
if P1C != 2:
    if P1C == 3: lds_spin(C_G, 2, sleep=2)
    else: lds_spin(C_B if P1C else C_A, 9 if P1C else 12, sleep=2)
    stamp(2)
    p1_issue()
e("s_waitcnt vmcnt(0)")
stamp(10)
p1_compute()
e("s_cmp_lg_u32 s7, 3\ns_cbranch_scc1 L_h_p1b\ns_mov_b64 exec, 0xffff")
p1_compute(1)
e(f"""s_mov_b64 exec, -1
s_branch L_h_p1c
L_h_p1b:
v_lshlrev_b32 v6, 4, v1
v_mov_b32 v8, -1
v_mov_b32 v9, -1
v_mov_b32 v10, -1
v_mov_b32 v11, -1
s_mov_b32 s63, s2
L_h_ym:
s_cmp_ge_u32 s63, 576
s_cselect_b32 s61, {WS_Y2 + 2048 - 576*4096}, {0}
s_cmp_ge_u32 s63, 1152
s_cselect_b32 s61, {WS_Y + 2048 - 1152*4096}, s61
s_cmp_lt_u32 s63, 576
s_cselect_b32 s61, {WS_Y}, s61
s_lshl_b32 s60, s63, 12
s_add_u32 s60, s60, s61
s_add_u32 s63, s63, 256
buffer_store_dwordx4 v[8:11], v6, s[36:39], s60 offen sc1
buffer_store_dwordx4 v[8:11], v6, s[36:39], s60 offen offset:1024 sc1
s_cmp_lt_u32 s63, 1728
s_cbranch_scc1 L_h_ym
L_h_p1c:
s_waitcnt vmcnt(0)""")
stamp(11)
lds_add(C_KVT, rtn=60)
e(f"""s_cmp_lg_u32 s60, 1
s_cbranch_scc1 L_h_nl2
v_mov_b32 v6, s6
s_lshl_b32 s60, s2, 5
s_add_u32 s60, s60, {WS_KVTF}
v_mov_b32 v3, 0
s_mov_b64 exec, 1
buffer_store_dword v6, v3, s[36:39], s60 offen sc1
s_mov_b64 exec, -1
L_h_nl2:
s_cmp_lg_u32 s7, 3
s_cbranch_scc1 L_h_epi""")
lds_spin(C_T, 1, sleep=8)
stamp(3)
poll_all(WS_KVTF, 8)
lds_add(C_U)
stamp(6)
srd(40, P_WO, 663552)
lds_spin(C_P, 8, sleep=16)
e(f"""s_mul_i32 s63, s5, 144
s_mov_b32 s60, 0
L_wo:""")
wslice_off(8, "v_add_u32 v5, s60, v1")
e(f"""s_lshl_b32 m0, s60, 4
s_add_u32 s60, s60, 64
buffer_load_dwordx4 v8, s[40:43], s63 offen lds
s_sleep {opt("wosleep", 0)}
s_cmp_lt_u32 s60, 5184
s_cbranch_scc1 L_wo
s_waitcnt vmcnt(0)""")
lds_add(C_WO)
stamp(7)
e("s_branch L_h_epi")

e("L_h_kv:")
XAD, WAD = 8, 14
e(f"""v_lshrrev_b32 v6, 2, v4
v_lshl_add_u32 v6, v5, 3, v6
v_mul_u32_u24 v6, 48, v6
v_and_b32 v7, 3, v4
v_lshlrev_b32 v7, 3, v7
s_cmp_eq_u32 s7, 1
s_cselect_b64 s[64:65], -1, 0
v_cndmask_b32 v7, v7, 32, s[64:65]
v_add_u32 v{WAD}, v6, v7
v_add_u32 v{WAD}, {LWKV}, v{WAD}
s_and_b32 s60, s5, 3
s_lshl_b32 s60, s60, 4
v_add_u32 v6, s60, v4
v_bfe_u32 v7, v6, 1, 3
v_mul_u32_u24 v3, 640, v6""")
for j in range(2):
    e(f"v_add_u32 v15, {4*j}, v5\nv_xor_b32 v15, v15, v7\nv_lshl_add_u32 v{XAD+j}, v15, 4, v3")
e("v_lshlrev_b32 v3, 9, v6")
for j in range(4):
    e(f"v_add_u32 v15, {4*j}, v5\nv_xor_b32 v15, v15, v4\nv_lshl_add_u32 v{XAD+2+j}, v15, 4, v3")
e(f"""s_lshl_b32 s60, s4, 1
s_bfe_u32 s61, s5, 0x10001
s_add_u32 s60, s60, s61
s_mul_i32 s60, s60, {TS}
s_add_u32 s66, s60, {WS_KV}
s_and_b32 s61, s5, 1
s_cmp_ge_u32 s5, 4
s_cbranch_scc1 L_h_av
s_lshl_b32 s60, s61, 4
v_add_u32 v6, s60, v4
v_lshlrev_b32 v7, 4, v6
v_lshl_add_u32 v16, v5, 3, v7
v_add_u32 v17, 4, v16
v_lshlrev_b32 v3, 2, v6
v_add_u32 v3, 1024, v3
v_add_u32 v15, 512, v7
v_cmp_eq_u32 vcc, 2, v5
v_cndmask_b32 v16, v16, v3, vcc
v_cndmask_b32 v17, v17, v15, vcc
v_add_u32 v3, 4, v15
v_add_u32 v6, 8, v15
v_cmp_eq_u32 vcc, 3, v5
v_cndmask_b32 v16, v16, v3, vcc
v_cndmask_b32 v17, v17, v6, vcc
v_add_u32 v15, 12, v15
v_cndmask_b32 v16, v16, v15, s[64:65]
s_branch L_h_adone
L_h_av:
s_mul_i32 s61, s61, 576
s_lshl_b32 s60, s7, 8
s_add_u32 s61, s61, s60
v_lshrrev_b32 v6, 1, v5
v_and_b32 v7, 1, v5
v_mul_u32_u24 v7, 288, v7
v_lshl_add_u32 v7, v6, 3, v7
v_lshl_add_u32 v7, v4, 4, v7
v_add_u32 v16, s61, v7
v_add_u32 v16, 1152, v16
v_lshlrev_b32 v6, 3, v6
v_add_u32 v17, 2304, v6
L_h_adone:
s_waitcnt vmcnt(0)""")
get_tag()
lds_add(C_W, also=C_A)
lds_spin(C_W, 4, sleep=0)
stamp(10)
WR, XF, DK, KD = 64, 96, 92, 5
def kvread(s):
    r = WR + 4*(s % KD); x = XF + 4*(s % KD)
    e(f"ds_read_b64_tr_b16 v[{r}:{r+1}], v{WAD} offset:{1536*s}\nds_read_b64_tr_b16 v[{r+2}:{r+3}], v{WAD} offset:{1536*s + 192}")
    if s < 10: e(f"ds_read_b128 v[{x}:{x+3}], v{XAD + (s & 1)} offset:{LXA + 128*(s >> 1)}")
    else: e(f"ds_read_b128 v[{x}:{x+3}], v{XAD + 2 + ((s-10) & 3)} offset:{LXB + 256*((s-10) >> 2)}")
def kvproj(kside):
    for s in range(KD): kvread(s)
    for s in range(18):
        left = min(KD - 1, 17 - s)
        f = WR + 4*(s % KD); x = XF + 4*(s % KD)
        e(f"s_waitcnt lgkmcnt({3*left})")
        a, b = (f, x) if kside else (x, f)
        e(f"v_mfma_f32_16x16x32_bf16 v[{DK}:{DK+3}], v[{a}:{a+3}], v[{b}:{b+3}], {'0' if s == 0 else f'v[{DK}:{DK+3}]'}")
        if s + KD < 18: kvread(s + KD)
e("s_cmp_ge_u32 s5, 4\ns_cbranch_scc1 L_h_vproj")
kvproj(True)
e(f"""v_cvt_pk_bf16_f32 v64, v{DK}, v{DK+1}
v_cvt_pk_bf16_f32 v65, v{DK+2}, v{DK+3}
v_mul_f32 v66, v{DK}, v{DK}
v_fmac_f32 v66, v{DK+1}, v{DK+1}
s_cmp_eq_u32 s7, 1
s_cbranch_scc1 L_h_stk2
buffer_store_dword v64, v16, s[36:39], s66 offen sc1
buffer_store_dword v65, v17, s[36:39], s66 offen sc1
v_fmac_f32 v66, v{DK+2}, v{DK+2}
v_fmac_f32 v66, v{DK+3}, v{DK+3}
v_mov_b32 v67, v66
v_permlane32_swap_b32 v66, v67
v_add_f32 v66, v66, v67
v_mov_b32 v67, v66
v_permlane16_swap_b32 v66, v67
v_add_f32 v66, v66, v67
v_mov_b32 v3, {L_MAXLO}
s_branch L_h_stmax
L_h_stk2:
s_mov_b64 exec, 0xffff
buffer_store_dword v64, v16, s[36:39], s66 offen sc1
s_mov_b64 exec, -1
v_mov_b32 v3, {L_MAXHI}
L_h_stmax:""")
for k in (8, 4, 2, 1): e(f"v_max_f32_dpp v66, v66, v66 row_ror:{k} row_mask:0xf bank_mask:0xf")
e("ds_write_b32 v3, v66\ns_branch L_h_std\nL_h_vproj:")
kvproj(False)
e(f"""v_cvt_pk_bf16_f32 v64, v{DK}, v{DK+1}
v_cvt_pk_bf16_f32 v65, v{DK+2}, v{DK+3}
s_cmp_eq_u32 s7, 0
s_cbranch_scc1 L_h_stv
v_mov_b32 v3, 0x3f803f80
v_cmp_eq_u32 vcc, 2, v4
v_cndmask_b32 v16, v16, v17, vcc
v_cndmask_b32 v64, v64, v3, vcc
v_cndmask_b32 v65, v65, v3, vcc
v_cmp_gt_u32 vcc, 3, v4
s_mov_b64 exec, vcc
L_h_stv:
buffer_store_dwordx2 v[64:65], v16, s[36:39], s66 offen sc1
s_mov_b64 exec, -1
L_h_std:""")
stamp(11)
lds_add(C_R)
e("s_waitcnt vmcnt(0)")
publish_kv()
stamp(12)
e("s_cmp_lg_u32 s7, 0\ns_cbranch_scc1 L_h_wait")
lds_spin(C_B if opt("pollc", 0) else C_A, 9 if opt("pollc", 0) else 12, sleep=2)
stamp(2)
poll_all(WS_KVF, opt("pollsleep", 6))
lds_add(C_F)
e("s_branch L_h_go\nL_h_wait:")
lds_spin(C_F, 1, sleep=2)
e("L_h_go:")
stamp(3)
KS, NC0 = 20, 20
e(f"""v_subrev_u32 v4, 512, v0
v_lshlrev_b32 v4, 4, v4
s_mov_b32 s63, {WS_KV}""")
for m in range(NC0):
    r = KS + 4*m
    if m & 1: e(f"buffer_load_dwordx4 v[{r}:{r+3}], v4, s[36:39], s63 offen offset:2048 sc1\ns_add_u32 s63, s63, 4096")
    else: e(f"buffer_load_dwordx4 v[{r}:{r+3}], v4, s[36:39], s63 offen sc1")
lds_add(C_G)
e(f"""s_cmp_lg_u32 s7, 0
s_cbranch_scc1 L_h_nokc
v_max_f32 v9, v9, v11
v_max3_f32 v9, v9, v13, v15""")
for k in (8, 4, 2, 1):
    e(f"v_max_f32_dpp v9, v9, v9 row_ror:{k} row_mask:0xf bank_mask:0xf")
for sw in ("v_permlane16_swap_b32", "v_permlane32_swap_b32"):
    e(f"v_mov_b32 v13, v9\n{sw} v9, v13\nv_max_f32 v9, v9, v13")
e(f"""v_sqrt_f32 v9, v9
v_mov_b32 v10, 1.0
v_mov_b32 v3, {L_KC}
v_mul_f32 v9, {f32(1.02)}, v9
v_cvt_pk_bf16_f32 v10, v9, v10
v_mov_b32 v11, s6
ds_write_b64 v3, v[10:11]
s_cmp_lg_u32 s2, 0
s_cbranch_scc1 L_h_nokc
v_mov_b32 v3, 0
v_mov_b32 v6, s6
s_mov_b64 exec, 1
buffer_store_dword v6, v3, s[36:39], 0 offen sc1
s_mov_b64 exec, -1
L_h_nokc:""")
lds_spin(C_Q1, 8, sleep=0)
stamp(4)
for m in range(NC0):
    r = KS + 4*m
    e(f"s_waitcnt vmcnt({NC0-1-m})\nds_write_b128 v4, v[{r}:{r+3}] offset:{2048*m}")
e("s_waitcnt lgkmcnt(0)")
lds_add(C_K0)
stamp(5)
lds_spin(C_Q, 8, sleep=1)
e(f"""v_lshlrev_b32 v4, 4, v1
s_lshl_b32 s60, s7, 10
s_add_u32 s60, s60, {2048*NC0}
s_setprio {opt("dmaprio", 0)}
L_kvdma:
s_mov_b32 m0, s60
s_add_u32 s61, s60, {WS_KV}
s_add_u32 s60, s60, 2048
{"s_nop 0" if "--nokvdma" in sys.argv else "buffer_load_dwordx4 v4, s[36:39], s61 offen sc1 lds"}
s_cmp_lt_u32 s60, {64*TS}
s_cbranch_scc1 L_kvdma
s_setprio 2
s_waitcnt vmcnt(0)""")
lds_add(C_K)
stamp(6)
e("s_cmp_lg_u32 s7, 0\ns_cbranch_scc1 L_h_epi")
srd(40, P_WO, 663552)
e(f"""v_lshlrev_b32 v4, 7, v1
s_lshr_b32 s60, s2, 3
s_mul_i32 s60, s60, {162*128}
buffer_load_dword v8, v4, s[40:43], s60 offen
s_add_u32 s60, s60, 8192
buffer_load_dword v9, v4, s[40:43], s60 offen
s_add_u32 s60, s60, 8192
s_mov_b32 exec_hi, 3
buffer_load_dword v10, v4, s[40:43], s60 offen
s_branch L_h_end""")
e("L_h_epi:\ns_sub_u32 s70, 3, s7\ns_lshl_b32 s70, s70, 6")
srd(40, P_BQ, 2359296)
srd(48, P_OUT, 4718592)
srd(52, P_WS, WS_SIZE)
e("s_cmp_ge_u32 s4, 16\ns_cselect_b32 s54, s54, 0")
lds_spin(C_U, 1, sleep=16)
e(f"""v_add_u32 v6, s70, v1
v_and_b32 v7, 7, v6
s_lshl_b32 s60, s4, 6
v_lshl_add_u32 v56, v7, 3, s60
v_lshrrev_b32 v6, 3, v6
s_mul_i32 s60, s5, 72
v_lshl_add_u32 v57, v6, 2, s60""")
EU, EY, EZ, EQ, ED = 64, 80, 96, 112, 24
e(f"""s_cmp_eq_u32 s7, 1
s_cselect_b64 s[66:67], 0xffff, -1
s_mov_b64 exec, s[66:67]
v_lshlrev_b32 v7, 1, v57
v_mul_u32_u24 v6, 1152, v56
v_add_u32 v6, v6, v7""")
for i in range(8):
    e(f"s_mov_b32 s60, {1152*i}\nbuffer_load_dwordx2 v[{EQ+2*i}:{EQ+2*i+1}], v6, s[40:43], s60 offen")
e(f"v_mul_u32_u24 v59, 2304, v56\nv_add_u32 v59, v59, v7")
e(f"""v_lshlrev_b32 v60, 1, v56
v_lshl_add_u32 v60, v57, 12, v60
s_mov_b64 exec, -1
s_cmp_lt_u32 s2, 192
s_cselect_b32 s63, 7, 6""")
lds_spin(C_YW, "s63", sleep=8)
e(f"s_mov_b64 exec, s[66:67]\ns_mov_b32 s62, {SPIN}\nL_e_poll:")
for c in range(4):
    e(f"s_mov_b32 s60, {WS_Y + 4096*c}\nbuffer_load_dwordx4 v[{EY+4*c}:{EY+4*c+3}], v60, s[36:39], s60 offen sc1")
    e(f"s_mov_b32 s60, {WS_Y2 + 4096*c}\nbuffer_load_dwordx4 v[{EZ+4*c}:{EZ+4*c+3}], v60, s[52:55], s60 offen sc1")
e(f"s_waitcnt vmcnt(0)\nv_max_u32 v3, v{EY}, v{EY+1}")
for r in range(EY + 2, EY + 32, 2): e(f"v_max3_u32 v3, v3, v{r}, v{r+1}")
e(f"""v_cmp_eq_u32 vcc, -1, v3
s_sub_u32 s62, s62, 1
s_cbranch_scc1 L_e_go
s_cbranch_vccz L_e_go
s_sleep 8
s_branch L_e_poll
L_e_go:""")
stamp(8)
def gate(two):
    for i in range(8):
        for ee in range(2):
            half(38, EY + 8*ee + (i >> 1), i & 1); half(39, EY + 8*ee + 4 + (i >> 1), i & 1)
            if two:
                half(36, EZ + 8*ee + (i >> 1), i & 1); half(37, EZ + 8*ee + 4 + (i >> 1), i & 1)
                e("v_pk_add_f32 v[38:39], v[38:39], v[36:37]")
            half(36, EQ + 2*i + ee, 0); half(37, EQ + 2*i + ee, 1)
            e("v_pk_mul_f32 v[38:39], v[38:39], v[36:37]")
            e(f"v_cvt_pk_bf16_f32 v{40+2*i+ee}, v38, v39")
        e(f"s_mov_b32 s60, {2304*i + 1152}\nbuffer_store_dwordx2 v[{40+2*i}:{41+2*i}], v59, s[48:51], s60 offen")
e("s_cmp_lt_u32 s4, 16\ns_cbranch_scc1 L_e_one")
gate(True)
e("s_branch L_h_end\nL_e_one:")
gate(False)
e("L_h_end:")
stamp(9)
stamp_flush()
e("s_endpgm")

S0, S1, PP, OO, K1, K2, V0, V1, Q1, Q2 = 8, 24, 40, 48, 64, 68, 72, 76, 80, 84
AK1, AK2, AV0, AV1, QN = 86, 87, 88, 89, 90
FD = 8
YA, CA, CF, HS, SO, SH, SL, AH, AFV, YAD = 96, 112, 120, 152, 157, 158, 159, 160, 161, 162
e("L_att:")
e(f"""s_lshr_b32 s66, s3, 1
s_and_b32 s67, s5, 3
v_lshlrev_b32 v4, 7, v1
s_waitcnt lgkmcnt(0)""")
stamp(0)
srd(44, P_WQ, 663552)
e(f"""s_mov_b32 s70, 1
s_cmp_eq_u32 s66, s67
s_cbranch_scc1 L_pf3
s_sub_u32 s92, s3, 2
s_cmp_gt_u32 s66, s67
s_cselect_b32 s92, s92, s3
s_lshl_b32 s93, s4, 3
s_add_u32 s93, s93, s5
s_mul_i32 s93, s93, 9216
s_cmp_ge_u32 s92, 3
s_cselect_b32 s91, 3, 0
s_sub_u32 s91, s92, s91
s_cmp_eq_u32 s91, 0
s_cselect_b32 s48, s{P_X}, s{P_BK}
s_cselect_b32 s49, s{P_X+1}, s{P_BK+1}
s_cmp_eq_u32 s91, 2
s_cselect_b32 s48, s{P_BV}, s48
s_cselect_b32 s49, s{P_BV+1}, s49
s_mov_b32 s50, 2359296
s_mov_b32 s51, 0x00020000
s_cmp_ge_u32 s92, 3
s_cbranch_scc1 L_pf2
s_lshr_b32 s90, s2, 3
s_mul_i32 s90, s90, {162*128}
s_lshl_b32 s91, s92, 13
s_add_u32 s90, s90, s91
s_cmp_eq_u32 s92, 2
s_cselect_b32 exec_hi, 3, -1
buffer_load_dword v164, v4, s[44:47], s90 offen
s_mov_b64 exec, 0xff
s_add_u32 s93, s93, 8192
L_pf2:
buffer_load_dword v165, v4, s[48:51], s93 offen
s_mov_b64 exec, -1
""")
e(f"""s_branch L_nopf
L_pf3:
s_getpc_b64 s[90:91]
L_pc:
s_sub_u32 s90, s90, L_pc-{NAME}_kernel
s_subb_u32 s91, s91, 0
s_and_b32 s92, s3, 1
s_mul_i32 s92, s92, 24576
v_add_u32 v4, s92, v4
s_mov_b32 s70, 0""")
for k in range(3):
    e(f"v_min_u32 v5, L_end-{NAME}_kernel, v4\nglobal_load_dword v{164+k}, v5, s[90:91]\nv_add_u32 v4, 8192, v4")
e("L_nopf:")
DA = 120
M40 = magic(40, 320)
e("s_lshl_b32 s62, s3, 2\ns_lshl_b32 s64, s3, 3")
for n in range(5):
    e(f"""v_add_u32 v5, {64*n}, v1
v_mul_u32_u24 v6, {M40}, v5
v_lshrrev_b32 v6, 16, v6
v_mul_u32_u24 v7, 40, v6
v_sub_u32 v5, v5, v7
v_lshrrev_b32 v7, 1, v6
v_add_u32 v7, s62, v7
v_and_b32 v7, 7, v7
v_xor_b32 v5, v5, v7
v_mul_u32_u24 v6, 1152, v6
v_lshl_add_u32 v{DA+n}, v5, 4, v6""")
for m in range(6): wslice_off(DA + 9 + m, f"v_add_u32 v5, {512*m}, v0")
e(f"""s_lshl_b32 s60, s4, 6
s_add_u32 s60, s60, s64
s_mul_i32 s60, s60, 1152
s_add_u32 s65, s60, 640
s_mul_i32 s61, s3, 5120
s_lshl_b32 s62, s3, 10
s_mul_i32 s63, s5, 144
""")
srd(36, P_WS, WS_SIZE)
srd(40, P_X, 2359296)
def xa_dma(n): e(f"s_add_u32 m0, s61, {LXA + 1024*n}\nbuffer_load_dwordx4 v{DA+n}, s[40:43], s60 offen lds")
def xb_dma(n): e(f"s_add_u32 m0, s64, {LXB + 1024*n}\nbuffer_load_dwordx4 v{DA+5+n}, s[40:43], s65 offen lds")
def wa_dma(m): e(f"s_add_u32 m0, s62, {LW + 8192*m}\nbuffer_load_dwordx4 v{DA+9+m}, s[44:47], s63 offen lds")
e("s_barrier")
stamp(1)
e("s_cmp_eq_u32 s70, 0\ns_cbranch_scc1 L_a_wq")
for n in range(5): xa_dma(n)
e("L_a_wq:")
for m in range(5): wa_dma(m)
e("s_cmp_ge_u32 s3, 5\ns_cbranch_scc1 L_a_s5")
wa_dma(5)
e("L_a_s5:")
wslice_off(DA + 15, f"v_add_u32 v5, {45*64}, v0")
e(f"""s_add_u32 m0, s62, {LW + 45*1024}
s_lshl_b32 s92, s3, 3
buffer_load_dwordx4 v{DA+15}, s[44:47], s63 offen lds
s_cmp_eq_u32 s70, 0
s_cbranch_scc1 L_a_noxb
s_lshl_b32 s64, s3, 12""")
for n in range(4):
    e(f"""v_lshrrev_b32 v6, 5, v1
v_add_u32 v6, {2*n}, v6
v_add_u32 v7, s92, v6
v_and_b32 v7, 15, v7
v_and_b32 v5, 31, v1
v_xor_b32 v5, v5, v7
v_mul_u32_u24 v6, 1152, v6
v_lshl_add_u32 v{DA+5+n}, v5, 4, v6""")
    xb_dma(n)
e("L_a_noxb:")
if opt("spf", 0):
    e(f"""s_lshl_b32 s60, s4, 6
s_add_u32 s60, s60, s3
s_mul_i32 s60, s60, 1152
s_mul_i32 s61, s5, 144
s_add_u32 s60, s60, s61""")
    for r in range(8):
        e(f"""s_load_dword s97, s[{P_BK}:{P_BK+1}], s60
s_load_dword s97, s[{P_BV}:{P_BV+1}], s60
s_add_u32 s61, s60, 128
s_load_dword s97, s[{P_BK}:{P_BK+1}], s61
s_load_dword s97, s[{P_BV}:{P_BV+1}], s61
s_add_u32 s60, s60, 9216""")
AW0, AW1, AXA, AXB = 64, 65, 66, 70
e(f"""v_lshrrev_b32 v4, 5, v1
v_bfe_u32 v5, v1, 2, 2
v_lshl_add_u32 v5, v4, 3, v5
v_mul_u32_u24 v5, 144, v5
v_and_b32 v6, 1, v1
v_bfe_u32 v7, v1, 1, 1
v_bfe_u32 v3, v1, 4, 1
v_lshl_add_u32 v7, v3, 1, v7
s_lshr_b32 s60, s3, 1
s_and_b32 s61, s60, 1
s_mul_i32 s62, s60, 36
s_lshl_b32 s64, s61, 2
s_sub_u32 s62, s62, s64
s_add_u32 s62, s62, {LW}
s_lshl_b32 s64, s61, 3
s_add_u32 s64, s64, 16
v_mul_u32_u24 v6, s64, v6
v_lshl_add_u32 v6, v7, 3, v6
v_add3_u32 v{AW0}, v5, v6, s62
v_add_u32 v{AW1}, {18*2304}, v{AW0}
s_and_b32 s62, s3, 1
s_lshl_b32 s62, s62, 5
v_and_b32 v5, 31, v1
v_add_u32 v5, s62, v5
v_bfe_u32 v6, v5, 1, 3
v_mul_u32_u24 v3, 640, v5""")
for j in range(4):
    e(f"v_add_u32 v7, {2*j}, v4\nv_xor_b32 v7, v7, v6\nv_lshl_add_u32 v{AXA+j}, v7, 4, v3")
e("v_and_b32 v6, 15, v5\nv_lshlrev_b32 v3, 9, v5")
for j in range(8):
    e(f"v_add_u32 v7, {2*j}, v4\nv_xor_b32 v7, v7, v6\nv_lshl_add_u32 v{AXB+j}, v7, 4, v3")
e(f"""s_mov_b32 s64, 0
s_mov_b32 s65, -1
s_cmp_eq_u32 s61, 0
s_cselect_b32 s66, 0, -1
s_cselect_b32 s67, -1, 0
v_lshlrev_b32 v{AK1}, 4, v1
v_and_b32 v5, 31, v1
v_lshlrev_b32 v{AK2}, 2, v5
v_add_u32 v{AK2}, 1024, v{AK2}
v_mul_u32_u24 v6, 288, v4
v_lshl_add_u32 v6, v5, 4, v6
v_add_u32 v6, 1152, v6
v_add_u32 v7, 576, v6
v_and_b32 v3, 27, v5
v_cmp_eq_u32 vcc, 18, v3
v_mov_b32 v3, {LFAR}
v_mov_b32 v8, 2304
v_cndmask_b32 v3, v3, v8, vcc
v_cmp_gt_u32 vcc, 18, v5
v_cndmask_b32 v{AV0}, v3, v6, vcc
v_cndmask_b32 v{AV1}, v3, v7, vcc
v_mov_b32 v92, 1""")
for r in range(16): e(f"v_mov_b32 v{OO+r}, 0")
for r in range(16): e(f"v_mov_b32 v{YA+r}, 0")
e(f"""s_lshl_b32 s90, s3, 8
s_add_u32 s90, s90, s2
s_cmp_ge_u32 s90, 576
s_cselect_b32 s91, 1, 0
s_cmp_ge_u32 s90, 1152
s_cselect_b32 s91, 2, s91
s_mul_i32 s60, s91, 576
s_sub_u32 s92, s90, s60
s_min_u32 s92, s92, 575
s_cmp_lt_u32 s90, 1728
s_cselect_b32 s95, s3, 0
s_cselect_b32 s96, 0, s3
s_lshl_b32 s60, s92, 12""")
srd_off(40, P_H, "s60", 4096)
e(f"s_add_u32 s61, s60, {WS_U}")
srd_off(44, P_WS, "s61", 2048)
e(f"s_add_u32 s61, s61, 2048")
srd_off(52, P_WS, "s61", 2048)
e(f"""s_cmp_eq_u32 s91, 1
s_cselect_b32 s61, {WS_Y2-WS_Y}, 0
s_cselect_b32 s62, 2048, 0
s_sub_u32 s62, s62, 64
s_add_u32 s93, s60, s61
s_add_u32 s93, s93, {WS_Y}
s_cmp_eq_u32 s91, 0
s_cselect_b32 s61, 0, 2048
s_add_u32 s93, s93, s61
s_cmp_eq_u32 s91, 2
s_cselect_b32 s94, 0, 1024
s_mul_i32 s60, s3, 1088
s_add_u32 s60, s60, {LCONV}
v_lshlrev_b32 v{SO}, 4, v5
v_add_u32 v{SO}, s62, v{SO}
v_mov_b32 v3, 0x05040302
v_mov_b32 v6, 0x07060504
v_cndmask_b32 v{SH}, v3, v6, s[64:65]
v_lshlrev_b32 v3, 4, v5
v_mul_u32_u24 v6, 576, v4
v_add3_u32 v{SL}, v3, v6, s60
v_lshrrev_b32 v3, 1, v5
v_lshlrev_b32 v3, 2, v3
v_lshl_add_u32 v3, v4, 4, v3
v_and_b32 v6, 1, v5
v_mul_u32_u24 v6, 576, v6
v_add3_u32 v{AH}, v3, v6, s60
v_sub_u32 v3, 31, v5
v_lshlrev_b32 v3, 5, v3
v_lshl_add_u32 v{AFV}, v4, 4, v3
v_lshlrev_b32 v3, 6, v5
v_lshl_add_u32 v{YAD}, v4, 4, v3
s_lshl_b32 s60, s92, 1
v_mov_b32 v95, s60""")
srd(56, P_D, 1152)
def hload():
    e(f"""v_add_u32 v163, 16, v{SO}
buffer_load_dwordx4 v[{HS}:{HS+3}], v{SO}, s[40:43], 0 offen
buffer_load_dword v{HS+4}, v163, s[40:43], 0 offen
v_add_u32 v{SO}, 448, v{SO}""")
def hperm():
    for i in range(4): e(f"v_perm_b32 v{HS+i}, v{HS+i+1}, v{HS+i}, v{SH}")
def hwrite(): e(f"ds_write_b128 v{SL}, v[{HS}:{HS+3}]")
def fload(s):
    r = CF + 4*(s % FD); sr = (44, 52)[s & 1]
    e(f"buffer_load_dwordx4 v[{r}:{r+3}], v{AFV}, s[{sr}:{sr+3}], s94 offen offset:{32*(s >> 1)} sc1")
def aload(s):
    r = CA + 4*(s % 2); o = 8*(s % 14)
    e(f"ds_read2_b32 v[{r}:{r+1}], v{AH} offset0:{o} offset1:{o+1}")
    e(f"ds_read2_b32 v[{r+2}:{r+3}], v{AH} offset0:{o+2} offset1:{o+3}")
FA, FB = 24, 36
def qread(s):
    a = FA + 4*(s % 3); b = FB + 4*(s % 3)
    base = AW0 if s < 18 else AW1
    off = 2304 * (s % 18)
    e(f"ds_read_b64_tr_b16 v[{a}:{a+1}], v{base} offset:{off}\nds_read_b64_tr_b16 v[{a+2}:{a+3}], v{base} offset:{off+576}")
    if s < 20: e(f"ds_read_b128 v[{b}:{b+3}], v{AXA + (s & 3)} offset:{LXA + 128*(s >> 2)}")
    else: e(f"ds_read_b128 v[{b}:{b+3}], v{AXB + ((s-20) & 7)} offset:{LXB + 256*((s-20) >> 3)}")
def qsteps(lo, hi):
    qread(lo); qread(lo + 1)
    for s in range(lo, hi):
        if s + 2 < hi: qread(s + 2)
        left = min(2, hi - 1 - s)
        a = FA + 4*(s % 3); b = FB + 4*(s % 3)
        e(f"s_waitcnt lgkmcnt({3*left})")
        e(f"v_mfma_f32_32x32x16_bf16 v[{S0}:{S0+15}], v[{a}:{a+3}], v[{b}:{b+3}], {'0' if s == 0 else f'v[{S0}:{S0+15}]'}")
e("s_cmp_eq_u32 s70, 0\ns_cbranch_scc1 L_a_wa1\ns_waitcnt vmcnt(5)\ns_branch L_a_wa2\nL_a_wa1:\ns_waitcnt vmcnt(1)\nL_a_wa2:")
lds_add(C_A)
lds_spin(C_A, 12)
stamp(2)
e("s_setprio 3")
qsteps(0, 20)
lds_add(C_Q1)
e("s_waitcnt vmcnt(0)")
lds_add(C_B)
lds_spin(C_B, 9)
stamp(13)
hload()
e("buffer_load_ushort v94, v95, s[56:59], 0 offen")
qsteps(20, 36)
lds_add(C_Q)
CQ = 18 ** -0.5 * math.log2(math.e)
e(f"s_mov_b32 s60, {f32(CQ)}")
for r in range(4): e(f"v_mov_b32 v{PP+4+r}, 0")
for r in range(12): e(f"v_mul_f32 v{S0+r}, s60, v{S0+r}")
for i in range(6):
    e(f"v_cvt_pk_bf16_f32 v{24+i}, v{S0+2*i}, v{S0+2*i+1}")
    e(f"v_mul_f32 v{32+i}, v{S0+2*i}, v{S0+2*i}")
    e(f"v_fmac_f32 v{32+i}, v{S0+2*i+1}, v{S0+2*i+1}")
for i in range(4): e(f"v_cndmask_b32 v{Q1+i}, v{24+i}, v{25+i}, s[66:67]")
e(f"""v_cndmask_b32 v{Q2}, v28, v29, s[66:67]
v_cndmask_b32 v{Q2}, v{Q2}, 0, s[64:65]
v_cndmask_b32 v40, v32, v36, s[66:67]
v_cndmask_b32 v41, v36, v37, s[66:67]
v_cndmask_b32 v41, v41, 0, s[64:65]
v_add_f32 v40, v40, v41
v_add_f32 v40, v40, v33
v_add_f32 v40, v40, v34
v_add_f32 v40, v40, v35
v_mov_b32 v41, v40
v_permlane32_swap_b32 v40, v41
v_add_f32 v40, v40, v41
v_sqrt_f32 v{QN}, v40
v_mov_b32 v41, {f32(SHIFT)}
v_mov_b32 v7, {L_KC}
v_cvt_pk_bf16_f32 v{Q2+1}, -v{QN}, v41
v_cndmask_b32 v{Q2+1}, v{Q2+1}, 0, s[64:65]
v_mov_b32 v4, {f32(THR)}""")
stamp(3)
lds_spin(C_K0, 2, sleep=0)
stamp(5)
cstamp(14)
def mm_qk1(sn): e(f"v_mfma_f32_32x32x16_bf16 v[{sn}:{sn+15}], v[{K1}:{K1+3}], v[{Q1}:{Q1+3}], 0")
def mm_qk2(sn): e(f"v_mfma_f32_32x32x8_bf16 v[{sn}:{sn+15}], v[{K2}:{K2+1}], v[{Q2}:{Q2+1}], v[{sn}:{sn+15}]")
def mm_pv(v, p): e(f"v_mfma_f32_32x32x16_bf16 v[{OO}:{OO+15}], v[{v}:{v+3}], v[{p}:{p+3}], v[{OO}:{OO+15}]")
def rd_k1(t): e(f"ds_read_b128 v[{K1}:{K1+3}], v{AK1} offset:{TS*t}")
def rd_k2(t): e(f"ds_read_b32 v{K2}, v{AK2} offset:{TS*t}")
def rd_v0(t): e(f"ds_read_b128 v[{V0}:{V0+3}], v{AV0} offset:{TS*t}")
def rd_v1(t): e(f"ds_read_b128 v[{V1}:{V1+3}], v{AV1} offset:{TS*t}")
e(f"ds_read_b32 v{K2+1}, v7\nds_read_b32 v6, v7 offset:4")
rd_k1(0); rd_k2(0); rd_v1(0)
e(f"""s_waitcnt lgkmcnt(3)
v_readfirstlane_b32 s6, v6
v_lshlrev_b32 v5, 16, v{K2+1}
v_mul_f32 v5, v5, v{QN}
v_cmp_nle_f32 vcc, v5, v4
s_cbranch_vccnz L_truemax
L_pass:
s_waitcnt lgkmcnt(0)""")
mm_qk1(S0); mm_qk2(S0)
rd_k1(1); rd_v1(0); rd_k2(1); rd_v0(0)
e("s_mov_b32 s60, 0\ns_mov_b32 s71, 0\ns_setprio 0\ns_nop 7")
def prio(p):
    if "--noprio" in sys.argv: return
    l = L("pr")
    e(f"s_bitcmp1_b32 s95, 2\ns_cbranch_scc0 {l}\ns_setprio {p}\n{l}:")
def bump(n):
    for a in (AK1, AK2, AV0, AV1): e(f"v_add_u32 v{a}, {TS*n}, v{a}")
e(".p2align 6")
e("L_loop:")
for t in range(8):
    s = (S0, S1)[t & 1]; sn = (S0, S1)[(t + 1) & 1]
    ex = lambda i: e(f"v_exp_f32 v{s+i}, v{s+i}")
    cv = lambda i: e(f"v_cvt_pk_bf16_f32 v{PP+i}, v{s+2*i}, v{s+2*i+1}")
    if t == 0: e("s_bitcmp1_b32 s3, 2\ns_cbranch_scc0 L_pr0\ns_setprio 1\nL_pr0:")
    if t == opt("plu", 5): e("s_bitcmp1_b32 s96, 2\ns_cbranch_scc0 L_pr1\ns_setprio 0\nL_pr1:")
    if t == PLO: prio(0)
    e("s_waitcnt lgkmcnt(2)")
    mm_qk1(sn); rd_k1(t + 2)
    ex(0); ex(1); ex(2); ex(3); cv(0)
    mm_pv(V1, PP + 4); rd_v1(t)
    ex(4); ex(5); cv(1); ex(6); ex(7); cv(2)
    e("s_waitcnt lgkmcnt(2)")
    mm_qk2(sn); rd_k2(t + 2)
    ex(8); cv(3); ex(9); ex(10); ex(11); cv(4)
    mm_pv(V0, PP); rd_v0(t + 1)
    ex(12); ex(13); cv(5); ex(14); ex(15); cv(6); cv(7)
bump(8)
e(f"""s_add_u32 s60, s60, 1
s_cmp_eq_u32 s60, 1
s_cbranch_scc1 L_loop
s_cmp_lg_u32 s60, 8
s_cbranch_scc1 L_edge
L_fini:
s_waitcnt lgkmcnt(0)""")
mm_pv(V1, PP + 4)
e("s_setprio 0")
stamp(6)
cstamp(15)
e(f"""s_lshl_b32 s60, s4, 2
s_and_b32 s61, s3, 1
s_lshl_b32 s61, s61, 1
s_add_u32 s60, s60, s61
s_mul_i32 s60, s60, 18432
s_add_u32 s60, s60, {WS_O}
s_lshr_b32 s61, s3, 1
s_lshl_b32 s62, s5, 2
s_add_u32 s61, s61, s62
s_lshl_b32 s62, s61, 9
s_add_u32 s62, s62, s60
s_lshl_b32 s63, s5, 8
s_add_u32 s63, s63, s60
s_lshr_b32 s61, s3, 1
s_lshl_b32 s61, s61, 2
s_add_u32 s63, s63, s61
s_add_u32 s63, s63, 16384
v_bfe_u32 v5, v1, 4, 1
v_mul_u32_u24 v7, 18432, v5
v_and_b32 v5, 15, v1
v_lshl_add_u32 v7, v5, 4, v7
v_lshrrev_b32 v6, 5, v1
v_lshl_add_u32 v6, v6, 8, v7
v_rcp_f32 v4, v{OO+10}""")
for r in range(10): e(f"v_mul_f32 v{OO+r}, v{OO+r}, v4")
for i in range(5): e(f"v_cvt_pk_bf16_f32 v{8+i}, v{OO+2*i}, v{OO+2*i+1}")
for i in range(5): e(f"v_min_u32 v{8+i}, -2, v{8+i}")
e(f"""buffer_store_dwordx4 v[8:11], v6, s[36:39], s62 offen sc1
s_mov_b32 exec_hi, 0
buffer_store_dword v12, v7, s[36:39], s63 offen sc1
s_mov_b32 exec_hi, -1""")
lds_add(C_L, va=13, vb=14)
OA, TA, TB = 28, 30, 31
e(f"""s_and_b32 s60, s3, 3
s_lshr_b32 s61, s3, 2
s_lshl_b32 s62, s4, 2
s_add_u32 s62, s62, s60
s_mul_i32 s62, s62, 18432
s_mul_i32 s64, s61, 9216
s_add_u32 s62, s62, s64
s_add_u32 s64, s62, {WS_O}
s_add_u32 s65, s64, 4096
s_add_u32 s70, s64, 8192
v_lshlrev_b32 v{OA}, 4, v1
v_and_b32 v4, 15, v1
v_lshrrev_b32 v5, 4, v1
s_cmp_eq_u32 s61, 0
s_cselect_b64 s[66:67], 0, -1""")
OF, DD, WF = 40, 76, 96
def oload(i):
    r = OF + 4*i
    e(f"buffer_load_dwordx4 v[{r}:{r+3}], v{OA}, s[36:39], s{(64, 65, 70)[i >> 2]} offen offset:{1024*(i & 3)} sc1")
e(f"""s_lshl_b32 s60, s60, 4
v_add_u32 v36, s60, v4
v_mul_u32_u24 v36, 336, v36
v_lshl_add_u32 v36, v5, 4, v36
s_mul_i32 s60, s61, {64*336}
s_add_u32 s60, s60, {LEX}
v_add_u32 v36, s60, v36
v_lshrrev_b32 v6, 2, v4
v_and_b32 v4, 3, v4
v_lshrrev_b32 v7, 1, v5
v_mul_u32_u24 v7, 18, v7
v_and_b32 v3, 1, v5
v_lshl_add_u32 v7, v3, 2, v7
v_add_u32 v7, v7, v6
v_mul_u32_u24 v7, 144, v7
v_lshl_add_u32 v7, v4, 3, v7
s_mul_i32 s60, s61, {9*5184}
v_add_u32 v{TA}, s60, v7
v_lshrrev_b32 v3, 1, v6
v_lshl_add_u32 v3, v5, 2, v3
v_mul_u32_u24 v3, 18, v3
v_and_b32 v6, 1, v6
v_add3_u32 v3, v3, v6, 16
v_mul_u32_u24 v3, 144, v3
v_lshl_add_u32 v3, v4, 3, v3""")
for j, (d0, d1) in enumerate([(7*5184, 0), (7*5184+1152, 5184), (8*5184, 41472), (8*5184+1152, 41472+5184)]):
    e(f"v_add_u32 v6, {d0}, v{TA}\nv_add_u32 v7, {d1}, v3\nv_cndmask_b32 v{TB+j}, v6, v7, s[66:67]")
lds_spin(C_WO, 1, sleep=1)
NW = 18
def wread(u):
    i, ct = divmod(u, 5)
    r = WF + 4*(u % NW)
    if i < 7:
        e(f"ds_read_b64_tr_b16 v[{r}:{r+1}], v{TA} offset:{5184*i + 32*ct}")
        e(f"ds_read_b64_tr_b16 v[{r+2}:{r+3}], v{TA} offset:{5184*i + 32*ct + 1152}")
    else:
        e(f"ds_read_b64_tr_b16 v[{r}:{r+1}], v{TB + 2*(i-7)} offset:{32*ct}")
        e(f"ds_read_b64_tr_b16 v[{r+2}:{r+3}], v{TB + 2*(i-7) + 1} offset:{32*ct}")
AHEAD = 15
for u in range(AHEAD): wread(u)
srd(48, P_OUT, 4718592)
def fin_addr(cexpr, vl, vg):
    e(f"""{cexpr}
v_mul_u32_u24 v6, {M9}, v5
v_lshrrev_b32 v6, 16, v6
v_mul_u32_u24 v7, 9, v6
v_sub_u32 v5, v5, v7
v_mul_u32_u24 v7, 336, v6
v_lshl_add_u32 v{vl}, v5, 5, v7
v_add_u32 v{vl}, {LEX}, v{vl}
v_mul_u32_u24 v7, 2304, v6
v_lshl_add_u32 v{vg}, v5, 4, v7""")
fin_addr("v_mov_b32 v5, v0", 37, 38)
fin_addr("v_add_u32 v5, 512, v0", 35, 39)
e(f"""s_mul_i32 s63, s5, 144
s_mul_i32 s60, s4, {64*2304}
s_add_u32 s63, s63, s60""")
lds_spin(C_L, 8, sleep=1)
for i in range(9): oload(i)
e(f"s_mov_b32 s62, {SPIN}")
stamp(7)
def stale(k, lab, br):
    o = OF + 4*k
    e(f"""v_max3_u32 v3, v{o}, v{o+1}, v{o+2}
v_max_u32 v3, v3, v{o+3}
v_cmp_eq_u32 vcc, -1, v3
{br} {lab}""")
retry = []
for i in range(9):
    o = OF + 4*i
    lo, rt = L("ochk"), L("ort")
    e(f"s_waitcnt vmcnt({8-i})\n{lo}:")
    stale(i, rt, "s_cbranch_vccnz")
    retry.append((i, lo, rt))
    nxt = [u for u in range(5*i + AHEAD, 5*i + AHEAD + 5) if u < 45]
    e(f"s_waitcnt lgkmcnt({min(15, 2*min(10, 45 - 5*i - 5))})")
    for ct in range(5):
        u = 5*i + ct
        r = WF + 4*(u % NW); d = DD + 4*ct
        e(f"v_mfma_f32_16x16x32_bf16 v[{d}:{d+3}], v[{r}:{r+3}], v[{o}:{o+3}], {'0' if i == 0 else f'v[{d}:{d+3}]'}")
        if ct < len(nxt): wread(nxt[ct])
stamp(8)
for ct in range(5):
    e(f"ds_write_b128 v36, v[{DD+4*ct}:{DD+4*ct+3}] offset:{64*ct}")
lds_add(C_X)
lds_spin(C_X, 8, sleep=0)
def fin(vl, vg):
    e(f"""ds_read_b128 v[8:11], v{vl}
ds_read_b128 v[16:19], v{vl} offset:{64*336}
ds_read_b128 v[12:15], v{vl} offset:16
ds_read_b128 v[20:23], v{vl} offset:{64*336+16}
s_waitcnt lgkmcnt(2)
v_pk_add_f32 v[8:9], v[8:9], v[16:17]
v_pk_add_f32 v[10:11], v[10:11], v[18:19]
s_waitcnt lgkmcnt(0)
v_pk_add_f32 v[12:13], v[12:13], v[20:21]
v_pk_add_f32 v[14:15], v[14:15], v[22:23]
v_cvt_pk_bf16_f32 v24, v8, v9
v_cvt_pk_bf16_f32 v25, v10, v11
v_cvt_pk_bf16_f32 v26, v12, v13
v_cvt_pk_bf16_f32 v27, v14, v15
buffer_store_dwordx4 v[24:27], v{vg}, s[48:51], s63 offen""")
fin(37, 38)
e("s_cmp_lg_u32 s3, 0\ns_cbranch_scc1 L_t_fin\ns_nop 1")
fin(35, 39)
e("L_t_fin:")
stamp(9)
stamp_flush()
e("s_endpgm")
for i, lo, rt in retry:
    e(f"{rt}:\ns_waitcnt vmcnt(0)\ns_sleep {opt('osleep', 2)}")
    oload(i)
    for k in range(i + 1, 9):
        sk = L("osk")
        stale(k, sk, "s_cbranch_vccz")
        oload(k)
        e(f"{sk}:")
    e("s_sub_u32 s62, s62, 1\ns_waitcnt vmcnt(0)")
    e(f"s_cbranch_scc0 {lo}\ns_endpgm")

def release():
    e(f"v_mov_b32 v91, {C_P}\ns_mov_b64 exec, 1\nds_add_u32 v91, v92\ns_mov_b64 exec, -1")
e(f"""L_edge:
s_cmp_eq_u32 s60, 2
s_cbranch_scc1 L_chk
s_cmp_eq_u32 s71, 3
s_cbranch_scc1 L_conv
s_cmp_eq_u32 s60, 5
s_cbranch_scc0 L_loop""")
release()
e("s_waitcnt lgkmcnt(0)\ns_branch L_loop\nL_chk:")
cstamp(4)
e(f"v_mov_b32 v91, {C_T}\ns_mov_b64 exec, 1\nds_add_u32 v91, v92\ns_mov_b64 exec, -1")
lds_spin(C_K, 2, va=91, vb=93)
cstamp(10)
e("s_cmp_lt_u32 s90, 1728\ns_cselect_b32 s71, 3, 0\ns_branch L_loop")
class Ctr:
    def __init__(self, init): self.q = list(init)
    def issue(self, tag, n=1): self.q += [tag] * n
    def need(self, *tags):
        last = max((i for i, t in enumerate(self.q) if t in tags), default=-1)
        n = len(self.q) - 1 - last
        self.q = self.q[last + 1:]
        return n if last >= 0 else None
lg = Ctr(["k1_1", "v1_-1", "k2_1", "v0_0"])
vm = Ctr([f"f{k}" for k in range(FD)] + ["h1", "h1"])
def wait(ltags=(), vtags=()):
    a = lg.need(*ltags) if ltags else None
    b = vm.need(*vtags) if vtags else None
    t = []
    if b is not None: t.append(f"vmcnt({min(b, 63)})")
    if a is not None: t.append(f"lgkmcnt({min(a, 15)})")
    if t: e("s_waitcnt " + " ".join(t))
e(".p2align 6")
e("L_conv:")
def plain_tile(t, tl):
    s = (S0, S1)[t & 1]; sn = (S0, S1)[(t + 1) & 1]
    ex = lambda i: e(f"v_exp_f32 v{s+i}, v{s+i}")
    cv = lambda i: e(f"v_cvt_pk_bf16_f32 v{PP+i}, v{s+2*i}, v{s+2*i+1}")
    wait([f"k1_{t+1}", f"v1_{t-1}"])
    mm_qk1(sn); rd_k1(tl + 2); lg.issue(f"k1_{t+2}")
    ex(0); ex(1); ex(2); ex(3); cv(0)
    mm_pv(V1, PP + 4); rd_v1(tl); lg.issue(f"v1_{t}")
    ex(4); ex(5); cv(1); ex(6); ex(7); cv(2)
    wait([f"k2_{t+1}", f"v0_{t}"])
    mm_qk2(sn); rd_k2(tl + 2); lg.issue(f"k2_{t+2}")
    ex(8); cv(3); ex(9); ex(10); ex(11); cv(4)
    mm_pv(V0, PP); rd_v0(tl + 1); lg.issue(f"v0_{t+1}")
    ex(12); ex(13); cv(5); ex(14); ex(15); cv(6); cv(7)
def conv_tile(t, tl, k0):
    s = (S0, S1)[t & 1]; sn = (S0, S1)[(t + 1) & 1]
    ex = lambda i: e(f"v_exp_f32 v{s+i}, v{s+i}")
    cv = lambda i: e(f"v_cvt_pk_bf16_f32 v{PP+i}, v{s+2*i}, v{s+2*i+1}")
    def cstep(k):
        a = CA + 4*(k % 2); f = CF + 4*(k % FD)
        newwin = (k + 2) % 14 == 0 and k + 2 < 64
        wait([f"a{k}"], [f"f{k}"] + ([f"h{(k+2)//14}"] if newwin else []))
        e(f"v_mfma_f32_32x32x16_bf16 v[{YA}:{YA+15}], v[{a}:{a+3}], v[{f}:{f+3}], v[{YA}:{YA+15}]")
        if newwin:
            hperm(); hwrite(); lg.issue("w")
        if k + 2 < 64: aload(k + 2); lg.issue(f"a{k+2}", 2)
        if k + FD < 64: fload(k + FD); vm.issue(f"f{k+FD}")
        if newwin and k + 16 < 64: hload(); vm.issue(f"h{(k+2)//14+1}", 2)
    wait([f"k1_{t+1}", f"v1_{t-1}"])
    mm_qk1(sn); rd_k1(tl + 2); lg.issue(f"k1_{t+2}")
    ex(0); ex(1); ex(2)
    mm_pv(V1, PP + 4); rd_v1(tl); lg.issue(f"v1_{t}")
    ex(3); cv(0); ex(4); cv(1); ex(5)
    cstep(k0)
    ex(6); ex(7); cv(2); ex(8)
    wait([f"k2_{t+1}", f"v0_{t}"])
    mm_qk2(sn); rd_k2(tl + 2); lg.issue(f"k2_{t+2}")
    cv(3); ex(9); ex(10); ex(11)
    mm_pv(V0, PP); rd_v0(tl + 1); lg.issue(f"v0_{t+1}")
    cv(4); ex(12); ex(13); cv(5)
    cstep(k0 + 1)
    ex(14); ex(15); cv(6); cv(7)
for t in range(40):
    if t == 16:
        bump(16); release(); lg.issue("rel")
    if t == 32: bump(16)
    tl = t % 16
    isconv = CS <= t < CS + 32
    if t % 8 == 0: prio(1)
    if t % 8 == (PLC if isconv else PLO): prio(0)
    if t == max(CS - 3, 0):
        lds_spin(C_U, 1, va=91, vb=93); lg.q = []
        cstamp(12)
        e("s_waitcnt vmcnt(0)")
        e(f"""v_lshlrev_b32 v94, 16, v94
v_lshlrev_b32 v91, 16, v{HS+4}
v_add_f32 v91, v91, v94
s_mov_b32 s61, 0xffff
v_cvt_pk_bf16_f32 v91, v91, v91
s_cmp_eq_u32 s91, 1
s_cselect_b32 exec_lo, 0, 8
s_cselect_b32 exec_hi, 0, 8
v_bfi_b32 v{HS+4}, s61, v91, v{HS+4}
s_mov_b64 exec, -1""")
        hperm()
        hwrite(); aload(0); aload(1); lg.issue("w"); lg.issue("a0", 2); lg.issue("a1", 2)
        for k in range(FD): fload(k)
        hload()
    if isconv: conv_tile(t, tl, 2*(t - CS))
    else: plain_tile(t, tl)
    if t == CS + 32:
        for k in range(2):
            r = CF + 4*k
            for j in range(4): e(f"v_cvt_pk_bf16_f32 v{r+j}, v{YA+8*k+2*j}, v{YA+8*k+2*j+1}")
            for j in range(4): e(f"v_min_u32 v{r+j}, -2, v{r+j}")
            e(f"v_permlane32_swap_b32 v{r}, v{r+2}\nv_permlane32_swap_b32 v{r+1}, v{r+3}")
            e(f"buffer_store_dwordx4 v[{r}:{r+3}], v{YAD}, s[36:39], s93 offen offset:{32*k} sc1")
        e(f"v_mov_b32 v91, {C_YW}\ns_mov_b64 exec, 1\nds_add_u32 v91, v92\ns_mov_b64 exec, -1"); lg.issue("yw")
        cstamp(11)
e("s_branch L_fini")
e("L_truemax:")
lds_spin(C_K, 2)
e(f"""v_mov_b32 v{Q2+1}, 0
v_mov_b32 v5, 0xff800000
s_mov_b32 s60, 64
L_fb:""")
rd_k1(0); rd_k2(0)
e("s_waitcnt lgkmcnt(0)")
mm_qk1(S0); mm_qk2(S0)
e(f"v_add_u32 v{AK1}, {TS}, v{AK1}\nv_add_u32 v{AK2}, {TS}, v{AK2}")
for i in range(8): e(f"v_max3_f32 v5, v5, v{S0+2*i}, v{S0+2*i+1}")
e(f"""s_sub_u32 s60, s60, 1
s_cmp_lg_u32 s60, 0
s_cbranch_scc1 L_fb
v_subrev_u32 v{AK1}, {TS*64}, v{AK1}
v_subrev_u32 v{AK2}, {TS*64}, v{AK2}
v_mov_b32 v6, v5
v_permlane32_swap_b32 v5, v6
v_max_f32 v5, v5, v6
v_sub_f32 v5, 0, v5
v_cvt_pk_bf16_f32 v6, v5, v5
v_and_b32 v7, 0xffff0000, v6
v_sub_f32 v5, v5, v7
v_cvt_pk_bf16_f32 v7, v5, v5
v_and_b32 v3, 0xffff0000, v7
v_sub_f32 v5, v5, v3
v_cvt_pk_bf16_f32 v5, v5, 0
v_and_b32 v6, 0xffff, v6
v_or_b32 v6, v6, v3
v_cndmask_b32 v{Q2+1}, v6, v5, s[64:65]
v_mov_b32 v{K2+1}, 0x3f803f80""")
rd_k1(0); rd_k2(0)
e("s_branch L_pass\nL_end:\ns_endpgm")

ref = open(f"cdna_kernels/{NAME}.s.ref").read().split("\n")
head = [l for l in ref if l.startswith(";") and "@launch" not in l and not l.startswith("; Override") and not l.startswith("; grid=")]
txt = "\n".join(head) + f"""
; @launch grid=(256,1,1) block=(768,1,1) lds={LDS_BYTES}
.amdgcn_target "amdgcn-amd-amdhsa--gfx950"
.text
.globl {NAME}_kernel
.p2align 8
.type {NAME}_kernel,@function
{NAME}_kernel:
""" + e.text() + f""".section .rodata,"a"
.p2align 6
.amdhsa_kernel {NAME}_kernel
  .amdhsa_next_free_vgpr 168
  .amdhsa_next_free_sgpr 102
  .amdhsa_accum_offset 168
  .amdhsa_group_segment_fixed_size 0
  .amdhsa_kernarg_size 112
  .amdhsa_user_sgpr_count 2
  .amdhsa_user_sgpr_kernarg_segment_ptr 1
  .amdhsa_system_sgpr_workgroup_id_x 1
.end_amdhsa_kernel
"""
open(OUT, "w").write(txt)
print("wrote", OUT, len(txt), "bytes;", e.nops, "nops inserted")
```

```python
import sys, struct, math
sys.path.insert(0, "gen")
from emit import Emitter

NAME = "concat_heads__grouped_kv_mqa__ssm_conv_h3__prompt"
STAMPS = "--stamps" in sys.argv
def opt(name, default):
    for a in sys.argv:
        if a.startswith(f"--{name}="): return int(a.split("=")[1])
    return default
OUT = [a for a in sys.argv[1:] if not a.startswith("--")]
OUT = OUT[0] if OUT else f"cdna_kernels/{NAME}.s"
PSW = opt("psw", 44)
P1C = opt("p1c", 0)
PLC = opt("plc", 5)
CS = opt("cs", 6)
PLO = opt("plo", 6)

def f32(x): return struct.unpack("<I", struct.pack("<f", x))[0]
def magic(d, n):
    m = -(-65536 // d)
    assert all((c * m) >> 16 == c // d for c in range(n)), (d, n)
    return m

WS_G, WS_KVF, WS_KVTF, WS_YF = 0, 0x40000, 0x50000, 0x60000
WS_KV, WS_U, WS_Y, WS_O, WS_ST, WS_Y2 = 0x10000, 0x100000, 0x400000, 0x700000, 0xA00000, 0xB00000
WS_SIZE = 0x1000000
TAGC = 0x9E3779B9
TS = 2320
LXA, LXB, LW = 0, 40960, 73728
NDEF = 53
LWKV = LW + NDEF * 1024
LCONV = 64 * TS
LMISC = LCONV + 8 * 1088
(C_W, C_R, C_KV, C_KVT, C_A, C_B, C_K, C_P, L_MAXLO, L_MAXHI, L_KC, L_TAG, C_F, C_Y, C_YW, C_Q,
 C_K0, C_U, C_WO, C_L, C_X, C_T, C_Q1, C_G, C_S) = [LMISC + 4 * i for i in range(25)]
LDS_BYTES = 163840
LFAR = 0x40000
LEX = 90112
SPIN = opt("spin", 0x200000)
SHIFT, THR = 60.0, 45.0

e = Emitter()
uid = [0]
def L(p):
    uid[0] += 1
    return f"L_{p}{uid[0]}"
def stamp(i):
    if STAMPS: e(f"s_memrealtime s[98:99]\ns_waitcnt lgkmcnt(0)\ns_mov_b32 s{72+i}, s98")
def cstamp(i):
    if STAMPS: e(f"s_memtime s[98:99]\ns_waitcnt lgkmcnt(0)\ns_mov_b32 s{72+i}, s98")
def stamp_flush():
    if not STAMPS: return
    e(f"""s_mul_i32 s60, s2, 12
s_add_u32 s60, s60, s3
s_lshl_b32 s60, s60, 6
s_add_u32 s60, s60, {WS_ST}
s_mov_b64 exec, -1
v_mov_b32 v3, 0""")
    for i in range(16):
        e(f"v_mov_b32 v4, s{72+i}\nbuffer_store_dword v4, v3, s[36:39], s60 offen offset:{4*i}")
def srd(n, plo, nbytes):
    e(f"s_mov_b32 s{n}, s{plo}\ns_mov_b32 s{n+1}, s{plo+1}\ns_mov_b32 s{n+2}, {nbytes}\ns_mov_b32 s{n+3}, 0x00020000")
def srd_off(n, plo, soff, nbytes):
    e(f"s_add_u32 s{n}, s{plo}, {soff}\ns_addc_u32 s{n+1}, s{plo+1}, 0\ns_mov_b32 s{n+2}, {nbytes}\ns_mov_b32 s{n+3}, 0x00020000")
def lds_add(addr, va=3, vb=6, rtn=None, also=None):
    e(f"v_mov_b32 v{va}, {addr}\nv_mov_b32 v{vb}, 1\ns_mov_b64 exec, 1")
    if also is not None: e(f"ds_add_u32 v{va}, v{vb} offset:{also - addr}")
    if rtn is None:
        e(f"ds_add_u32 v{va}, v{vb}\ns_mov_b64 exec, -1")
    else:
        e(f"ds_add_rtn_u32 v{vb}, v{va}, v{vb}\ns_waitcnt lgkmcnt(0)\nv_readfirstlane_b32 s{rtn}, v{vb}\ns_mov_b64 exec, -1")
TMO = "--tmo" in sys.argv
def tmo_mark(what):
    if not TMO: return
    print("timeout id", uid[0], what)
    e(f"""s_mov_b64 s[100:101], exec
s_mov_b64 exec, 1
v_mov_b32 v2, {uid[0]}
s_mul_i32 s88, s2, 12
s_add_u32 s88, s88, s3
s_lshl_b32 s88, s88, 2
s_add_u32 s88, s88, {WS_ST + 0x80000}
v_mov_b32 v0, 0
buffer_store_dword v2, v0, s[36:39], s88 offen
s_mov_b64 exec, s[100:101]""")
def lds_spin(addr, n, va=3, vb=6, sleep=1):
    l = L("spin"); d = L("spun")
    e(f"""v_mov_b32 v{va}, {addr}
s_mov_b32 s89, {SPIN}
{l}:
ds_read_b32 v{vb}, v{va}
s_waitcnt lgkmcnt(0)
v_readfirstlane_b32 s88, v{vb}
s_cmp_ge_u32 s88, {n}
s_cbranch_scc1 {d}
s_sleep {sleep}
s_sub_u32 s89, s89, 1
s_cbranch_scc0 {l}""")
    tmo_mark(f"lds {(addr - LMISC) // 4} >= {n}")
    e(f"{d}:")
def poll_all(base, sleep):
    l, d = L("poll"), L("polled")
    e(f"v_lshlrev_b32 v3, 5, v1\ns_mov_b32 s60, {base}\ns_mov_b32 s61, {base + 4096}\ns_mov_b32 s62, {SPIN}\n{l}:")
    for i in range(4):
        e(f"buffer_load_dwordx2 v[{8+2*i}:{9+2*i}], v3, s[36:39], s{60 + (i >> 1)} offen offset:{2048*(i & 1)} sc1")
    e(f"""s_waitcnt vmcnt(0)
v_cmp_ne_u32 vcc, s6, v8
v_cmp_ne_u32 s[64:65], s6, v10
s_or_b64 vcc, vcc, s[64:65]
v_cmp_ne_u32 s[64:65], s6, v12
s_or_b64 vcc, vcc, s[64:65]
v_cmp_ne_u32 s[64:65], s6, v14
s_or_b64 vcc, vcc, s[64:65]
s_sub_u32 s62, s62, 1
s_cbranch_scc1 {d}
s_cbranch_vccz {d}
s_sleep {sleep}
s_branch {l}
{d}:""")
P_X, P_WQ, P_WK, P_WV, P_WO, P_BQ, P_BK, P_BV, P_SK, P_H, P_D, P_OUT, P_DBG, P_WS = range(8, 36, 2)
M9 = magic(9, 5632)
def wslice_off(dst, cexpr):
    e(f"""{cexpr}
v_mul_u32_u24 v6, {M9}, v5
v_lshrrev_b32 v6, 16, v6
v_mul_u32_u24 v7, 1008, v6
v_lshl_add_u32 v{dst}, v5, 4, v7""")
def get_tag():
    e(f"v_readfirstlane_b32 s6, v2\ns_add_u32 s6, s6, {TAGC}")
def half(dst, src, hi):
    if hi: e(f"v_and_b32 v{dst}, 0xffff0000, v{src}")
    else: e(f"v_lshlrev_b32 v{dst}, 16, v{src}")

e(f"""s_cmp_ge_u32 s2, 256
s_cbranch_scc1 L_end
s_load_dwordx16 s[8:23], s[0:1], 0
s_load_dwordx8 s[24:31], s[0:1], 64
s_load_dwordx4 s[32:35], s[0:1], 96
v_and_b32 v1, 63, v0
v_lshrrev_b32 v2, 6, v0
v_mov_b32 v3, 0
v_readfirstlane_b32 s3, v2
s_and_b32 s4, s2, 31
s_lshr_b32 s5, s2, 5""")
if STAMPS:
    for i in range(16): e(f"s_mov_b32 s{72+i}, 0")
e("s_cmp_lt_u32 s3, 8\ns_cbranch_scc1 L_att")

M3 = magic(3, 1792)
e(f"""s_sub_u32 s7, s3, 8
s_setprio 2
v_subrev_u32 v5, 512, v0""")
for m in range(7):
    e(f"""v_mul_u32_u24 v6, {M3}, v5
v_lshrrev_b32 v6, 16, v6
v_mul_u32_u24 v6, 12, v6
v_lshlrev_b32 v7, 4, v5
v_sub_u32 v{16+m}, v7, v6""")
    if m < 6: e("v_add_u32 v5, 256, v5")
e(f"""v_lshlrev_b32 v4, 4, v1
s_and_b32 s61, s5, 3
s_lshl_b32 s61, s61, 2
s_add_u32 s61, s61, s7
s_lshl_b32 s61, s61, 2
s_lshl_b32 s60, s4, 6
s_add_u32 s60, s60, s61
s_mul_i32 s60, s60, 1152
s_lshl_b32 s62, s7, 5
v_xor_b32 v24, s62, v4
s_add_u32 s62, s62, 16
v_xor_b32 v25, s62, v4
v_lshrrev_b32 v6, 5, v1
s_lshl_b32 s62, s7, 2
v_add_u32 v7, s62, v6
v_and_b32 v5, 31, v1
v_xor_b32 v26, v5, v7
v_xor_b32 v27, 2, v26
v_mul_u32_u24 v6, 1152, v6
v_lshl_add_u32 v26, v26, 4, v6
v_lshl_add_u32 v27, v27, 4, v6
s_lshl_b32 s63, s7, 10
s_waitcnt lgkmcnt(0)""")
stamp(0)
e(f"""s_cmp_lt_u32 s5, 4
s_cselect_b32 s48, s{P_WK}, s{P_WV}
s_cselect_b32 s49, s{P_WK+1}, s{P_WV+1}
s_mov_b32 s50, 20736
s_mov_b32 s51, 0x00020000""")
srd(40, P_X, 2359296)
for m in range(7):
    e(f"s_add_u32 m0, s63, {LWKV + 4096*m}\nbuffer_load_dwordx4 v{16+m}, s[48:51], 0 offen lds")
e(f"s_mul_i32 s62, s61, 640\ns_mov_b32 exec_hi, 0xff")
for i in range(4):
    e(f"s_add_u32 m0, s62, {LXA + 640*i}\ns_add_u32 s64, s60, {1152*i}\nbuffer_load_dwordx4 v{24 + (i >> 1)}, s[40:43], s64 offen lds")
e(f"s_mov_b32 exec_hi, -1\ns_lshl_b32 s62, s61, 9")
for p in range(2):
    e(f"s_add_u32 m0, s62, {LXB + 1024*p}\ns_add_u32 s64, s60, {2304*p + 640}\nbuffer_load_dwordx4 v{26+p}, s[40:43], s64 offen lds")
srd(36, P_WS, WS_SIZE)
e(f"""buffer_load_dword v2, v3, s[36:39], 0 offen sc1
v_and_b32 v4, 15, v1
v_lshrrev_b32 v5, 4, v1
s_cmp_ge_u32 s7, 2
s_cbranch_scc1 L_h_sent
s_cmp_lg_u32 s7, 0
s_cbranch_scc1 L_h_b0
v_lshlrev_b32 v7, 2, v1
v_add_u32 v7, {LMISC}, v7
ds_write_b32 v7, v3
s_waitcnt lgkmcnt(0)
s_branch L_h_b0
L_h_sent:""")
e(f"""s_lshl_b32 s60, s4, 2
s_lshl_b32 s61, s7, 1
s_add_u32 s60, s60, s61
s_sub_u32 s60, s60, 4
s_mul_i32 s60, s60, 18432
s_lshl_b32 s61, s5, 11
s_add_u32 s60, s60, s61
s_add_u32 s60, s60, {WS_O}
v_lshlrev_b32 v6, 4, v1
v_mov_b32 v8, -1
v_mov_b32 v9, -1
v_mov_b32 v10, -1
v_mov_b32 v11, -1
buffer_store_dwordx4 v[8:11], v6, s[36:39], s60 offen sc1
buffer_store_dwordx4 v[8:11], v6, s[36:39], s60 offen offset:1024 sc1
s_add_u32 s60, s60, 18432
buffer_store_dwordx4 v[8:11], v6, s[36:39], s60 offen sc1
buffer_store_dwordx4 v[8:11], v6, s[36:39], s60 offen offset:1024 sc1
s_mul_i32 s60, s4, {4*18432}
s_lshl_b32 s61, s5, 8
s_add_u32 s60, s60, s61
s_add_u32 s60, s60, {WS_O + 16*1024}
v_mul_u32_u24 v6, 18432, v5
v_lshl_add_u32 v6, v4, 4, v6
buffer_store_dwordx4 v[8:11], v6, s[36:39], s60 offen sc1""")
M18 = magic(18, 192)
def task_regs(stask, vt0, vd):
    e(f"""v_add_u32 v6, {stask}, v1
v_mul_u32_u24 v7, {M18}, v6
v_lshrrev_b32 v7, 16, v7
s_lshl_b32 s60, s4, 6
v_lshl_add_u32 v{vt0}, v7, 3, s60
v_mul_u32_u24 v7, 18, v7
v_sub_u32 v6, v6, v7
s_mul_i32 s60, s5, 72
v_lshl_add_u32 v{vd}, v6, 2, s60""")
def p1_regs(slot):
    return (8, 30, 48, 56, 57) if slot == 0 else (120, 142, 160, 58, 59)
def p1_loads(stask, slot=0):
    PK, PV_, PS, T0, DD_ = p1_regs(slot)
    task_regs(stask, T0, DD_)
    e(f"v_mul_u32_u24 v6, 1152, v{T0}\nv_lshl_add_u32 v6, v{DD_}, 1, v6")
    for i in range(3):
        e(f"v_subrev_u32 v7, {1152*(3-i)}, v6\nbuffer_load_dwordx2 v[{PK+2*i}:{PK+2*i+1}], v7, s[44:47], 0 offen")
    for i in range(8):
        e(f"s_mov_b32 s60, {1152*i}\nbuffer_load_dwordx2 v[{PK+6+2*i}:{PK+7+2*i}], v6, s[44:47], s60 offen\nbuffer_load_dwordx2 v[{PV_+2*i}:{PV_+2*i+1}], v6, s[52:55], s60 offen")
    e(f"v_lshlrev_b32 v7, 3, v{DD_}\nbuffer_load_dwordx4 v[{PS}:{PS+3}], v7, s[56:59], 0 offen\nbuffer_load_dwordx4 v[{PS+4}:{PS+7}], v7, s[56:59], 0 offen offset:16")
UK, UW, UA = 64, 88, 96
def u_addr(vt0, vd, dst):
    e(f"""v_sub_u32 v7, 2040, v{vt0}
v_lshrrev_b32 v{dst}, 5, v7
v_lshlrev_b32 v{dst}, 5, v{dst}
v_bfe_u32 v3, v7, 4, 1
v_lshl_add_u32 v{dst}, v3, 11, v{dst}
v_bfe_u32 v3, v7, 3, 1
v_lshl_add_u32 v{dst}, v3, 4, v{dst}
v_lshl_add_u32 v{dst}, v{vd}, 12, v{dst}""")
def p1_compute(slot=0):
    if "--nop1c" in sys.argv: return
    PK, PV_, PS, T0, DD_ = p1_regs(slot)
    u_addr(T0, DD_, 6)
    pr = lambda x: f"v[{x}:{x+1}]"
    for ee in range(2):
        for i in range(11):
            half(UK + 2*i, PK + 2*i + ee, 0); half(UK + 2*i + 1, PK + 2*i + ee, 1)
        for j in range(4):
            for c in range(2):
                half(UW + 2*j + c, PS + 4*ee + 2*c + (j >> 1), j & 1)
        for i in range(8):
            a = UA + 2*i
            e(f"v_pk_mul_f32 {pr(a)}, {pr(UK+2*i)}, {pr(UW+6)}")
            for j in (2, 1, 0):
                e(f"v_pk_fma_f32 {pr(a)}, {pr(UK+2*(i+3-j))}, {pr(UW+2*j)}, {pr(a)}")
            half(112, PV_ + 2*i + ee, 0); half(113, PV_ + 2*i + ee, 1)
            e(f"v_pk_mul_f32 {pr(a)}, {pr(a)}, v[112:113]")
        for c in range(2):
            r = (60, 116)[c]
            for m in range(4):
                e(f"v_cvt_pk_bf16_f32 v{r+m}, v{UA+2*(7-2*m)+c}, v{UA+2*(6-2*m)+c}")
            e(f"s_mov_b32 s60, {WS_U + 4096*(2*ee+c)}\nbuffer_store_dwordx4 v[{r}:{r+3}], v6, s[36:39], s60 offen sc1")
def p1_issue():
    srd(44, P_BK, 2359296)
    srd(52, P_BV, 2359296)
    srd(56, P_SK, 4608)
    l = L("p1a")
    e("s_sub_u32 s63, 3, s7\ns_lshl_b32 s63, s63, 6")
    p1_loads("s63")
    e(f"s_cmp_lg_u32 s7, 3\ns_cbranch_scc1 {l}\ns_mov_b64 exec, 0xffff")
    p1_loads("0x80", 1)
    e(f"s_mov_b64 exec, -1\n{l}:")
if P1C == 2: p1_issue()
e("L_h_b0:\ns_barrier")
def publish_kv():
    nl = L("nl")
    lds_add(C_KV, rtn=60)
    e(f"""s_cmp_lg_u32 s60, 3
s_cbranch_scc1 {nl}
v_mov_b32 v3, {L_MAXLO}
ds_read_b64 v[6:7], v3
s_lshl_b32 s60, s2, 5
s_add_u32 s60, s60, {WS_KVF}
v_mov_b32 v3, 0
s_waitcnt lgkmcnt(0)
v_add_f32 v7, v6, v7
v_mov_b32 v6, s6
s_mov_b64 exec, 1
buffer_store_dwordx2 v[6:7], v3, s[36:39], s60 offen sc1
s_mov_b64 exec, -1
{nl}:""")

def publish_u():
    nl = L("nl")
    lds_add(C_KVT, rtn=60)
    e(f"""s_cmp_lg_u32 s60, 1
s_cbranch_scc1 {nl}
v_mov_b32 v6, s6
s_lshl_b32 s60, s2, 5
s_add_u32 s60, s60, {WS_KVTF}
v_mov_b32 v3, 0
s_mov_b64 exec, 1
buffer_store_dword v6, v3, s[36:39], s60 offen sc1
s_mov_b64 exec, -1
{nl}:""")
e("s_cmp_lt_u32 s7, 2\ns_cbranch_scc1 L_h_kv")
if P1C == 2: e("s_cmp_eq_u32 s7, 3\ns_cbranch_scc1 L_h_w3\ns_waitcnt vmcnt(26)\ns_branch L_h_w4\nL_h_w3:\ns_waitcnt vmcnt(47)\nL_h_w4:")
else: e("s_waitcnt vmcnt(5)")
lds_add(C_W, also=C_A)
if P1C == 2: e("s_cmp_eq_u32 s7, 3\ns_cbranch_scc1 L_h_w5\ns_waitcnt vmcnt(21)\ns_branch L_h_w6\nL_h_w5:\ns_waitcnt vmcnt(42)\nL_h_w6:")
else: e("s_waitcnt vmcnt(0)")
get_tag()
publish_kv()
stamp(1)
e("s_cmp_eq_u32 s7, 3\ns_cbranch_scc1 L_h_p1")
srd(40, P_WQ, 663552)
for n in range(NDEF, 81): wslice_off(120 + n - NDEF, f"v_add_u32 v5, {64*n}, v1")
e("s_mul_i32 s63, s5, 144")
lds_spin(C_R, 2)
e("s_setprio 0")
for n in range(NDEF, 81):
    e(f"s_mov_b32 m0, {LW + 1024*n}\nbuffer_load_dwordx4 v{120 + n - NDEF}, s[40:43], s63 offen lds")
e("s_setprio 2")
if P1C == 2:
    e("s_waitcnt vmcnt(28)")
    p1_compute()
    e("s_waitcnt vmcnt(4)")
    lds_add(C_B)
    e("s_branch L_h_p1b")
else:
    e("s_waitcnt vmcnt(0)")
    lds_add(C_B)
e("L_h_p1:")
if P1C != 2:
    if P1C == 3: lds_spin(C_G, 2, sleep=2)
    else: lds_spin(C_B if P1C else C_A, 9 if P1C else 12, sleep=2)
    stamp(2)
    p1_issue()
e(f"""v_lshlrev_b32 v6, 4, v1
s_and_b32 s60, s7, 1
s_lshl_b32 s60, s60, 10
v_add_u32 v6, s60, v6
v_mov_b32 v60, -1
v_mov_b32 v61, -1
v_mov_b32 v62, -1
v_mov_b32 v63, -1
s_mov_b32 s63, s2
L_h_ym:
s_cmp_ge_u32 s63, 576
s_cselect_b32 s61, {WS_Y2 + 2048 - 576*4096}, {0}
s_cmp_ge_u32 s63, 1152
s_cselect_b32 s61, {WS_Y + 2048 - 1152*4096}, s61
s_cmp_lt_u32 s63, 576
s_cselect_b32 s61, {WS_Y}, s61
s_lshl_b32 s60, s63, 12
s_add_u32 s60, s60, s61
s_add_u32 s63, s63, 256
buffer_store_dwordx4 v[60:63], v6, s[36:39], s60 offen sc1
s_cmp_lt_u32 s63, 1728
s_cbranch_scc1 L_h_ym""")
e("s_waitcnt vmcnt(6)")
stamp(10)
p1_compute()
e("s_cmp_lg_u32 s7, 3\ns_cbranch_scc1 L_h_p1b\ns_mov_b64 exec, 0xffff")
p1_compute(1)
e("s_mov_b64 exec, -1\nL_h_p1b:\ns_waitcnt vmcnt(0)")
stamp(11)
publish_u()
e(f"""s_cmp_lg_u32 s7, 3
s_cbranch_scc1 L_h_epi""")
lds_spin(C_T, 1, sleep=8)
stamp(3)
poll_all(WS_KVTF, 8)
lds_add(C_U)
stamp(6)
srd(40, P_WO, 663552)
for n in range(9): wslice_off(16 + n, f"v_add_u32 v5, {64*n}, v1")
lds_spin(C_P, 8, sleep=16)
e(f"""s_mul_i32 s63, s5, 144
s_mov_b32 s60, 0
L_wo:""")
for n in range(9):
    e(f"s_add_u32 m0, s60, {1024*n}\ns_sleep {opt('wosleep', 1)}\nbuffer_load_dwordx4 v{16+n}, s[40:43], s63 offen lds")
e(f"""s_add_u32 s60, s60, 9216
s_add_u32 s63, s63, {64*1152}
s_cmp_lt_u32 s60, 82944
s_cbranch_scc1 L_wo
s_waitcnt vmcnt(0)""")
lds_add(C_WO)
stamp(7)
e("s_branch L_h_epi")

e("L_h_kv:")
XAD, WAD = 8, 14
e(f"""v_lshrrev_b32 v6, 2, v4
v_lshl_add_u32 v6, v5, 3, v6
v_mul_u32_u24 v6, 48, v6
v_and_b32 v7, 3, v4
v_lshlrev_b32 v7, 3, v7
s_cmp_eq_u32 s7, 1
s_cselect_b64 s[64:65], -1, 0
v_cndmask_b32 v7, v7, 32, s[64:65]
v_add_u32 v{WAD}, v6, v7
v_add_u32 v{WAD}, {LWKV}, v{WAD}
s_and_b32 s60, s5, 3
s_lshl_b32 s60, s60, 4
v_add_u32 v6, s60, v4
v_bfe_u32 v7, v6, 1, 3
v_mul_u32_u24 v3, 640, v6""")
for j in range(2):
    e(f"v_add_u32 v15, {4*j}, v5\nv_xor_b32 v15, v15, v7\nv_lshl_add_u32 v{XAD+j}, v15, 4, v3")
e("v_lshlrev_b32 v3, 9, v6")
for j in range(4):
    e(f"v_add_u32 v15, {4*j}, v5\nv_xor_b32 v15, v15, v4\nv_lshl_add_u32 v{XAD+2+j}, v15, 4, v3")
e(f"""s_lshl_b32 s60, s4, 1
s_bfe_u32 s61, s5, 0x10001
s_add_u32 s60, s60, s61
s_mul_i32 s60, s60, {TS}
s_add_u32 s66, s60, {WS_KV}
s_and_b32 s61, s5, 1
s_cmp_ge_u32 s5, 4
s_cbranch_scc1 L_h_av
s_lshl_b32 s60, s61, 4
v_add_u32 v6, s60, v4
v_lshlrev_b32 v7, 4, v6
v_lshl_add_u32 v16, v5, 3, v7
v_add_u32 v17, 4, v16
v_lshlrev_b32 v3, 2, v6
v_add_u32 v3, 1024, v3
v_add_u32 v15, 512, v7
v_cmp_eq_u32 vcc, 2, v5
v_cndmask_b32 v16, v16, v3, vcc
v_cndmask_b32 v17, v17, v15, vcc
v_add_u32 v3, 4, v15
v_add_u32 v6, 8, v15
v_cmp_eq_u32 vcc, 3, v5
v_cndmask_b32 v16, v16, v3, vcc
v_cndmask_b32 v17, v17, v6, vcc
v_add_u32 v15, 12, v15
v_cndmask_b32 v16, v16, v15, s[64:65]
s_branch L_h_adone
L_h_av:
s_mul_i32 s61, s61, 576
s_lshl_b32 s60, s7, 8
s_add_u32 s61, s61, s60
v_lshrrev_b32 v6, 1, v5
v_and_b32 v7, 1, v5
v_mul_u32_u24 v7, 288, v7
v_lshl_add_u32 v7, v6, 3, v7
v_lshl_add_u32 v7, v4, 4, v7
v_add_u32 v16, s61, v7
v_add_u32 v16, 1152, v16
v_lshlrev_b32 v6, 3, v6
v_add_u32 v17, 2304, v6
L_h_adone:
s_waitcnt vmcnt(0)""")
get_tag()
lds_add(C_W, also=C_A)
lds_spin(C_W, 4, sleep=0)
stamp(10)
WR, XF, DK, KD = 64, 96, 92, 5
def kvread(s):
    r = WR + 4*(s % KD); x = XF + 4*(s % KD)
    e(f"ds_read_b64_tr_b16 v[{r}:{r+1}], v{WAD} offset:{1536*s}\nds_read_b64_tr_b16 v[{r+2}:{r+3}], v{WAD} offset:{1536*s + 192}")
    if s < 10: e(f"ds_read_b128 v[{x}:{x+3}], v{XAD + (s & 1)} offset:{LXA + 128*(s >> 1)}")
    else: e(f"ds_read_b128 v[{x}:{x+3}], v{XAD + 2 + ((s-10) & 3)} offset:{LXB + 256*((s-10) >> 2)}")
def kvproj(kside):
    for s in range(KD): kvread(s)
    for s in range(18):
        left = min(KD - 1, 17 - s)
        f = WR + 4*(s % KD); x = XF + 4*(s % KD)
        e(f"s_waitcnt lgkmcnt({3*left})")
        a, b = (f, x) if kside else (x, f)
        e(f"v_mfma_f32_16x16x32_bf16 v[{DK}:{DK+3}], v[{a}:{a+3}], v[{b}:{b+3}], {'0' if s == 0 else f'v[{DK}:{DK+3}]'}")
        if s + KD < 18: kvread(s + KD)
e("s_cmp_ge_u32 s5, 4\ns_cbranch_scc1 L_h_vproj")
kvproj(True)
e(f"""v_cvt_pk_bf16_f32 v64, v{DK}, v{DK+1}
v_cvt_pk_bf16_f32 v65, v{DK+2}, v{DK+3}
v_mul_f32 v66, v{DK}, v{DK}
v_fmac_f32 v66, v{DK+1}, v{DK+1}
s_cmp_eq_u32 s7, 1
s_cbranch_scc1 L_h_stk2
buffer_store_dword v64, v16, s[36:39], s66 offen sc1
buffer_store_dword v65, v17, s[36:39], s66 offen sc1
v_fmac_f32 v66, v{DK+2}, v{DK+2}
v_fmac_f32 v66, v{DK+3}, v{DK+3}
v_mov_b32 v67, v66
v_permlane32_swap_b32 v66, v67
v_add_f32 v66, v66, v67
v_mov_b32 v67, v66
v_permlane16_swap_b32 v66, v67
v_add_f32 v66, v66, v67
v_mov_b32 v3, {L_MAXLO}
s_branch L_h_stmax
L_h_stk2:
s_mov_b64 exec, 0xffff
buffer_store_dword v64, v16, s[36:39], s66 offen sc1
s_mov_b64 exec, -1
v_mov_b32 v3, {L_MAXHI}
L_h_stmax:""")
for k in (8, 4, 2, 1): e(f"v_max_f32_dpp v66, v66, v66 row_ror:{k} row_mask:0xf bank_mask:0xf")
e("ds_write_b32 v3, v66\ns_branch L_h_std\nL_h_vproj:")
kvproj(False)
e(f"""v_cvt_pk_bf16_f32 v64, v{DK}, v{DK+1}
v_cvt_pk_bf16_f32 v65, v{DK+2}, v{DK+3}
s_cmp_eq_u32 s7, 0
s_cbranch_scc1 L_h_stv
v_mov_b32 v3, 0x3f803f80
v_cmp_eq_u32 vcc, 2, v4
v_cndmask_b32 v16, v16, v17, vcc
v_cndmask_b32 v64, v64, v3, vcc
v_cndmask_b32 v65, v65, v3, vcc
v_cmp_gt_u32 vcc, 3, v4
s_mov_b64 exec, vcc
L_h_stv:
buffer_store_dwordx2 v[64:65], v16, s[36:39], s66 offen sc1
s_mov_b64 exec, -1
L_h_std:""")
stamp(11)
lds_add(C_R)
e("s_waitcnt vmcnt(0)")
publish_kv()
stamp(12)
e("s_cmp_lg_u32 s7, 0\ns_cbranch_scc1 L_h_wait")
lds_spin(C_B if opt("pollc", 0) else C_A, 9 if opt("pollc", 0) else 12, sleep=2)
stamp(2)
poll_all(WS_KVF, opt("pollsleep", 6))
lds_add(C_F)
e("s_branch L_h_go\nL_h_wait:")
lds_spin(C_F, 1, sleep=2)
e("L_h_go:")
stamp(3)
NC0 = 20
e(f"""s_cmp_lg_u32 s7, 0
s_cbranch_scc1 L_h_nokc
v_max_f32 v9, v9, v11
v_max3_f32 v9, v9, v13, v15""")
for k in (8, 4, 2, 1):
    e(f"v_max_f32_dpp v9, v9, v9 row_ror:{k} row_mask:0xf bank_mask:0xf")
for sw in ("v_permlane16_swap_b32", "v_permlane32_swap_b32"):
    e(f"v_mov_b32 v13, v9\n{sw} v9, v13\nv_max_f32 v9, v9, v13")
e(f"""v_sqrt_f32 v9, v9
v_mov_b32 v10, 1.0
v_mov_b32 v3, {L_KC}
v_mul_f32 v9, {f32(1.02)}, v9
v_cvt_pk_bf16_f32 v10, v9, v10
v_mov_b32 v11, s6
ds_write_b64 v3, v[10:11]
s_cmp_lg_u32 s2, 0
s_cbranch_scc1 L_h_nokc
v_mov_b32 v3, 0
v_mov_b32 v6, s6
s_mov_b64 exec, 1
buffer_store_dword v6, v3, s[36:39], 0 offen sc1
s_mov_b64 exec, -1
L_h_nokc:""")
def kv_dma(lo, hi):
    l = L("kvdma")
    e(f"""s_lshl_b32 s60, s7, 10
s_add_u32 s60, s60, {lo}
{l}:
s_mov_b32 m0, s60
s_add_u32 s61, s60, {WS_KV}
s_add_u32 s60, s60, 2048
buffer_load_dwordx4 v4, s[36:39], s61 offen sc1 lds
s_cmp_lt_u32 s60, {hi}
s_cbranch_scc1 {l}""")
e("v_lshlrev_b32 v4, 4, v1")
lds_spin(C_Q1, 8, sleep=0)
stamp(4)
kv_dma(0, 2048*NC0)
lds_add(C_G)
e("s_waitcnt vmcnt(0)")
lds_add(C_K0)
stamp(5)
lds_spin(C_Q, 8, sleep=1)
kv_dma(2048*NC0, 64*TS)
e("s_waitcnt vmcnt(0)")
lds_add(C_K)
stamp(6)
e("s_cmp_lg_u32 s7, 0\ns_cbranch_scc1 L_h_epi")
srd(40, P_WO, 663552)
e(f"""v_lshlrev_b32 v4, 7, v1
s_lshr_b32 s60, s2, 3
s_mul_i32 s60, s60, {162*128}
buffer_load_dword v8, v4, s[40:43], s60 offen
s_add_u32 s60, s60, 8192
buffer_load_dword v9, v4, s[40:43], s60 offen
s_add_u32 s60, s60, 8192
s_mov_b32 exec_hi, 3
buffer_load_dword v10, v4, s[40:43], s60 offen
s_branch L_h_end""")
e("L_h_epi:\ns_sub_u32 s70, 3, s7\ns_lshl_b32 s70, s70, 6")
srd(40, P_BQ, 2359296)
srd(48, P_OUT, 4718592)
srd(52, P_WS, WS_SIZE)
e("s_cmp_ge_u32 s4, 16\ns_cselect_b32 s54, s54, 0")
lds_spin(C_U, 1, sleep=16)
e(f"""v_add_u32 v6, s70, v1
v_and_b32 v7, 7, v6
s_lshl_b32 s60, s4, 6
v_lshl_add_u32 v56, v7, 3, s60
v_lshrrev_b32 v6, 3, v6
s_mul_i32 s60, s5, 72
v_lshl_add_u32 v57, v6, 2, s60""")
EU, EY, EZ, EQ, ED = 64, 80, 96, 112, 24
e(f"""s_cmp_eq_u32 s7, 1
s_cselect_b64 s[66:67], 0xffff, -1
s_mov_b64 exec, s[66:67]
v_lshlrev_b32 v7, 1, v57
v_mul_u32_u24 v6, 1152, v56
v_add_u32 v6, v6, v7""")
for i in range(8):
    e(f"s_mov_b32 s60, {1152*i}\nbuffer_load_dwordx2 v[{EQ+2*i}:{EQ+2*i+1}], v6, s[40:43], s60 offen")
e(f"v_mul_u32_u24 v59, 2304, v56\nv_add_u32 v59, v59, v7")
e(f"""v_lshlrev_b32 v60, 1, v56
v_lshl_add_u32 v60, v57, 12, v60
s_mov_b64 exec, -1
""")
lds_spin(C_S, opt("sn", 4), sleep=8)
e(f"s_mov_b64 exec, s[66:67]\ns_mov_b32 s62, {SPIN}\nL_e_poll:")
for c in range(4):
    e(f"s_mov_b32 s60, {WS_Y + 4096*c}\nbuffer_load_dwordx4 v[{EY+4*c}:{EY+4*c+3}], v60, s[36:39], s60 offen sc1")
    e(f"s_mov_b32 s60, {WS_Y2 + 4096*c}\nbuffer_load_dwordx4 v[{EZ+4*c}:{EZ+4*c+3}], v60, s[52:55], s60 offen sc1")
e(f"s_waitcnt vmcnt(0)\nv_max_u32 v3, v{EY}, v{EY+1}")
for r in range(EY + 2, EY + 32, 2): e(f"v_max3_u32 v3, v3, v{r}, v{r+1}")
e(f"""v_cmp_eq_u32 vcc, -1, v3
s_sub_u32 s62, s62, 1
s_cbranch_scc1 L_e_go
s_cbranch_vccz L_e_go
s_sleep 16
s_branch L_e_poll
L_e_go:
s_setprio {opt("eprio", 0)}""")
stamp(8)
def gate(two):
    for i in range(8):
        for ee in range(2):
            half(38, EY + 8*ee + (i >> 1), i & 1); half(39, EY + 8*ee + 4 + (i >> 1), i & 1)
            if two:
                half(36, EZ + 8*ee + (i >> 1), i & 1); half(37, EZ + 8*ee + 4 + (i >> 1), i & 1)
                e("v_pk_add_f32 v[38:39], v[38:39], v[36:37]")
            half(36, EQ + 2*i + ee, 0); half(37, EQ + 2*i + ee, 1)
            e("v_pk_mul_f32 v[38:39], v[38:39], v[36:37]")
            e(f"v_cvt_pk_bf16_f32 v{40+2*i+ee}, v38, v39")
        e(f"s_mov_b32 s60, {2304*i + 1152}\nbuffer_store_dwordx2 v[{40+2*i}:{41+2*i}], v59, s[48:51], s60 offen")
e("s_cmp_lt_u32 s4, 16\ns_cbranch_scc1 L_e_one")
gate(True)
e("s_branch L_h_end\nL_e_one:")
gate(False)
e("L_h_end:")
stamp(9)
stamp_flush()
e("s_endpgm")

S0, S1, PP, OO, K1, K2, V0, V1, Q1, Q2 = 8, 24, 40, 48, 64, 68, 72, 76, 80, 84
AK1, AK2, AV0, AV1, QN = 86, 87, 88, 89, 90
FD = 8
YA, CA, CF, HS, SO, SH, SL, AH, AFV, YAD = 96, 112, 120, 152, 157, 158, 159, 160, 161, 162
e("L_att:")
e(f"""s_lshr_b32 s66, s3, 1
s_and_b32 s67, s5, 3
v_lshlrev_b32 v4, 7, v1
s_waitcnt lgkmcnt(0)""")
stamp(0)
srd(44, P_WQ, 663552)
e("s_barrier")
stamp(1)
e(f"""s_mov_b32 s70, 1
s_cmp_eq_u32 s66, s67
s_cbranch_scc1 L_pf3
s_sub_u32 s92, s3, 2
s_cmp_gt_u32 s66, s67
s_cselect_b32 s92, s92, s3
s_lshl_b32 s93, s4, 3
s_add_u32 s93, s93, s5
s_mul_i32 s93, s93, 9216
s_cmp_ge_u32 s92, 3
s_cselect_b32 s91, 3, 0
s_sub_u32 s91, s92, s91
s_cmp_eq_u32 s91, 0
s_cselect_b32 s48, s{P_X}, s{P_BK}
s_cselect_b32 s49, s{P_X+1}, s{P_BK+1}
s_cmp_eq_u32 s91, 2
s_cselect_b32 s48, s{P_BV}, s48
s_cselect_b32 s49, s{P_BV+1}, s49
s_mov_b32 s50, 2359296
s_mov_b32 s51, 0x00020000
s_cmp_ge_u32 s92, 3
s_cbranch_scc1 L_pf2
s_lshr_b32 s90, s2, 3
s_mul_i32 s90, s90, {162*128}
s_lshl_b32 s91, s92, 13
s_add_u32 s90, s90, s91
s_cmp_eq_u32 s92, 2
s_cselect_b32 exec_hi, 3, -1
buffer_load_dword v164, v4, s[44:47], s90 offen
s_mov_b64 exec, 0xff
s_add_u32 s93, s93, 8192
L_pf2:
{"" if opt("kvpf", 0) else "s_cmp_eq_u32 s48, s8"}
{"" if opt("kvpf", 0) else "s_cbranch_scc0 L_pf4"}
buffer_load_dword v165, v4, s[48:51], s93 offen
L_pf4:
s_mov_b64 exec, -1
""")
e(f"""s_branch L_nopf
L_pf3:
s_getpc_b64 s[90:91]
L_pc:
s_sub_u32 s90, s90, L_pc-{NAME}_kernel
s_subb_u32 s91, s91, 0
s_and_b32 s92, s3, 1
s_mul_i32 s92, s92, 24576
v_add_u32 v4, s92, v4
s_mov_b32 s70, 0""")
for k in range(3):
    e(f"v_min_u32 v5, L_end-{NAME}_kernel, v4\nglobal_load_dword v{164+(k&1)}, v5, s[90:91]\nv_add_u32 v4, 8192, v4")
e("L_nopf:")
DA = 120
M40 = magic(40, 320)
e("s_lshl_b32 s62, s3, 2\ns_lshl_b32 s64, s3, 3")
for n in range(5):
    e(f"""v_add_u32 v5, {64*n}, v1
v_mul_u32_u24 v6, {M40}, v5
v_lshrrev_b32 v6, 16, v6
v_mul_u32_u24 v7, 40, v6
v_sub_u32 v5, v5, v7
v_lshrrev_b32 v7, 1, v6
v_add_u32 v7, s62, v7
v_and_b32 v7, 7, v7
v_xor_b32 v5, v5, v7
v_mul_u32_u24 v6, 1152, v6
v_lshl_add_u32 v{DA+n}, v5, 4, v6""")
for m in range(6): wslice_off(DA + 9 + m, f"v_add_u32 v5, {512*m}, v0")
e(f"""s_lshl_b32 s60, s4, 6
s_add_u32 s60, s60, s64
s_mul_i32 s60, s60, 1152
s_add_u32 s65, s60, 640
s_mul_i32 s61, s3, 5120
s_lshl_b32 s62, s3, 10
s_mul_i32 s63, s5, 144
""")
srd(36, P_WS, WS_SIZE)
srd(40, P_X, 2359296)
def xa_dma(n): e(f"s_add_u32 m0, s61, {LXA + 1024*n}\nbuffer_load_dwordx4 v{DA+n}, s[40:43], s60 offen lds")
def xb_dma(n): e(f"s_add_u32 m0, s64, {LXB + 1024*n}\nbuffer_load_dwordx4 v{DA+5+n}, s[40:43], s65 offen lds")
def wa_dma(m): e(f"s_add_u32 m0, s62, {LW + 8192*m}\nbuffer_load_dwordx4 v{DA+9+m}, s[44:47], s63 offen lds")
e("s_cmp_eq_u32 s70, 0\ns_cbranch_scc1 L_a_wq")
for n in range(5): xa_dma(n)
e("L_a_wq:")
for m in range(5): wa_dma(m)
e("s_cmp_ge_u32 s3, 5\ns_cbranch_scc1 L_a_s5")
wa_dma(5)
e("L_a_s5:")
wslice_off(DA + 15, f"v_add_u32 v5, {45*64}, v0")
e(f"""s_add_u32 m0, s62, {LW + 45*1024}
s_lshl_b32 s92, s3, 3
buffer_load_dwordx4 v{DA+15}, s[44:47], s63 offen lds
s_cmp_eq_u32 s70, 0
s_cbranch_scc1 L_a_noxb
s_lshl_b32 s64, s3, 12""")
for n in range(4):
    e(f"""v_lshrrev_b32 v6, 5, v1
v_add_u32 v6, {2*n}, v6
v_add_u32 v7, s92, v6
v_and_b32 v7, 15, v7
v_and_b32 v5, 31, v1
v_xor_b32 v5, v5, v7
v_mul_u32_u24 v6, 1152, v6
v_lshl_add_u32 v{DA+5+n}, v5, 4, v6""")
    xb_dma(n)
e("L_a_noxb:")
if opt("spf", 0):
    e(f"""s_lshl_b32 s60, s4, 6
s_add_u32 s60, s60, s3
s_mul_i32 s60, s60, 1152
s_mul_i32 s61, s5, 144
s_add_u32 s60, s60, s61""")
    for r in range(8):
        e(f"""s_load_dword s97, s[{P_BK}:{P_BK+1}], s60
s_load_dword s97, s[{P_BV}:{P_BV+1}], s60
s_add_u32 s61, s60, 128
s_load_dword s97, s[{P_BK}:{P_BK+1}], s61
s_load_dword s97, s[{P_BV}:{P_BV+1}], s61
s_add_u32 s60, s60, 9216""")
AW0, AW1, AXA, AXB = 64, 65, 66, 70
e(f"""v_lshrrev_b32 v4, 5, v1
v_bfe_u32 v5, v1, 2, 2
v_lshl_add_u32 v5, v4, 3, v5
v_mul_u32_u24 v5, 144, v5
v_and_b32 v6, 1, v1
v_bfe_u32 v7, v1, 1, 1
v_bfe_u32 v3, v1, 4, 1
v_lshl_add_u32 v7, v3, 1, v7
s_lshr_b32 s60, s3, 1
s_and_b32 s61, s60, 1
s_mul_i32 s62, s60, 36
s_lshl_b32 s64, s61, 2
s_sub_u32 s62, s62, s64
s_add_u32 s62, s62, {LW}
s_lshl_b32 s64, s61, 3
s_add_u32 s64, s64, 16
v_mul_u32_u24 v6, s64, v6
v_lshl_add_u32 v6, v7, 3, v6
v_add3_u32 v{AW0}, v5, v6, s62
v_add_u32 v{AW1}, {18*2304}, v{AW0}
s_and_b32 s62, s3, 1
s_lshl_b32 s62, s62, 5
v_and_b32 v5, 31, v1
v_add_u32 v5, s62, v5
v_bfe_u32 v6, v5, 1, 3
v_mul_u32_u24 v3, 640, v5""")
for j in range(4):
    e(f"v_add_u32 v7, {2*j}, v4\nv_xor_b32 v7, v7, v6\nv_lshl_add_u32 v{AXA+j}, v7, 4, v3")
e("v_and_b32 v6, 15, v5\nv_lshlrev_b32 v3, 9, v5")
for j in range(8):
    e(f"v_add_u32 v7, {2*j}, v4\nv_xor_b32 v7, v7, v6\nv_lshl_add_u32 v{AXB+j}, v7, 4, v3")
e(f"""s_mov_b32 s64, 0
s_mov_b32 s65, -1
s_cmp_eq_u32 s61, 0
s_cselect_b32 s66, 0, -1
s_cselect_b32 s67, -1, 0
v_lshlrev_b32 v{AK1}, 4, v1
v_and_b32 v5, 31, v1
v_lshlrev_b32 v{AK2}, 2, v5
v_add_u32 v{AK2}, 1024, v{AK2}
v_mul_u32_u24 v6, 288, v4
v_lshl_add_u32 v6, v5, 4, v6
v_add_u32 v6, 1152, v6
v_add_u32 v7, 576, v6
v_and_b32 v3, 27, v5
v_cmp_eq_u32 vcc, 18, v3
v_mov_b32 v3, {LFAR}
v_mov_b32 v8, 2304
v_cndmask_b32 v3, v3, v8, vcc
v_cmp_gt_u32 vcc, 18, v5
v_cndmask_b32 v{AV0}, v3, v6, vcc
v_cndmask_b32 v{AV1}, v3, v7, vcc
v_mov_b32 v92, 1""")
for r in range(16): e(f"v_mov_b32 v{OO+r}, 0")
for r in range(16): e(f"v_mov_b32 v{YA+r}, 0")
e(f"""s_lshl_b32 s90, s3, 8
s_add_u32 s90, s90, s2
s_cmp_ge_u32 s90, 576
s_cselect_b32 s91, 1, 0
s_cmp_ge_u32 s90, 1152
s_cselect_b32 s91, 2, s91
s_mul_i32 s60, s91, 576
s_sub_u32 s92, s90, s60
s_min_u32 s92, s92, 575
s_cmp_lt_u32 s90, 1728
s_cselect_b32 s95, s3, 0
s_cselect_b32 s96, 0, s3
s_lshl_b32 s60, s92, 12""")
srd_off(40, P_H, "s60", 4096)
e(f"s_add_u32 s61, s60, {WS_U}")
srd_off(44, P_WS, "s61", 2048)
e(f"s_add_u32 s61, s61, 2048")
srd_off(52, P_WS, "s61", 2048)
e(f"""s_cmp_eq_u32 s91, 1
s_cselect_b32 s61, {WS_Y2-WS_Y}, 0
s_cselect_b32 s62, 2048, 0
s_sub_u32 s62, s62, 64
s_add_u32 s93, s60, s61
s_add_u32 s93, s93, {WS_Y}
s_cmp_eq_u32 s91, 0
s_cselect_b32 s61, 0, 2048
s_add_u32 s93, s93, s61
s_cmp_eq_u32 s91, 2
s_cselect_b32 s94, 0, 1024
s_mul_i32 s60, s3, 1088
s_add_u32 s60, s60, {LCONV}
v_lshlrev_b32 v{SO}, 4, v5
v_add_u32 v{SO}, s62, v{SO}
v_mov_b32 v3, 0x05040302
v_mov_b32 v6, 0x07060504
v_cndmask_b32 v{SH}, v3, v6, s[64:65]
v_lshlrev_b32 v3, 4, v5
v_mul_u32_u24 v6, 576, v4
v_add3_u32 v{SL}, v3, v6, s60
v_lshrrev_b32 v3, 1, v5
v_lshlrev_b32 v3, 2, v3
v_lshl_add_u32 v3, v4, 4, v3
v_and_b32 v6, 1, v5
v_mul_u32_u24 v6, 576, v6
v_add3_u32 v{AH}, v3, v6, s60
v_sub_u32 v3, 31, v5
v_lshlrev_b32 v3, 5, v3
v_lshl_add_u32 v{AFV}, v4, 4, v3
v_lshlrev_b32 v3, 6, v5
v_lshl_add_u32 v{YAD}, v4, 4, v3
s_lshl_b32 s60, s92, 1
v_mov_b32 v95, s60""")
srd(56, P_D, 1152)
e(f"""s_lshl_b32 s60, s4, 2
s_and_b32 s61, s3, 1
s_lshl_b32 s61, s61, 1
s_add_u32 s60, s60, s61
s_mul_i32 s60, s60, 18432
s_add_u32 s60, s60, {WS_O}
s_lshr_b32 s61, s3, 1
s_lshl_b32 s68, s5, 2
s_add_u32 s61, s61, s68
s_lshl_b32 s68, s61, 9
s_add_u32 s68, s68, s60
s_lshl_b32 s69, s5, 8
s_add_u32 s69, s69, s60
s_lshr_b32 s61, s3, 1
s_lshl_b32 s61, s61, 2
s_add_u32 s69, s69, s61
s_add_u32 s69, s69, 16384
v_bfe_u32 v5, v1, 4, 1
v_mul_u32_u24 v7, 18432, v5
v_and_b32 v5, 15, v1
v_lshl_add_u32 v167, v5, 4, v7
v_lshrrev_b32 v6, 5, v1
v_lshl_add_u32 v166, v6, 8, v167
""")
def hload():
    e(f"""v_add_u32 v163, 16, v{SO}
buffer_load_dwordx4 v[{HS}:{HS+3}], v{SO}, s[40:43], 0 offen
buffer_load_dword v{HS+4}, v163, s[40:43], 0 offen
v_add_u32 v{SO}, 448, v{SO}""")
def hperm():
    for i in range(4): e(f"v_perm_b32 v{HS+i}, v{HS+i+1}, v{HS+i}, v{SH}")
def hwrite(): e(f"ds_write_b128 v{SL}, v[{HS}:{HS+3}]")
def fload(s):
    if "--nof" in sys.argv: return
    r = CF + 4*(s % FD); sr = (44, 52)[s & 1]
    e(f"buffer_load_dwordx4 v[{r}:{r+3}], v{AFV}, s[{sr}:{sr+3}], s94 offen offset:{32*(s >> 1)} {'' if '--fplain' in sys.argv else 'sc1'}")
def aload(s):
    if "--noa" in sys.argv: return
    r = CA + 4*(s % 2); o = 8*(s % 14)
    e(f"ds_read2_b32 v[{r}:{r+1}], v{AH} offset0:{o} offset1:{o+1}")
    e(f"ds_read2_b32 v[{r+2}:{r+3}], v{AH} offset0:{o+2} offset1:{o+3}")
FA, FB = 24, 36
def qread(s):
    a = FA + 4*(s % 3); b = FB + 4*(s % 3)
    base = AW0 if s < 18 else AW1
    off = 2304 * (s % 18)
    e(f"ds_read_b64_tr_b16 v[{a}:{a+1}], v{base} offset:{off}\nds_read_b64_tr_b16 v[{a+2}:{a+3}], v{base} offset:{off+576}")
    if s < 20: e(f"ds_read_b128 v[{b}:{b+3}], v{AXA + (s & 3)} offset:{LXA + 128*(s >> 2)}")
    else: e(f"ds_read_b128 v[{b}:{b+3}], v{AXB + ((s-20) & 7)} offset:{LXB + 256*((s-20) >> 3)}")
def qsteps(lo, hi):
    qread(lo); qread(lo + 1)
    for s in range(lo, hi):
        if s + 2 < hi: qread(s + 2)
        left = min(2, hi - 1 - s)
        a = FA + 4*(s % 3); b = FB + 4*(s % 3)
        e(f"s_waitcnt lgkmcnt({3*left})")
        e(f"v_mfma_f32_32x32x16_bf16 v[{S0}:{S0+15}], v[{a}:{a+3}], v[{b}:{b+3}], {'0' if s == 0 else f'v[{S0}:{S0+15}]'}")
e("s_cmp_eq_u32 s70, 0\ns_cbranch_scc1 L_a_wa1\ns_waitcnt vmcnt(5)\ns_branch L_a_wa2\nL_a_wa1:\ns_waitcnt vmcnt(1)\nL_a_wa2:")
lds_add(C_A)
lds_spin(C_A, 12)
stamp(2)
e("s_setprio 3")
qsteps(0, 20)
lds_add(C_Q1)
e("s_waitcnt vmcnt(0)")
lds_add(C_B)
lds_spin(C_B, 9)
stamp(13)
hload()
e("buffer_load_ushort v94, v95, s[56:59], 0 offen")
qsteps(20, 36)
lds_add(C_Q)
CQ = 18 ** -0.5 * math.log2(math.e)
e(f"s_mov_b32 s60, {f32(CQ)}")
for r in range(4): e(f"v_mov_b32 v{PP+4+r}, 0")
for r in range(12): e(f"v_mul_f32 v{S0+r}, s60, v{S0+r}")
for i in range(6):
    e(f"v_cvt_pk_bf16_f32 v{24+i}, v{S0+2*i}, v{S0+2*i+1}")
    e(f"v_mul_f32 v{32+i}, v{S0+2*i}, v{S0+2*i}")
    e(f"v_fmac_f32 v{32+i}, v{S0+2*i+1}, v{S0+2*i+1}")
for i in range(4): e(f"v_cndmask_b32 v{Q1+i}, v{24+i}, v{25+i}, s[66:67]")
e(f"""v_cndmask_b32 v{Q2}, v28, v29, s[66:67]
v_cndmask_b32 v{Q2}, v{Q2}, 0, s[64:65]
v_cndmask_b32 v40, v32, v36, s[66:67]
v_cndmask_b32 v41, v36, v37, s[66:67]
v_cndmask_b32 v41, v41, 0, s[64:65]
v_add_f32 v40, v40, v41
v_add_f32 v40, v40, v33
v_add_f32 v40, v40, v34
v_add_f32 v40, v40, v35
v_mov_b32 v41, v40
v_permlane32_swap_b32 v40, v41
v_add_f32 v40, v40, v41
v_sqrt_f32 v{QN}, v40
v_mov_b32 v41, {f32(SHIFT)}
v_mov_b32 v7, {L_KC}
v_cvt_pk_bf16_f32 v{Q2+1}, -v{QN}, v41
v_cndmask_b32 v{Q2+1}, v{Q2+1}, 0, s[64:65]
v_mov_b32 v4, {f32(THR)}""")
stamp(3)
lds_spin(C_K0, 2, sleep=0)
stamp(5)
cstamp(14)
def mm_qk1(sn): e(f"v_mfma_f32_32x32x16_bf16 v[{sn}:{sn+15}], v[{K1}:{K1+3}], v[{Q1}:{Q1+3}], 0")
def mm_qk2(sn): e(f"v_mfma_f32_32x32x8_bf16 v[{sn}:{sn+15}], v[{K2}:{K2+1}], v[{Q2}:{Q2+1}], v[{sn}:{sn+15}]")
def mm_pv(v, p): e(f"v_mfma_f32_32x32x16_bf16 v[{OO}:{OO+15}], v[{v}:{v+3}], v[{p}:{p+3}], v[{OO}:{OO+15}]")
def rd_k1(t): e(f"ds_read_b128 v[{K1}:{K1+3}], v{AK1} offset:{TS*t}")
def rd_k2(t): e(f"ds_read_b32 v{K2}, v{AK2} offset:{TS*t}")
def rd_v0(t): e(f"ds_read_b128 v[{V0}:{V0+3}], v{AV0} offset:{TS*t}")
def rd_v1(t): e(f"ds_read_b128 v[{V1}:{V1+3}], v{AV1} offset:{TS*t}")
e(f"ds_read_b32 v{K2+1}, v7\nds_read_b32 v6, v7 offset:4")
rd_k1(0); rd_k2(0); rd_v1(0)
e(f"""s_waitcnt lgkmcnt(3)
v_readfirstlane_b32 s6, v6
v_lshlrev_b32 v5, 16, v{K2+1}
v_mul_f32 v5, v5, v{QN}
v_cmp_nle_f32 vcc, v5, v4
s_cbranch_vccnz L_truemax
L_pass:
s_waitcnt lgkmcnt(0)""")
mm_qk1(S0); mm_qk2(S0)
rd_k1(1); rd_v1(0); rd_k2(1); rd_v0(0)
e("s_mov_b32 s60, 0\ns_mov_b32 s71, 0\ns_setprio 0\ns_nop 7")
def prio(p):
    if "--noprio" in sys.argv: return
    l = L("pr")
    e(f"s_bitcmp1_b32 s95, 2\ns_cbranch_scc0 {l}\ns_setprio {p}\n{l}:")
def bump(n):
    for a in (AK1, AK2, AV0, AV1): e(f"v_add_u32 v{a}, {TS*n}, v{a}")
e(".p2align 6")
e("L_loop:")
for t in range(8):
    s = (S0, S1)[t & 1]; sn = (S0, S1)[(t + 1) & 1]
    ex = lambda i: e(f"v_exp_f32 v{s+i}, v{s+i}")
    cv = lambda i: e(f"v_cvt_pk_bf16_f32 v{PP+i}, v{s+2*i}, v{s+2*i+1}")
    if t == 0: e("s_bitcmp1_b32 s3, 2\ns_cbranch_scc0 L_pr0\ns_setprio 1\nL_pr0:")
    if t == opt("plu", 5): e("s_bitcmp1_b32 s96, 2\ns_cbranch_scc0 L_pr1\ns_setprio 0\nL_pr1:")
    if t == PLO: prio(0)
    e("s_waitcnt lgkmcnt(2)")
    mm_qk1(sn); rd_k1(t + 2)
    ex(0); ex(1); ex(2); ex(3); cv(0)
    mm_pv(V1, PP + 4); rd_v1(t)
    ex(4); ex(5); cv(1); ex(6); ex(7); cv(2)
    e("s_waitcnt lgkmcnt(2)")
    mm_qk2(sn); rd_k2(t + 2)
    ex(8); cv(3); ex(9); ex(10); ex(11); cv(4)
    mm_pv(V0, PP); rd_v0(t + 1)
    ex(12); ex(13); cv(5); ex(14); ex(15); cv(6); cv(7)
bump(8)
e(f"""s_add_u32 s60, s60, 1
s_cmp_eq_u32 s60, 1
s_cbranch_scc1 L_loop
s_cmp_lg_u32 s60, 8
s_cbranch_scc1 L_edge
L_fini:
s_waitcnt lgkmcnt(0)""")
mm_pv(V1, PP + 4)
e("s_setprio 0")
stamp(6)
cstamp(15)
e(f"v_rcp_f32 v4, v{OO+10}")
for r in range(10): e(f"v_mul_f32 v{OO+r}, v{OO+r}, v4")
for i in range(5): e(f"v_cvt_pk_bf16_f32 v{8+i}, v{OO+2*i}, v{OO+2*i+1}")
for i in range(5): e(f"v_min_u32 v{8+i}, -2, v{8+i}")
e(f"""buffer_store_dwordx4 v[8:11], v166, s[36:39], s68 offen sc1
s_mov_b32 exec_hi, 0
buffer_store_dword v12, v167, s[36:39], s69 offen sc1
s_mov_b32 exec_hi, -1""")
OA, TA, TB = 28, 30, 31
e(f"""s_and_b32 s60, s3, 3
s_lshr_b32 s61, s3, 2
s_lshl_b32 s62, s4, 2
s_add_u32 s62, s62, s60
s_mul_i32 s62, s62, 18432
s_mul_i32 s64, s61, 9216
s_add_u32 s62, s62, s64
s_add_u32 s64, s62, {WS_O}
s_add_u32 s65, s64, 4096
s_add_u32 s70, s64, 8192
v_lshlrev_b32 v{OA}, 4, v1
v_and_b32 v4, 15, v1
v_lshrrev_b32 v5, 4, v1
s_cmp_eq_u32 s61, 0
s_cselect_b64 s[66:67], 0, -1""")
OF, DD, WF = 40, 76, 96
def oload(i):
    r = OF + 4*i
    e(f"buffer_load_dwordx4 v[{r}:{r+3}], v{OA}, s[36:39], s{(64, 65, 70)[i >> 2]} offen offset:{1024*(i & 3)} sc1")
if opt("oearly", 0):
    for i in range(9): oload(i)
lds_add(C_L, va=13, vb=14)
e(f"""s_lshl_b32 s60, s60, 4
v_add_u32 v36, s60, v4
v_mul_u32_u24 v36, 336, v36
v_lshl_add_u32 v36, v5, 4, v36
s_mul_i32 s60, s61, {64*336}
s_add_u32 s60, s60, {LEX}
v_add_u32 v36, s60, v36
v_lshrrev_b32 v6, 2, v4
v_and_b32 v4, 3, v4
v_lshrrev_b32 v7, 1, v5
v_mul_u32_u24 v7, 18, v7
v_and_b32 v3, 1, v5
v_lshl_add_u32 v7, v3, 2, v7
v_add_u32 v7, v7, v6
v_mul_u32_u24 v7, 144, v7
v_lshl_add_u32 v7, v4, 3, v7
s_mul_i32 s60, s61, {9*5184}
v_add_u32 v{TA}, s60, v7
v_lshrrev_b32 v3, 1, v6
v_lshl_add_u32 v3, v5, 2, v3
v_mul_u32_u24 v3, 18, v3
v_and_b32 v6, 1, v6
v_add3_u32 v3, v3, v6, 16
v_mul_u32_u24 v3, 144, v3
v_lshl_add_u32 v3, v4, 3, v3""")
for j, (d0, d1) in enumerate([(7*5184, 0), (7*5184+1152, 5184), (8*5184, 41472), (8*5184+1152, 41472+5184)]):
    e(f"v_add_u32 v6, {d0}, v{TA}\nv_add_u32 v7, {d1}, v3\nv_cndmask_b32 v{TB+j}, v6, v7, s[66:67]")
lds_spin(C_WO, 1, sleep=1)
NW = 18
def wread(u):
    i, ct = divmod(u, 5)
    r = WF + 4*(u % NW)
    if i < 7:
        e(f"ds_read_b64_tr_b16 v[{r}:{r+1}], v{TA} offset:{5184*i + 32*ct}")
        e(f"ds_read_b64_tr_b16 v[{r+2}:{r+3}], v{TA} offset:{5184*i + 32*ct + 1152}")
    else:
        e(f"ds_read_b64_tr_b16 v[{r}:{r+1}], v{TB + 2*(i-7)} offset:{32*ct}")
        e(f"ds_read_b64_tr_b16 v[{r+2}:{r+3}], v{TB + 2*(i-7) + 1} offset:{32*ct}")
AHEAD = 15
for u in range(AHEAD): wread(u)
srd(48, P_OUT, 4718592)
def fin_addr(cexpr, vl, vg):
    e(f"""{cexpr}
v_mul_u32_u24 v6, {M9}, v5
v_lshrrev_b32 v6, 16, v6
v_mul_u32_u24 v7, 9, v6
v_sub_u32 v5, v5, v7
v_mul_u32_u24 v7, 336, v6
v_lshl_add_u32 v{vl}, v5, 5, v7
v_add_u32 v{vl}, {LEX}, v{vl}
v_mul_u32_u24 v7, 2304, v6
v_lshl_add_u32 v{vg}, v5, 4, v7""")
fin_addr("v_mov_b32 v5, v0", 37, 38)
fin_addr("v_add_u32 v5, 512, v0", 35, 39)
e(f"""s_mul_i32 s63, s5, 144
s_mul_i32 s60, s4, {64*2304}
s_add_u32 s63, s63, s60""")
if not opt("oearly", 0):
    lds_spin(C_L, 8, sleep=1)
    for i in range(9): oload(i)
e(f"s_mov_b32 s62, {SPIN}")
stamp(7)
def stale(k, lab, br):
    o = OF + 4*k
    e(f"""v_max3_u32 v3, v{o}, v{o+1}, v{o+2}
v_max_u32 v3, v3, v{o+3}
v_cmp_eq_u32 vcc, -1, v3
{br} {lab}""")
retry = []
for i in range(9):
    o = OF + 4*i
    lo, rt = L("ochk"), L("ort")
    e(f"s_waitcnt vmcnt({8-i})\n{lo}:")
    stale(i, rt, "s_cbranch_vccnz")
    retry.append((i, lo, rt))
    nxt = [u for u in range(5*i + AHEAD, 5*i + AHEAD + 5) if u < 45]
    e(f"s_waitcnt lgkmcnt({min(15, 2*min(10, 45 - 5*i - 5))})")
    for ct in range(5):
        u = 5*i + ct
        r = WF + 4*(u % NW); d = DD + 4*ct
        e(f"v_mfma_f32_16x16x32_bf16 v[{d}:{d+3}], v[{r}:{r+3}], v[{o}:{o+3}], {'0' if i == 0 else f'v[{d}:{d+3}]'}")
        if ct < len(nxt): wread(nxt[ct])
stamp(8)
lds_spin(C_L, 8, sleep=0)
for ct in range(5):
    e(f"ds_write_b128 v36, v[{DD+4*ct}:{DD+4*ct+3}] offset:{64*ct}")
lds_add(C_X)
lds_spin(C_X, 8, sleep=0)
def fin(vl, vg):
    e(f"""ds_read_b128 v[8:11], v{vl}
ds_read_b128 v[16:19], v{vl} offset:{64*336}
ds_read_b128 v[12:15], v{vl} offset:16
ds_read_b128 v[20:23], v{vl} offset:{64*336+16}
s_waitcnt lgkmcnt(2)
v_pk_add_f32 v[8:9], v[8:9], v[16:17]
v_pk_add_f32 v[10:11], v[10:11], v[18:19]
s_waitcnt lgkmcnt(0)
v_pk_add_f32 v[12:13], v[12:13], v[20:21]
v_pk_add_f32 v[14:15], v[14:15], v[22:23]
v_cvt_pk_bf16_f32 v24, v8, v9
v_cvt_pk_bf16_f32 v25, v10, v11
v_cvt_pk_bf16_f32 v26, v12, v13
v_cvt_pk_bf16_f32 v27, v14, v15
buffer_store_dwordx4 v[24:27], v{vg}, s[48:51], s63 offen""")
fin(37, 38)
e("s_cmp_lg_u32 s3, 0\ns_cbranch_scc1 L_t_fin\ns_nop 1")
fin(35, 39)
e("L_t_fin:")
stamp(9)
stamp_flush()
e("s_endpgm")
for i, lo, rt in retry:
    e(f"{rt}:\ns_waitcnt vmcnt(0)\ns_sleep {opt('osleep', 2)}")
    oload(i)
    for k in range(i + 1, 9):
        sk = L("osk")
        stale(k, sk, "s_cbranch_vccz")
        oload(k)
        e(f"{sk}:")
    e("s_sub_u32 s62, s62, 1\ns_waitcnt vmcnt(0)")
    e(f"s_cbranch_scc0 {lo}\ns_endpgm")

def release():
    e(f"v_mov_b32 v91, {C_P}\ns_mov_b64 exec, 1\nds_add_u32 v91, v92\ns_mov_b64 exec, -1")
e(f"""L_edge:
s_cmp_eq_u32 s60, 2
s_cbranch_scc1 L_chk
s_cmp_eq_u32 s60, 5
s_cbranch_scc0 L_loop""")
release()
e("s_waitcnt lgkmcnt(0)\ns_branch L_loop\nL_chk:")
cstamp(4)
e(f"v_mov_b32 v91, {C_T}\ns_mov_b64 exec, 1\nds_add_u32 v91, v92\ns_mov_b64 exec, -1")
lds_spin(C_K, 2, va=91, vb=93)
cstamp(10)
e("s_cmp_lt_u32 s90, 1728\ns_cbranch_scc0 L_loop")
class Ctr:
    def __init__(self, init): self.q = list(init)
    def issue(self, tag, n=1): self.q += [tag] * n
    def need(self, *tags):
        last = max((i for i, t in enumerate(self.q) if t in tags), default=-1)
        n = len(self.q) - 1 - last
        self.q = self.q[last + 1:]
        return n if last >= 0 else None
lg = Ctr(["k1_1", "v1_-1", "k2_1", "v0_0"])
vm = Ctr([f"f{k}" for k in range(FD)] + ["h1", "h1"])
def wait(ltags=(), vtags=()):
    a = lg.need(*ltags) if ltags else None
    b = vm.need(*vtags) if vtags else None
    t = []
    if b is not None: t.append(f"vmcnt({min(b, 63)})")
    if a is not None: t.append(f"lgkmcnt({min(a, 15)})")
    if t: e("s_waitcnt " + " ".join(t))
e("L_conv:")
def plain_tile(t, tl):
    s = (S0, S1)[t & 1]; sn = (S0, S1)[(t + 1) & 1]
    ex = lambda i: e(f"v_exp_f32 v{s+i}, v{s+i}")
    cv = lambda i: e(f"v_cvt_pk_bf16_f32 v{PP+i}, v{s+2*i}, v{s+2*i+1}")
    wait([f"k1_{t+1}", f"v1_{t-1}"])
    mm_qk1(sn); rd_k1(tl + 2); lg.issue(f"k1_{t+2}")
    ex(0); ex(1); ex(2); ex(3); cv(0)
    mm_pv(V1, PP + 4); rd_v1(tl); lg.issue(f"v1_{t}")
    ex(4); ex(5); cv(1); ex(6); ex(7); cv(2)
    wait([f"k2_{t+1}", f"v0_{t}"])
    mm_qk2(sn); rd_k2(tl + 2); lg.issue(f"k2_{t+2}")
    ex(8); cv(3); ex(9); ex(10); ex(11); cv(4)
    mm_pv(V0, PP); rd_v0(tl + 1); lg.issue(f"v0_{t+1}")
    ex(12); ex(13); cv(5); ex(14); ex(15); cv(6); cv(7)
def conv_tile(t, tl, k0):
    s = (S0, S1)[t & 1]; sn = (S0, S1)[(t + 1) & 1]
    ex = lambda i: e(f"v_exp_f32 v{s+i}, v{s+i}")
    cv = lambda i: e(f"v_cvt_pk_bf16_f32 v{PP+i}, v{s+2*i}, v{s+2*i+1}")
    def cstep(k):
        a = CA + 4*(k % 2); f = CF + 4*(k % FD)
        newwin = (k + 2) % 14 == 0 and k + 2 < 64
        wait([f"a{k}"], [f"f{k}"] + ([f"h{(k+2)//14}"] if newwin else []))
        e(f"v_mfma_f32_32x32x16_bf16 v[{YA}:{YA+15}], v[{a}:{a+3}], v[{f}:{f+3}], v[{YA}:{YA+15}]")
        if newwin:
            hperm(); hwrite(); lg.issue("w")
        if k + 2 < 64: aload(k + 2); lg.issue(f"a{k+2}", 2)
        if k + FD < 64: fload(k + FD); vm.issue(f"f{k+FD}")
        if newwin and k + 16 < 64: hload(); vm.issue(f"h{(k+2)//14+1}", 2)
    wait([f"k1_{t+1}", f"v1_{t-1}"])
    mm_qk1(sn); rd_k1(tl + 2); lg.issue(f"k1_{t+2}")
    ex(0); ex(1); ex(2)
    mm_pv(V1, PP + 4); rd_v1(tl); lg.issue(f"v1_{t}")
    ex(3); cv(0); ex(4); cv(1); ex(5)
    cstep(k0)
    ex(6); ex(7); cv(2); ex(8)
    wait([f"k2_{t+1}", f"v0_{t}"])
    mm_qk2(sn); rd_k2(tl + 2); lg.issue(f"k2_{t+2}")
    cv(3); ex(9); ex(10); ex(11)
    mm_pv(V0, PP); rd_v0(tl + 1); lg.issue(f"v0_{t+1}")
    cv(4); ex(12); ex(13); cv(5)
    cstep(k0 + 1)
    ex(14); ex(15); cv(6); cv(7)
for t in range(48):
    if t in (16, 32): bump(16)
    if t == 24:
        release(); lg.issue("rel")
    if t == opt("st", 44):
        e(f"v_mov_b32 v91, {C_S}\ns_mov_b64 exec, 1\nds_add_u32 v91, v92\ns_mov_b64 exec, -1"); lg.issue("sig")
    tl = t % 16
    isconv = CS <= t < CS + 32
    if t % 8 == 0: prio(1)
    if t % 8 == (PLC if isconv else PLO): prio(0)
    if t == max(CS - 3, 0):
        lds_spin(C_U, 1, va=91, vb=93); lg.q = []
        cstamp(12)
        e("s_waitcnt vmcnt(0)")
        e(f"""v_lshlrev_b32 v94, 16, v94
v_lshlrev_b32 v91, 16, v{HS+4}
v_add_f32 v91, v91, v94
s_mov_b32 s61, 0xffff
v_cvt_pk_bf16_f32 v91, v91, v91
s_cmp_eq_u32 s91, 1
s_cselect_b32 exec_lo, 0, 8
s_cselect_b32 exec_hi, 0, 8
v_bfi_b32 v{HS+4}, s61, v91, v{HS+4}
s_mov_b64 exec, -1""")
        hperm()
        hwrite(); aload(0); aload(1); lg.issue("w"); lg.issue("a0", 2); lg.issue("a1", 2)
        for k in range(FD): fload(k)
        hload()
    if isconv: conv_tile(t, tl, 2*(t - CS))
    else: plain_tile(t, tl)
    if t == CS + 32:
        for k in range(2):
            r = CF + 4*k
            for j in range(4): e(f"v_cvt_pk_bf16_f32 v{r+j}, v{YA+8*k+2*j}, v{YA+8*k+2*j+1}")
            for j in range(4): e(f"v_min_u32 v{r+j}, -2, v{r+j}")
            e(f"v_permlane32_swap_b32 v{r}, v{r+2}\nv_permlane32_swap_b32 v{r+1}, v{r+3}")
            e(f"buffer_store_dwordx4 v[{r}:{r+3}], v{YAD}, s[36:39], s93 offen offset:{32*k} sc1")
        cstamp(11)
e("s_branch L_fini")
e("L_truemax:")
lds_spin(C_K, 2)
e(f"""v_mov_b32 v{Q2+1}, 0
v_mov_b32 v5, 0xff800000
s_mov_b32 s60, 64
L_fb:""")
rd_k1(0); rd_k2(0)
e("s_waitcnt lgkmcnt(0)")
mm_qk1(S0); mm_qk2(S0)
e(f"v_add_u32 v{AK1}, {TS}, v{AK1}\nv_add_u32 v{AK2}, {TS}, v{AK2}")
for i in range(8): e(f"v_max3_f32 v5, v5, v{S0+2*i}, v{S0+2*i+1}")
e(f"""s_sub_u32 s60, s60, 1
s_cmp_lg_u32 s60, 0
s_cbranch_scc1 L_fb
v_subrev_u32 v{AK1}, {TS*64}, v{AK1}
v_subrev_u32 v{AK2}, {TS*64}, v{AK2}
v_mov_b32 v6, v5
v_permlane32_swap_b32 v5, v6
v_max_f32 v5, v5, v6
v_sub_f32 v5, 0, v5
v_cvt_pk_bf16_f32 v6, v5, v5
v_and_b32 v7, 0xffff0000, v6
v_sub_f32 v5, v5, v7
v_cvt_pk_bf16_f32 v7, v5, v5
v_and_b32 v3, 0xffff0000, v7
v_sub_f32 v5, v5, v3
v_cvt_pk_bf16_f32 v5, v5, 0
v_and_b32 v6, 0xffff, v6
v_or_b32 v6, v6, v3
v_cndmask_b32 v{Q2+1}, v6, v5, s[64:65]
v_mov_b32 v{K2+1}, 0x3f803f80""")
rd_k1(0); rd_k2(0)
e("s_branch L_pass\nL_end:\ns_endpgm")

ref = open(f"cdna_kernels/{NAME}.s.ref").read().split("\n")
head = [l for l in ref if l.startswith(";") and "@launch" not in l and not l.startswith("; Override") and not l.startswith("; grid=")]
txt = "\n".join(head) + f"""
; @launch grid=(256,1,1) block=(768,1,1) lds={LDS_BYTES}
.amdgcn_target "amdgcn-amd-amdhsa--gfx950"
.text
.globl {NAME}_kernel
.p2align 8
.type {NAME}_kernel,@function
{NAME}_kernel:
""" + e.text() + f""".section .rodata,"a"
.p2align 6
.amdhsa_kernel {NAME}_kernel
  .amdhsa_next_free_vgpr 168
  .amdhsa_next_free_sgpr 102
  .amdhsa_accum_offset 168
  .amdhsa_group_segment_fixed_size 0
  .amdhsa_kernarg_size 112
  .amdhsa_user_sgpr_count 2
  .amdhsa_user_sgpr_kernarg_segment_ptr 1
  .amdhsa_system_sgpr_workgroup_id_x 1
.end_amdhsa_kernel
"""
open(OUT, "w").write(txt)
print("wrote", OUT, len(txt), "bytes;", e.nops, "nops inserted")
```

```python
import sys, struct, math
sys.path.insert(0, "gen")
from emit import Emitter

NAME = "concat_heads__grouped_kv_mqa__ssm_conv_h3__prompt"
STAMPS = "--stamps" in sys.argv
def opt(name, default):
    for a in sys.argv:
        if a.startswith(f"--{name}="): return int(a.split("=")[1])
    return default
OUT = [a for a in sys.argv[1:] if not a.startswith("--")]
OUT = OUT[0] if OUT else f"cdna_kernels/{NAME}.s"
PSW = opt("psw", 44)
P1C = opt("p1c", 0)
PLC = opt("plc", 5)
CS = opt("cs", 6)
PLO = opt("plo", 6)

def f32(x): return struct.unpack("<I", struct.pack("<f", x))[0]
def magic(d, n):
    m = -(-65536 // d)
    assert all((c * m) >> 16 == c // d for c in range(n)), (d, n)
    return m

WS_G, WS_KVF, WS_KVTF, WS_YF = 0, 0x40000, 0x50000, 0x60000
WS_KV, WS_U, WS_Y, WS_O, WS_ST, WS_Y2 = 0x10000, 0x100000, 0x400000, 0x700000, 0xA00000, 0xB00000
WS_SIZE = 0x1000000
TAGC = 0x9E3779B9
TS = 2320
LXA, LXB, LW = 0, 40960, 73728
NDEF = 53
LWKV = LW + NDEF * 1024
LCONV = 64 * TS
LMISC = LCONV + 8 * 1088
(C_W, C_R, C_KV, C_KVT, C_A, C_B, C_K, C_P, L_MAXLO, L_MAXHI, L_KC, L_TAG, C_F, C_Y, C_YW, C_Q,
 C_K0, C_U, C_WO, C_L, C_X, C_T, C_Q1, C_G, C_S) = [LMISC + 4 * i for i in range(25)]
LDS_BYTES = 163840
LFAR = 0x40000
LEX = 90112
SPIN = opt("spin", 0x200000)
SHIFT, THR = 60.0, 45.0

e = Emitter()
uid = [0]
def L(p):
    uid[0] += 1
    return f"L_{p}{uid[0]}"
def stamp(i):
    if STAMPS: e(f"s_memrealtime s[98:99]\ns_waitcnt lgkmcnt(0)\ns_mov_b32 s{72+i}, s98")
def cstamp(i):
    if STAMPS: e(f"s_memtime s[98:99]\ns_waitcnt lgkmcnt(0)\ns_mov_b32 s{72+i}, s98")
def stamp_flush():
    if not STAMPS: return
    if "--dbg" in sys.argv:
        e("s_mov_b32 s40, s32\ns_mov_b32 s41, s33\ns_mov_b32 s42, 256\ns_mov_b32 s43, 0x00020000\ns_mov_b64 exec, 1\nv_mov_b32 v3, 0")
        e("s_not_b32 s60, s72\nv_mov_b32 v4, s60\nbuffer_atomic_umax v4, v3, s[40:43], 0 offen sc1")
        e("s_cmp_ge_u32 s3, 8\ns_cselect_b32 s61, 32, 0")
        for k, i in enumerate((1, 2, 13, 3, 5, 6, 9)):
            e(f"v_mov_b32 v4, s{72+i}\nbuffer_atomic_umax v4, v3, s[40:43], s61 offen offset:{4+4*k} sc1")
        return
    e(f"""s_mul_i32 s60, s2, 12
s_add_u32 s60, s60, s3
s_lshl_b32 s60, s60, 6
s_add_u32 s60, s60, {WS_ST}
s_mov_b64 exec, -1
v_mov_b32 v3, 0""")
    for i in range(16):
        e(f"v_mov_b32 v4, s{72+i}\nbuffer_store_dword v4, v3, s[36:39], s60 offen offset:{4*i}")
def srd(n, plo, nbytes):
    e(f"s_mov_b32 s{n}, s{plo}\ns_mov_b32 s{n+1}, s{plo+1}\ns_mov_b32 s{n+2}, {nbytes}\ns_mov_b32 s{n+3}, 0x00020000")
def srd_off(n, plo, soff, nbytes):
    e(f"s_add_u32 s{n}, s{plo}, {soff}\ns_addc_u32 s{n+1}, s{plo+1}, 0\ns_mov_b32 s{n+2}, {nbytes}\ns_mov_b32 s{n+3}, 0x00020000")
def lds_add(addr, va=3, vb=6, rtn=None, also=None):
    e(f"v_mov_b32 v{va}, {addr}\nv_mov_b32 v{vb}, 1\ns_mov_b64 exec, 1")
    if also is not None: e(f"ds_add_u32 v{va}, v{vb} offset:{also - addr}")
    if rtn is None:
        e(f"ds_add_u32 v{va}, v{vb}\ns_mov_b64 exec, -1")
    else:
        e(f"ds_add_rtn_u32 v{vb}, v{va}, v{vb}\ns_waitcnt lgkmcnt(0)\nv_readfirstlane_b32 s{rtn}, v{vb}\ns_mov_b64 exec, -1")
TMO = "--tmo" in sys.argv
def tmo_mark(what):
    if not TMO: return
    print("timeout id", uid[0], what)
    e(f"""s_mov_b64 s[100:101], exec
s_mov_b64 exec, 1
v_mov_b32 v2, {uid[0]}
s_mul_i32 s88, s2, 12
s_add_u32 s88, s88, s3
s_lshl_b32 s88, s88, 2
s_add_u32 s88, s88, {WS_ST + 0x80000}
v_mov_b32 v0, 0
buffer_store_dword v2, v0, s[36:39], s88 offen
s_mov_b64 exec, s[100:101]""")
def lds_spin(addr, n, va=3, vb=6, sleep=1):
    l = L("spin"); d = L("spun")
    e(f"""v_mov_b32 v{va}, {addr}
s_mov_b32 s89, {SPIN}
{l}:
ds_read_b32 v{vb}, v{va}
s_waitcnt lgkmcnt(0)
v_readfirstlane_b32 s88, v{vb}
s_cmp_ge_u32 s88, {n}
s_cbranch_scc1 {d}
s_sleep {sleep}
s_sub_u32 s89, s89, 1
s_cbranch_scc0 {l}""")
    tmo_mark(f"lds {(addr - LMISC) // 4} >= {n}")
    e(f"{d}:")
def poll_all(base, sleep):
    l, d = L("poll"), L("polled")
    e(f"v_lshlrev_b32 v3, 5, v1\ns_mov_b32 s60, {base}\ns_mov_b32 s61, {base + 4096}\ns_mov_b32 s62, {SPIN}\n{l}:")
    for i in range(4):
        e(f"buffer_load_dwordx2 v[{8+2*i}:{9+2*i}], v3, s[36:39], s{60 + (i >> 1)} offen offset:{2048*(i & 1)} sc1")
    e(f"""s_waitcnt vmcnt(0)
v_cmp_ne_u32 vcc, s6, v8
v_cmp_ne_u32 s[64:65], s6, v10
s_or_b64 vcc, vcc, s[64:65]
v_cmp_ne_u32 s[64:65], s6, v12
s_or_b64 vcc, vcc, s[64:65]
v_cmp_ne_u32 s[64:65], s6, v14
s_or_b64 vcc, vcc, s[64:65]
s_sub_u32 s62, s62, 1
s_cbranch_scc1 {d}
s_cbranch_vccz {d}
s_sleep {sleep}
s_branch {l}
{d}:""")
P_X, P_WQ, P_WK, P_WV, P_WO, P_BQ, P_BK, P_BV, P_SK, P_H, P_D, P_OUT, P_DBG, P_WS = range(8, 36, 2)
M9 = magic(9, 5632)
def wslice_off(dst, cexpr):
    e(f"""{cexpr}
v_mul_u32_u24 v6, {M9}, v5
v_lshrrev_b32 v6, 16, v6
v_mul_u32_u24 v7, 1008, v6
v_lshl_add_u32 v{dst}, v5, 4, v7""")
def get_tag():
    e(f"v_readfirstlane_b32 s6, v2\ns_add_u32 s6, s6, {TAGC}")
def half(dst, src, hi):
    if hi: e(f"v_and_b32 v{dst}, 0xffff0000, v{src}")
    else: e(f"v_lshlrev_b32 v{dst}, 16, v{src}")

e(f"""s_cmp_ge_u32 s2, 256
s_cbranch_scc1 L_end
s_load_dwordx16 s[8:23], s[0:1], 0
s_load_dwordx8 s[24:31], s[0:1], 64
s_load_dwordx4 s[32:35], s[0:1], 96
v_and_b32 v1, 63, v0
v_lshrrev_b32 v2, 6, v0
v_mov_b32 v3, 0
v_readfirstlane_b32 s3, v2
s_and_b32 s4, s2, 31
s_lshr_b32 s5, s2, 5""")
if STAMPS:
    for i in range(16): e(f"s_mov_b32 s{72+i}, 0")
e("s_cmp_lt_u32 s3, 8\ns_cbranch_scc1 L_att")

M3 = magic(3, 1792)
e(f"""s_sub_u32 s7, s3, 8
s_setprio 2
v_subrev_u32 v5, 512, v0""")
for m in range(7):
    e(f"""v_mul_u32_u24 v6, {M3}, v5
v_lshrrev_b32 v6, 16, v6
v_mul_u32_u24 v6, 12, v6
v_lshlrev_b32 v7, 4, v5
v_sub_u32 v{16+m}, v7, v6""")
    if m < 6: e("v_add_u32 v5, 256, v5")
e(f"""v_lshlrev_b32 v4, 4, v1
s_and_b32 s61, s5, 3
s_lshl_b32 s61, s61, 2
s_add_u32 s61, s61, s7
s_lshl_b32 s61, s61, 2
s_lshl_b32 s60, s4, 6
s_add_u32 s60, s60, s61
s_mul_i32 s60, s60, 1152
s_lshl_b32 s62, s7, 5
v_xor_b32 v24, s62, v4
s_add_u32 s62, s62, 16
v_xor_b32 v25, s62, v4
v_lshrrev_b32 v6, 5, v1
s_lshl_b32 s62, s7, 2
v_add_u32 v7, s62, v6
v_and_b32 v5, 31, v1
v_xor_b32 v26, v5, v7
v_xor_b32 v27, 2, v26
v_mul_u32_u24 v6, 1152, v6
v_lshl_add_u32 v26, v26, 4, v6
v_lshl_add_u32 v27, v27, 4, v6
s_lshl_b32 s63, s7, 10
s_waitcnt lgkmcnt(0)""")
stamp(0)
e(f"""s_cmp_lt_u32 s5, 4
s_cselect_b32 s48, s{P_WK}, s{P_WV}
s_cselect_b32 s49, s{P_WK+1}, s{P_WV+1}
s_mov_b32 s50, 20736
s_mov_b32 s51, 0x00020000""")
srd(40, P_X, 2359296)
for m in range(7):
    e(f"s_add_u32 m0, s63, {LWKV + 4096*m}\nbuffer_load_dwordx4 v{16+m}, s[48:51], 0 offen lds")
e(f"s_mul_i32 s62, s61, 640\ns_mov_b32 exec_hi, 0xff")
for i in range(4):
    e(f"s_add_u32 m0, s62, {LXA + 640*i}\ns_add_u32 s64, s60, {1152*i}\nbuffer_load_dwordx4 v{24 + (i >> 1)}, s[40:43], s64 offen lds")
e(f"s_mov_b32 exec_hi, -1\ns_lshl_b32 s62, s61, 9")
for p in range(2):
    e(f"s_add_u32 m0, s62, {LXB + 1024*p}\ns_add_u32 s64, s60, {2304*p + 640}\nbuffer_load_dwordx4 v{26+p}, s[40:43], s64 offen lds")
srd(36, P_WS, WS_SIZE)
e(f"""buffer_load_dword v2, v3, s[36:39], 0 offen sc1
v_and_b32 v4, 15, v1
v_lshrrev_b32 v5, 4, v1
s_cmp_ge_u32 s7, 2
s_cbranch_scc1 L_h_sent
s_cmp_lg_u32 s7, 0
s_cbranch_scc1 L_h_b0
v_lshlrev_b32 v7, 2, v1
v_add_u32 v7, {LMISC}, v7
ds_write_b32 v7, v3
s_waitcnt lgkmcnt(0)
s_branch L_h_b0
L_h_sent:""")
e(f"""s_lshl_b32 s60, s4, 2
s_lshl_b32 s61, s7, 1
s_add_u32 s60, s60, s61
s_sub_u32 s60, s60, 4
s_mul_i32 s60, s60, 18432
s_lshl_b32 s61, s5, 11
s_add_u32 s60, s60, s61
s_add_u32 s60, s60, {WS_O}
v_lshlrev_b32 v6, 4, v1
v_mov_b32 v8, -1
v_mov_b32 v9, -1
v_mov_b32 v10, -1
v_mov_b32 v11, -1
buffer_store_dwordx4 v[8:11], v6, s[36:39], s60 offen sc1
buffer_store_dwordx4 v[8:11], v6, s[36:39], s60 offen offset:1024 sc1
s_add_u32 s60, s60, 18432
buffer_store_dwordx4 v[8:11], v6, s[36:39], s60 offen sc1
buffer_store_dwordx4 v[8:11], v6, s[36:39], s60 offen offset:1024 sc1
s_mul_i32 s60, s4, {4*18432}
s_lshl_b32 s61, s5, 8
s_add_u32 s60, s60, s61
s_add_u32 s60, s60, {WS_O + 16*1024}
v_mul_u32_u24 v6, 18432, v5
v_lshl_add_u32 v6, v4, 4, v6
buffer_store_dwordx4 v[8:11], v6, s[36:39], s60 offen sc1""")
M18 = magic(18, 192)
def task_regs(stask, vt0, vd):
    e(f"""v_add_u32 v6, {stask}, v1
v_mul_u32_u24 v7, {M18}, v6
v_lshrrev_b32 v7, 16, v7
s_lshl_b32 s60, s4, 6
v_lshl_add_u32 v{vt0}, v7, 3, s60
v_mul_u32_u24 v7, 18, v7
v_sub_u32 v6, v6, v7
s_mul_i32 s60, s5, 72
v_lshl_add_u32 v{vd}, v6, 2, s60""")
def p1_regs(slot):
    return (8, 30, 48, 56, 57) if slot == 0 else (120, 142, 160, 58, 59)
def p1_loads(stask, slot=0):
    PK, PV_, PS, T0, DD_ = p1_regs(slot)
    task_regs(stask, T0, DD_)
    e(f"v_mul_u32_u24 v6, 1152, v{T0}\nv_lshl_add_u32 v6, v{DD_}, 1, v6")
    for i in range(3):
        e(f"v_subrev_u32 v7, {1152*(3-i)}, v6\nbuffer_load_dwordx2 v[{PK+2*i}:{PK+2*i+1}], v7, s[44:47], 0 offen")
    for i in range(8):
        e(f"s_mov_b32 s60, {1152*i}\nbuffer_load_dwordx2 v[{PK+6+2*i}:{PK+7+2*i}], v6, s[44:47], s60 offen\nbuffer_load_dwordx2 v[{PV_+2*i}:{PV_+2*i+1}], v6, s[52:55], s60 offen")
    e(f"v_lshlrev_b32 v7, 3, v{DD_}\nbuffer_load_dwordx4 v[{PS}:{PS+3}], v7, s[56:59], 0 offen\nbuffer_load_dwordx4 v[{PS+4}:{PS+7}], v7, s[56:59], 0 offen offset:16")
UK, UW, UA = 64, 88, 96
def u_addr(vt0, vd, dst):
    e(f"""v_sub_u32 v7, 2040, v{vt0}
v_lshrrev_b32 v{dst}, 5, v7
v_lshlrev_b32 v{dst}, 5, v{dst}
v_bfe_u32 v3, v7, 4, 1
v_lshl_add_u32 v{dst}, v3, 11, v{dst}
v_bfe_u32 v3, v7, 3, 1
v_lshl_add_u32 v{dst}, v3, 4, v{dst}
v_lshl_add_u32 v{dst}, v{vd}, 12, v{dst}""")
def p1_compute(slot=0):
    if "--nop1c" in sys.argv: return
    PK, PV_, PS, T0, DD_ = p1_regs(slot)
    u_addr(T0, DD_, 6)
    pr = lambda x: f"v[{x}:{x+1}]"
    for ee in range(2):
        for i in range(11):
            half(UK + 2*i, PK + 2*i + ee, 0); half(UK + 2*i + 1, PK + 2*i + ee, 1)
        for j in range(4):
            for c in range(2):
                half(UW + 2*j + c, PS + 4*ee + 2*c + (j >> 1), j & 1)
        for i in range(8):
            a = UA + 2*i
            e(f"v_pk_mul_f32 {pr(a)}, {pr(UK+2*i)}, {pr(UW+6)}")
            for j in (2, 1, 0):
                e(f"v_pk_fma_f32 {pr(a)}, {pr(UK+2*(i+3-j))}, {pr(UW+2*j)}, {pr(a)}")
            half(112, PV_ + 2*i + ee, 0); half(113, PV_ + 2*i + ee, 1)
            e(f"v_pk_mul_f32 {pr(a)}, {pr(a)}, v[112:113]")
        for c in range(2):
            r = (60, 116)[c]
            for m in range(4):
                e(f"v_cvt_pk_bf16_f32 v{r+m}, v{UA+2*(7-2*m)+c}, v{UA+2*(6-2*m)+c}")
            e(f"s_mov_b32 s60, {WS_U + 4096*(2*ee+c)}\nbuffer_store_dwordx4 v[{r}:{r+3}], v6, s[36:39], s60 offen sc1")
def p1_issue():
    srd(44, P_BK, 2359296)
    srd(52, P_BV, 2359296)
    srd(56, P_SK, 4608)
    l = L("p1a")
    e("s_sub_u32 s63, 3, s7\ns_lshl_b32 s63, s63, 6")
    p1_loads("s63")
    e(f"s_cmp_lg_u32 s7, 3\ns_cbranch_scc1 {l}\ns_mov_b64 exec, 0xffff")
    p1_loads("0x80", 1)
    e(f"s_mov_b64 exec, -1\n{l}:")
if P1C == 2: p1_issue()
e("L_h_b0:\ns_barrier")
def publish_kv():
    nl = L("nl")
    lds_add(C_KV, rtn=60)
    e(f"""s_cmp_lg_u32 s60, 3
s_cbranch_scc1 {nl}
v_mov_b32 v3, {L_MAXLO}
ds_read_b64 v[6:7], v3
s_lshl_b32 s60, s2, 5
s_add_u32 s60, s60, {WS_KVF}
v_mov_b32 v3, 0
s_waitcnt lgkmcnt(0)
v_add_f32 v7, v6, v7
v_mov_b32 v6, s6
s_mov_b64 exec, 1
buffer_store_dwordx2 v[6:7], v3, s[36:39], s60 offen sc1
s_mov_b64 exec, -1
{nl}:""")

def publish_u():
    nl = L("nl")
    lds_add(C_KVT, rtn=60)
    e(f"""s_cmp_lg_u32 s60, 1
s_cbranch_scc1 {nl}
v_mov_b32 v6, s6
s_lshl_b32 s60, s2, 5
s_add_u32 s60, s60, {WS_KVTF}
v_mov_b32 v3, 0
s_mov_b64 exec, 1
buffer_store_dword v6, v3, s[36:39], s60 offen sc1
s_mov_b64 exec, -1
{nl}:""")
e("s_cmp_lt_u32 s7, 2\ns_cbranch_scc1 L_h_kv")
if P1C == 2: e("s_cmp_eq_u32 s7, 3\ns_cbranch_scc1 L_h_w3\ns_waitcnt vmcnt(26)\ns_branch L_h_w4\nL_h_w3:\ns_waitcnt vmcnt(47)\nL_h_w4:")
else: e("s_waitcnt vmcnt(5)")
lds_add(C_W, also=C_A)
if P1C == 2: e("s_cmp_eq_u32 s7, 3\ns_cbranch_scc1 L_h_w5\ns_waitcnt vmcnt(21)\ns_branch L_h_w6\nL_h_w5:\ns_waitcnt vmcnt(42)\nL_h_w6:")
else: e("s_waitcnt vmcnt(0)")
get_tag()
publish_kv()
stamp(1)
e("s_cmp_eq_u32 s7, 3\ns_cbranch_scc1 L_h_p1")
srd(40, P_WQ, 663552)
for n in range(NDEF, 81): wslice_off(120 + n - NDEF, f"v_add_u32 v5, {64*n}, v1")
e("s_mul_i32 s63, s5, 144")
lds_spin(C_R, 2)
e("s_setprio 0")
for n in range(NDEF, 81):
    e(f"s_mov_b32 m0, {LW + 1024*n}\nbuffer_load_dwordx4 v{120 + n - NDEF}, s[40:43], s63 offen lds")
e("s_setprio 2")
if P1C == 2:
    e("s_waitcnt vmcnt(28)")
    p1_compute()
    e("s_waitcnt vmcnt(4)")
    lds_add(C_B)
    e("s_branch L_h_p1b")
else:
    e("s_waitcnt vmcnt(0)")
    lds_add(C_B)
e("L_h_p1:")
if P1C != 2:
    if P1C == 3: lds_spin(C_G, 2, sleep=2)
    else: lds_spin(C_B if P1C else C_A, 9 if P1C else 12, sleep=2)
    stamp(2)
    p1_issue()
e(f"""v_lshlrev_b32 v6, 4, v1
s_and_b32 s60, s7, 1
s_lshl_b32 s60, s60, 10
v_add_u32 v6, s60, v6
v_mov_b32 v60, -1
v_mov_b32 v61, -1
v_mov_b32 v62, -1
v_mov_b32 v63, -1
s_mov_b32 s63, s2
L_h_ym:
s_cmp_ge_u32 s63, 576
s_cselect_b32 s61, {WS_Y2 + 2048 - 576*4096}, {0}
s_cmp_ge_u32 s63, 1152
s_cselect_b32 s61, {WS_Y + 2048 - 1152*4096}, s61
s_cmp_lt_u32 s63, 576
s_cselect_b32 s61, {WS_Y}, s61
s_lshl_b32 s60, s63, 12
s_add_u32 s60, s60, s61
s_add_u32 s63, s63, 256
buffer_store_dwordx4 v[60:63], v6, s[36:39], s60 offen sc1
s_cmp_lt_u32 s63, 1728
s_cbranch_scc1 L_h_ym""")
e("s_waitcnt vmcnt(6)")
stamp(10)
p1_compute()
e("s_cmp_lg_u32 s7, 3\ns_cbranch_scc1 L_h_p1b\ns_mov_b64 exec, 0xffff")
p1_compute(1)
e("s_mov_b64 exec, -1\nL_h_p1b:\ns_waitcnt vmcnt(0)")
stamp(11)
publish_u()
e(f"""s_cmp_lg_u32 s7, 3
s_cbranch_scc1 L_h_epi""")
lds_spin(C_T, 1, sleep=8)
stamp(3)
poll_all(WS_KVTF, 8)
lds_add(C_U)
stamp(6)
srd(40, P_WO, 663552)
for n in range(9): wslice_off(16 + n, f"v_add_u32 v5, {64*n}, v1")
lds_spin(C_P, 8, sleep=16)
e(f"""s_mul_i32 s63, s5, 144
s_mov_b32 s60, 0
L_wo:""")
for n in range(9):
    e(f"s_add_u32 m0, s60, {1024*n}\ns_sleep {opt('wosleep', 1)}\nbuffer_load_dwordx4 v{16+n}, s[40:43], s63 offen lds")
e(f"""s_add_u32 s60, s60, 9216
s_add_u32 s63, s63, {64*1152}
s_cmp_lt_u32 s60, 82944
s_cbranch_scc1 L_wo
s_waitcnt vmcnt(0)""")
lds_add(C_WO)
stamp(7)
e("s_branch L_h_epi")

e("L_h_kv:")
XAD, WAD = 8, 14
e(f"""v_lshrrev_b32 v6, 2, v4
v_lshl_add_u32 v6, v5, 3, v6
v_mul_u32_u24 v6, 48, v6
v_and_b32 v7, 3, v4
v_lshlrev_b32 v7, 3, v7
s_cmp_eq_u32 s7, 1
s_cselect_b64 s[64:65], -1, 0
v_cndmask_b32 v7, v7, 32, s[64:65]
v_add_u32 v{WAD}, v6, v7
v_add_u32 v{WAD}, {LWKV}, v{WAD}
s_and_b32 s60, s5, 3
s_lshl_b32 s60, s60, 4
v_add_u32 v6, s60, v4
v_bfe_u32 v7, v6, 1, 3
v_mul_u32_u24 v3, 640, v6""")
for j in range(2):
    e(f"v_add_u32 v15, {4*j}, v5\nv_xor_b32 v15, v15, v7\nv_lshl_add_u32 v{XAD+j}, v15, 4, v3")
e("v_lshlrev_b32 v3, 9, v6")
for j in range(4):
    e(f"v_add_u32 v15, {4*j}, v5\nv_xor_b32 v15, v15, v4\nv_lshl_add_u32 v{XAD+2+j}, v15, 4, v3")
e(f"""s_lshl_b32 s60, s4, 1
s_bfe_u32 s61, s5, 0x10001
s_add_u32 s60, s60, s61
s_mul_i32 s60, s60, {TS}
s_add_u32 s66, s60, {WS_KV}
s_and_b32 s61, s5, 1
s_cmp_ge_u32 s5, 4
s_cbranch_scc1 L_h_av
s_lshl_b32 s60, s61, 4
v_add_u32 v6, s60, v4
v_lshlrev_b32 v7, 4, v6
v_lshl_add_u32 v16, v5, 3, v7
v_add_u32 v17, 4, v16
v_lshlrev_b32 v3, 2, v6
v_add_u32 v3, 1024, v3
v_add_u32 v15, 512, v7
v_cmp_eq_u32 vcc, 2, v5
v_cndmask_b32 v16, v16, v3, vcc
v_cndmask_b32 v17, v17, v15, vcc
v_add_u32 v3, 4, v15
v_add_u32 v6, 8, v15
v_cmp_eq_u32 vcc, 3, v5
v_cndmask_b32 v16, v16, v3, vcc
v_cndmask_b32 v17, v17, v6, vcc
v_add_u32 v15, 12, v15
v_cndmask_b32 v16, v16, v15, s[64:65]
s_branch L_h_adone
L_h_av:
s_mul_i32 s61, s61, 576
s_lshl_b32 s60, s7, 8
s_add_u32 s61, s61, s60
v_lshrrev_b32 v6, 1, v5
v_and_b32 v7, 1, v5
v_mul_u32_u24 v7, 288, v7
v_lshl_add_u32 v7, v6, 3, v7
v_lshl_add_u32 v7, v4, 4, v7
v_add_u32 v16, s61, v7
v_add_u32 v16, 1152, v16
v_lshlrev_b32 v6, 3, v6
v_add_u32 v17, 2304, v6
L_h_adone:
s_waitcnt vmcnt(0)""")
get_tag()
lds_add(C_W, also=C_A)
lds_spin(C_W, 4, sleep=0)
stamp(10)
WR, XF, DK, KD = 64, 96, 92, 5
def kvread(s):
    r = WR + 4*(s % KD); x = XF + 4*(s % KD)
    e(f"ds_read_b64_tr_b16 v[{r}:{r+1}], v{WAD} offset:{1536*s}\nds_read_b64_tr_b16 v[{r+2}:{r+3}], v{WAD} offset:{1536*s + 192}")
    if s < 10: e(f"ds_read_b128 v[{x}:{x+3}], v{XAD + (s & 1)} offset:{LXA + 128*(s >> 1)}")
    else: e(f"ds_read_b128 v[{x}:{x+3}], v{XAD + 2 + ((s-10) & 3)} offset:{LXB + 256*((s-10) >> 2)}")
def kvproj(kside):
    for s in range(KD): kvread(s)
    for s in range(18):
        left = min(KD - 1, 17 - s)
        f = WR + 4*(s % KD); x = XF + 4*(s % KD)
        e(f"s_waitcnt lgkmcnt({3*left})")
        a, b = (f, x) if kside else (x, f)
        e(f"v_mfma_f32_16x16x32_bf16 v[{DK}:{DK+3}], v[{a}:{a+3}], v[{b}:{b+3}], {'0' if s == 0 else f'v[{DK}:{DK+3}]'}")
        if s + KD < 18: kvread(s + KD)
e("s_cmp_ge_u32 s5, 4\ns_cbranch_scc1 L_h_vproj")
kvproj(True)
e(f"""v_cvt_pk_bf16_f32 v64, v{DK}, v{DK+1}
v_cvt_pk_bf16_f32 v65, v{DK+2}, v{DK+3}
v_mul_f32 v66, v{DK}, v{DK}
v_fmac_f32 v66, v{DK+1}, v{DK+1}
s_cmp_eq_u32 s7, 1
s_cbranch_scc1 L_h_stk2
buffer_store_dword v64, v16, s[36:39], s66 offen sc1
buffer_store_dword v65, v17, s[36:39], s66 offen sc1
v_fmac_f32 v66, v{DK+2}, v{DK+2}
v_fmac_f32 v66, v{DK+3}, v{DK+3}
v_mov_b32 v67, v66
v_permlane32_swap_b32 v66, v67
v_add_f32 v66, v66, v67
v_mov_b32 v67, v66
v_permlane16_swap_b32 v66, v67
v_add_f32 v66, v66, v67
v_mov_b32 v3, {L_MAXLO}
s_branch L_h_stmax
L_h_stk2:
s_mov_b64 exec, 0xffff
buffer_store_dword v64, v16, s[36:39], s66 offen sc1
s_mov_b64 exec, -1
v_mov_b32 v3, {L_MAXHI}
L_h_stmax:""")
for k in (8, 4, 2, 1): e(f"v_max_f32_dpp v66, v66, v66 row_ror:{k} row_mask:0xf bank_mask:0xf")
e("ds_write_b32 v3, v66\ns_branch L_h_std\nL_h_vproj:")
kvproj(False)
e(f"""v_cvt_pk_bf16_f32 v64, v{DK}, v{DK+1}
v_cvt_pk_bf16_f32 v65, v{DK+2}, v{DK+3}
s_cmp_eq_u32 s7, 0
s_cbranch_scc1 L_h_stv
v_mov_b32 v3, 0x3f803f80
v_cmp_eq_u32 vcc, 2, v4
v_cndmask_b32 v16, v16, v17, vcc
v_cndmask_b32 v64, v64, v3, vcc
v_cndmask_b32 v65, v65, v3, vcc
v_cmp_gt_u32 vcc, 3, v4
s_mov_b64 exec, vcc
L_h_stv:
buffer_store_dwordx2 v[64:65], v16, s[36:39], s66 offen sc1
s_mov_b64 exec, -1
L_h_std:""")
stamp(11)
lds_add(C_R)
e("s_waitcnt vmcnt(0)")
publish_kv()
stamp(12)
e("s_cmp_lg_u32 s7, 0\ns_cbranch_scc1 L_h_wait")
lds_spin(C_B if opt("pollc", 0) else C_A, 9 if opt("pollc", 0) else 12, sleep=2)
stamp(2)
poll_all(WS_KVF, opt("pollsleep", 6))
lds_add(C_F)
e("s_branch L_h_go\nL_h_wait:")
lds_spin(C_F, 1, sleep=2)
e("L_h_go:")
stamp(3)
NC0 = 20
e(f"""s_cmp_lg_u32 s7, 0
s_cbranch_scc1 L_h_nokc
v_max_f32 v9, v9, v11
v_max3_f32 v9, v9, v13, v15""")
for k in (8, 4, 2, 1):
    e(f"v_max_f32_dpp v9, v9, v9 row_ror:{k} row_mask:0xf bank_mask:0xf")
for sw in ("v_permlane16_swap_b32", "v_permlane32_swap_b32"):
    e(f"v_mov_b32 v13, v9\n{sw} v9, v13\nv_max_f32 v9, v9, v13")
e(f"""v_sqrt_f32 v9, v9
v_mov_b32 v10, 1.0
v_mov_b32 v3, {L_KC}
v_mul_f32 v9, {f32(1.02)}, v9
v_cvt_pk_bf16_f32 v10, v9, v10
v_mov_b32 v11, s6
ds_write_b64 v3, v[10:11]
s_cmp_lg_u32 s2, 0
s_cbranch_scc1 L_h_nokc
v_mov_b32 v3, 0
v_mov_b32 v6, s6
s_mov_b64 exec, 1
buffer_store_dword v6, v3, s[36:39], 0 offen sc1
s_mov_b64 exec, -1
L_h_nokc:""")
def kv_dma(lo, hi):
    l = L("kvdma")
    e(f"""s_lshl_b32 s60, s7, 10
s_add_u32 s60, s60, {lo}
{l}:
s_mov_b32 m0, s60
s_add_u32 s61, s60, {WS_KV}
s_add_u32 s60, s60, 2048
buffer_load_dwordx4 v4, s[36:39], s61 offen sc1 lds
s_cmp_lt_u32 s60, {hi}
s_cbranch_scc1 {l}""")
e("v_lshlrev_b32 v4, 4, v1")
lds_spin(C_Q1, 8, sleep=0)
stamp(4)
kv_dma(0, 2048*NC0)
lds_add(C_G)
e("s_waitcnt vmcnt(0)")
lds_add(C_K0)
stamp(5)
lds_spin(C_Q, 8, sleep=1)
kv_dma(2048*NC0, 64*TS)
e("s_waitcnt vmcnt(0)")
lds_add(C_K)
stamp(6)
e("s_cmp_lg_u32 s7, 0\ns_cbranch_scc1 L_h_epi")
srd(40, P_WO, 663552)
e(f"""v_lshlrev_b32 v4, 7, v1
s_lshr_b32 s60, s2, 3
s_mul_i32 s60, s60, {162*128}
buffer_load_dword v8, v4, s[40:43], s60 offen
s_add_u32 s60, s60, 8192
buffer_load_dword v9, v4, s[40:43], s60 offen
s_add_u32 s60, s60, 8192
s_mov_b32 exec_hi, 3
buffer_load_dword v10, v4, s[40:43], s60 offen
s_branch L_h_end""")
e("L_h_epi:\ns_sub_u32 s70, 3, s7\ns_lshl_b32 s70, s70, 6")
srd(40, P_BQ, 2359296)
srd(48, P_OUT, 4718592)
srd(52, P_WS, WS_SIZE)
e("s_cmp_ge_u32 s4, 16\ns_cselect_b32 s54, s54, 0")
lds_spin(C_U, 1, sleep=16)
e(f"""v_add_u32 v6, s70, v1
v_and_b32 v7, 7, v6
s_lshl_b32 s60, s4, 6
v_lshl_add_u32 v56, v7, 3, s60
v_lshrrev_b32 v6, 3, v6
s_mul_i32 s60, s5, 72
v_lshl_add_u32 v57, v6, 2, s60""")
EU, EY, EZ, EQ, ED = 64, 80, 96, 112, 24
e(f"""s_cmp_eq_u32 s7, 1
s_cselect_b64 s[66:67], 0xffff, -1
s_mov_b64 exec, s[66:67]
v_lshlrev_b32 v7, 1, v57
v_mul_u32_u24 v6, 1152, v56
v_add_u32 v6, v6, v7""")
for i in range(8):
    e(f"s_mov_b32 s60, {1152*i}\nbuffer_load_dwordx2 v[{EQ+2*i}:{EQ+2*i+1}], v6, s[40:43], s60 offen")
e(f"v_mul_u32_u24 v59, 2304, v56\nv_add_u32 v59, v59, v7")
e(f"""v_lshlrev_b32 v60, 1, v56
v_lshl_add_u32 v60, v57, 12, v60
s_mov_b64 exec, -1
""")
lds_spin(C_S, opt("sn", 4), sleep=8)
e(f"s_mov_b64 exec, s[66:67]\ns_mov_b32 s62, {SPIN}\nL_e_poll:")
for c in range(4):
    e(f"s_mov_b32 s60, {WS_Y + 4096*c}\nbuffer_load_dwordx4 v[{EY+4*c}:{EY+4*c+3}], v60, s[36:39], s60 offen sc1")
    e(f"s_mov_b32 s60, {WS_Y2 + 4096*c}\nbuffer_load_dwordx4 v[{EZ+4*c}:{EZ+4*c+3}], v60, s[52:55], s60 offen sc1")
e(f"s_waitcnt vmcnt(0)\nv_max_u32 v3, v{EY}, v{EY+1}")
for r in range(EY + 2, EY + 32, 2): e(f"v_max3_u32 v3, v3, v{r}, v{r+1}")
e(f"""v_cmp_eq_u32 vcc, -1, v3
s_sub_u32 s62, s62, 1
s_cbranch_scc1 L_e_go
s_cbranch_vccz L_e_go
s_sleep 16
s_branch L_e_poll
L_e_go:
s_setprio {opt("eprio", 0)}""")
stamp(8)
def gate(two):
    for i in range(8):
        for ee in range(2):
            half(38, EY + 8*ee + (i >> 1), i & 1); half(39, EY + 8*ee + 4 + (i >> 1), i & 1)
            if two:
                half(36, EZ + 8*ee + (i >> 1), i & 1); half(37, EZ + 8*ee + 4 + (i >> 1), i & 1)
                e("v_pk_add_f32 v[38:39], v[38:39], v[36:37]")
            half(36, EQ + 2*i + ee, 0); half(37, EQ + 2*i + ee, 1)
            e("v_pk_mul_f32 v[38:39], v[38:39], v[36:37]")
            e(f"v_cvt_pk_bf16_f32 v{40+2*i+ee}, v38, v39")
        e(f"s_mov_b32 s60, {2304*i + 1152}\nbuffer_store_dwordx2 v[{40+2*i}:{41+2*i}], v59, s[48:51], s60 offen")
e("s_cmp_lt_u32 s4, 16\ns_cbranch_scc1 L_e_one")
gate(True)
e("s_branch L_h_end\nL_e_one:")
gate(False)
e("L_h_end:")
stamp(9)
stamp_flush()
e("s_endpgm")

S0, S1, PP, OO, K1, K2, V0, V1, Q1, Q2 = 8, 24, 40, 48, 64, 68, 72, 76, 80, 84
AK1, AK2, AV0, AV1, QN = 86, 87, 88, 89, 90
FD = 8
YA, CA, CF, HS, SO, SH, SL, AH, AFV, YAD = 96, 112, 120, 152, 157, 158, 159, 160, 161, 162
e("L_att:")
e(f"""s_lshr_b32 s66, s3, 1
s_and_b32 s67, s5, 3
v_lshlrev_b32 v4, 7, v1
s_waitcnt lgkmcnt(0)""")
stamp(0)
srd(44, P_WQ, 663552)
e("s_barrier")
stamp(1)
e(f"""s_mov_b32 s70, 1
s_cmp_eq_u32 s66, s67
s_cbranch_scc1 L_pf3
s_sub_u32 s92, s3, 2
s_cmp_gt_u32 s66, s67
s_cselect_b32 s92, s92, s3
s_lshl_b32 s93, s4, 3
s_add_u32 s93, s93, s5
s_mul_i32 s93, s93, 9216
s_cmp_ge_u32 s92, 3
s_cselect_b32 s91, 3, 0
s_sub_u32 s91, s92, s91
s_cmp_eq_u32 s91, 0
s_cselect_b32 s48, s{P_X}, s{P_BK}
s_cselect_b32 s49, s{P_X+1}, s{P_BK+1}
s_cmp_eq_u32 s91, 2
s_cselect_b32 s48, s{P_BV}, s48
s_cselect_b32 s49, s{P_BV+1}, s49
s_mov_b32 s50, 2359296
s_mov_b32 s51, 0x00020000
s_cmp_ge_u32 s92, 3
s_cbranch_scc1 L_pf2
s_lshr_b32 s90, s2, 3
s_mul_i32 s90, s90, {162*128}
s_lshl_b32 s91, s92, 13
s_add_u32 s90, s90, s91
s_cmp_eq_u32 s92, 2
s_cselect_b32 exec_hi, 3, -1
buffer_load_dword v164, v4, s[44:47], s90 offen
s_mov_b64 exec, 0xff
s_add_u32 s93, s93, 8192
L_pf2:
{"" if opt("kvpf", 0) else "s_cmp_eq_u32 s48, s8"}
{"" if opt("kvpf", 0) else "s_cbranch_scc0 L_pf4"}
buffer_load_dword v165, v4, s[48:51], s93 offen
L_pf4:
s_mov_b64 exec, -1
""")
e(f"""s_branch L_nopf
L_pf3:
s_getpc_b64 s[90:91]
L_pc:
s_sub_u32 s90, s90, L_pc-{NAME}_kernel
s_subb_u32 s91, s91, 0
s_and_b32 s92, s3, 1
s_mul_i32 s92, s92, 24576
v_add_u32 v4, s92, v4
s_mov_b32 s70, 0""")
for k in range(3):
    e(f"v_min_u32 v5, L_end-{NAME}_kernel, v4\nglobal_load_dword v{164+(k&1)}, v5, s[90:91]\nv_add_u32 v4, 8192, v4")
e("L_nopf:")
DA = 120
M40 = magic(40, 320)
e("s_lshl_b32 s62, s3, 2\ns_lshl_b32 s64, s3, 3")
for n in range(5):
    e(f"""v_add_u32 v5, {64*n}, v1
v_mul_u32_u24 v6, {M40}, v5
v_lshrrev_b32 v6, 16, v6
v_mul_u32_u24 v7, 40, v6
v_sub_u32 v5, v5, v7
v_lshrrev_b32 v7, 1, v6
v_add_u32 v7, s62, v7
v_and_b32 v7, 7, v7
v_xor_b32 v5, v5, v7
v_mul_u32_u24 v6, 1152, v6
v_lshl_add_u32 v{DA+n}, v5, 4, v6""")
for m in range(6): wslice_off(DA + 9 + m, f"v_add_u32 v5, {512*m}, v0")
e(f"""s_lshl_b32 s60, s4, 6
s_add_u32 s60, s60, s64
s_mul_i32 s60, s60, 1152
s_add_u32 s65, s60, 640
s_mul_i32 s61, s3, 5120
s_lshl_b32 s62, s3, 10
s_mul_i32 s63, s5, 144
""")
srd(36, P_WS, WS_SIZE)
srd(40, P_X, 2359296)
def xa_dma(n): e(f"s_add_u32 m0, s61, {LXA + 1024*n}\nbuffer_load_dwordx4 v{DA+n}, s[40:43], s60 offen lds")
def xb_dma(n): e(f"s_add_u32 m0, s64, {LXB + 1024*n}\nbuffer_load_dwordx4 v{DA+5+n}, s[40:43], s65 offen lds")
def wa_dma(m): e(f"s_add_u32 m0, s62, {LW + 8192*m}\nbuffer_load_dwordx4 v{DA+9+m}, s[44:47], s63 offen lds")
e("s_cmp_eq_u32 s70, 0\ns_cbranch_scc1 L_a_wq")
for n in range(5): xa_dma(n)
e("L_a_wq:")
for m in range(5): wa_dma(m)
e("s_cmp_ge_u32 s3, 5\ns_cbranch_scc1 L_a_s5")
wa_dma(5)
e("L_a_s5:")
wslice_off(DA + 15, f"v_add_u32 v5, {45*64}, v0")
e(f"""s_add_u32 m0, s62, {LW + 45*1024}
s_lshl_b32 s92, s3, 3
buffer_load_dwordx4 v{DA+15}, s[44:47], s63 offen lds
s_cmp_eq_u32 s70, 0
s_cbranch_scc1 L_a_noxb
s_lshl_b32 s64, s3, 12""")
for n in range(4):
    e(f"""v_lshrrev_b32 v6, 5, v1
v_add_u32 v6, {2*n}, v6
v_add_u32 v7, s92, v6
v_and_b32 v7, 15, v7
v_and_b32 v5, 31, v1
v_xor_b32 v5, v5, v7
v_mul_u32_u24 v6, 1152, v6
v_lshl_add_u32 v{DA+5+n}, v5, 4, v6""")
    xb_dma(n)
e("L_a_noxb:")
if opt("spf", 0):
    e(f"""s_lshl_b32 s60, s4, 6
s_add_u32 s60, s60, s3
s_mul_i32 s60, s60, 1152
s_mul_i32 s61, s5, 144
s_add_u32 s60, s60, s61""")
    for r in range(8):
        e(f"""s_load_dword s97, s[{P_BK}:{P_BK+1}], s60
s_load_dword s97, s[{P_BV}:{P_BV+1}], s60
s_add_u32 s61, s60, 128
s_load_dword s97, s[{P_BK}:{P_BK+1}], s61
s_load_dword s97, s[{P_BV}:{P_BV+1}], s61
s_add_u32 s60, s60, 9216""")
AW0, AW1, AXA, AXB = 64, 65, 66, 70
e(f"""v_lshrrev_b32 v4, 5, v1
v_bfe_u32 v5, v1, 2, 2
v_lshl_add_u32 v5, v4, 3, v5
v_mul_u32_u24 v5, 144, v5
v_and_b32 v6, 1, v1
v_bfe_u32 v7, v1, 1, 1
v_bfe_u32 v3, v1, 4, 1
v_lshl_add_u32 v7, v3, 1, v7
s_lshr_b32 s60, s3, 1
s_and_b32 s61, s60, 1
s_mul_i32 s62, s60, 36
s_lshl_b32 s64, s61, 2
s_sub_u32 s62, s62, s64
s_add_u32 s62, s62, {LW}
s_lshl_b32 s64, s61, 3
s_add_u32 s64, s64, 16
v_mul_u32_u24 v6, s64, v6
v_lshl_add_u32 v6, v7, 3, v6
v_add3_u32 v{AW0}, v5, v6, s62
v_add_u32 v{AW1}, {18*2304}, v{AW0}
s_and_b32 s62, s3, 1
s_lshl_b32 s62, s62, 5
v_and_b32 v5, 31, v1
v_add_u32 v5, s62, v5
v_bfe_u32 v6, v5, 1, 3
v_mul_u32_u24 v3, 640, v5""")
for j in range(4):
    e(f"v_add_u32 v7, {2*j}, v4\nv_xor_b32 v7, v7, v6\nv_lshl_add_u32 v{AXA+j}, v7, 4, v3")
e("v_and_b32 v6, 15, v5\nv_lshlrev_b32 v3, 9, v5")
for j in range(8):
    e(f"v_add_u32 v7, {2*j}, v4\nv_xor_b32 v7, v7, v6\nv_lshl_add_u32 v{AXB+j}, v7, 4, v3")
e(f"""s_mov_b32 s64, 0
s_mov_b32 s65, -1
s_cmp_eq_u32 s61, 0
s_cselect_b32 s66, 0, -1
s_cselect_b32 s67, -1, 0
v_lshlrev_b32 v{AK1}, 4, v1
v_and_b32 v5, 31, v1
v_lshlrev_b32 v{AK2}, 2, v5
v_add_u32 v{AK2}, 1024, v{AK2}
v_mul_u32_u24 v6, 288, v4
v_lshl_add_u32 v6, v5, 4, v6
v_add_u32 v6, 1152, v6
v_add_u32 v7, 576, v6
v_and_b32 v3, 27, v5
v_cmp_eq_u32 vcc, 18, v3
v_mov_b32 v3, {LFAR}
v_mov_b32 v8, 2304
v_cndmask_b32 v3, v3, v8, vcc
v_cmp_gt_u32 vcc, 18, v5
v_cndmask_b32 v{AV0}, v3, v6, vcc
v_cndmask_b32 v{AV1}, v3, v7, vcc
v_mov_b32 v92, 1""")
for r in range(16): e(f"v_mov_b32 v{OO+r}, 0")
for r in range(16): e(f"v_mov_b32 v{YA+r}, 0")
e(f"""s_lshl_b32 s90, s3, 8
s_add_u32 s90, s90, s2
s_cmp_ge_u32 s90, 576
s_cselect_b32 s91, 1, 0
s_cmp_ge_u32 s90, 1152
s_cselect_b32 s91, 2, s91
s_mul_i32 s60, s91, 576
s_sub_u32 s92, s90, s60
s_min_u32 s92, s92, 575
s_cmp_lt_u32 s90, 1728
s_cselect_b32 s95, s3, 0
s_cselect_b32 s96, 0, s3
s_lshl_b32 s60, s92, 12""")
srd_off(40, P_H, "s60", 4096)
e(f"s_add_u32 s61, s60, {WS_U}")
srd_off(44, P_WS, "s61", 2048)
e(f"s_add_u32 s61, s61, 2048")
srd_off(52, P_WS, "s61", 2048)
e(f"""s_cmp_eq_u32 s91, 1
s_cselect_b32 s61, {WS_Y2-WS_Y}, 0
s_cselect_b32 s62, 2048, 0
s_sub_u32 s62, s62, 64
s_add_u32 s93, s60, s61
s_add_u32 s93, s93, {WS_Y}
s_cmp_eq_u32 s91, 0
s_cselect_b32 s61, 0, 2048
s_add_u32 s93, s93, s61
s_cmp_eq_u32 s91, 2
s_cselect_b32 s94, 0, 1024
s_mul_i32 s60, s3, 1088
s_add_u32 s60, s60, {LCONV}
v_lshlrev_b32 v{SO}, 4, v5
v_add_u32 v{SO}, s62, v{SO}
v_mov_b32 v3, 0x05040302
v_mov_b32 v6, 0x07060504
v_cndmask_b32 v{SH}, v3, v6, s[64:65]
v_lshlrev_b32 v3, 4, v5
v_mul_u32_u24 v6, 576, v4
v_add3_u32 v{SL}, v3, v6, s60
v_lshrrev_b32 v3, 1, v5
v_lshlrev_b32 v3, 2, v3
v_lshl_add_u32 v3, v4, 4, v3
v_and_b32 v6, 1, v5
v_mul_u32_u24 v6, 576, v6
v_add3_u32 v{AH}, v3, v6, s60
v_sub_u32 v3, 31, v5
v_lshlrev_b32 v3, 5, v3
v_lshl_add_u32 v{AFV}, v4, 4, v3
v_lshlrev_b32 v3, 6, v5
v_lshl_add_u32 v{YAD}, v4, 4, v3
s_lshl_b32 s60, s92, 1
v_mov_b32 v95, s60""")
srd(56, P_D, 1152)
e(f"""s_lshl_b32 s60, s4, 2
s_and_b32 s61, s3, 1
s_lshl_b32 s61, s61, 1
s_add_u32 s60, s60, s61
s_mul_i32 s60, s60, 18432
s_add_u32 s60, s60, {WS_O}
s_lshr_b32 s61, s3, 1
s_lshl_b32 s68, s5, 2
s_add_u32 s61, s61, s68
s_lshl_b32 s68, s61, 9
s_add_u32 s68, s68, s60
s_lshl_b32 s69, s5, 8
s_add_u32 s69, s69, s60
s_lshr_b32 s61, s3, 1
s_lshl_b32 s61, s61, 2
s_add_u32 s69, s69, s61
s_add_u32 s69, s69, 16384
v_bfe_u32 v5, v1, 4, 1
v_mul_u32_u24 v7, 18432, v5
v_and_b32 v5, 15, v1
v_lshl_add_u32 v167, v5, 4, v7
v_lshrrev_b32 v6, 5, v1
v_lshl_add_u32 v166, v6, 8, v167
""")
def hload():
    e(f"""v_add_u32 v163, 16, v{SO}
buffer_load_dwordx4 v[{HS}:{HS+3}], v{SO}, s[40:43], 0 offen
buffer_load_dword v{HS+4}, v163, s[40:43], 0 offen
v_add_u32 v{SO}, 448, v{SO}""")
def hperm():
    for i in range(4): e(f"v_perm_b32 v{HS+i}, v{HS+i+1}, v{HS+i}, v{SH}")
def hwrite(): e(f"ds_write_b128 v{SL}, v[{HS}:{HS+3}]")
def fload(s):
    if "--nof" in sys.argv: return
    r = CF + 4*(s % FD); sr = (44, 52)[s & 1]
    e(f"buffer_load_dwordx4 v[{r}:{r+3}], v{AFV}, s[{sr}:{sr+3}], s94 offen offset:{32*(s >> 1)} {'' if '--fplain' in sys.argv else 'sc1'}")
def aload(s):
    if "--noa" in sys.argv: return
    r = CA + 4*(s % 2); o = 8*(s % 14)
    e(f"ds_read2_b32 v[{r}:{r+1}], v{AH} offset0:{o} offset1:{o+1}")
    e(f"ds_read2_b32 v[{r+2}:{r+3}], v{AH} offset0:{o+2} offset1:{o+3}")
FA, FB = 24, 36
def qread(s):
    a = FA + 4*(s % 3); b = FB + 4*(s % 3)
    base = AW0 if s < 18 else AW1
    off = 2304 * (s % 18)
    e(f"ds_read_b64_tr_b16 v[{a}:{a+1}], v{base} offset:{off}\nds_read_b64_tr_b16 v[{a+2}:{a+3}], v{base} offset:{off+576}")
    if s < 20: e(f"ds_read_b128 v[{b}:{b+3}], v{AXA + (s & 3)} offset:{LXA + 128*(s >> 2)}")
    else: e(f"ds_read_b128 v[{b}:{b+3}], v{AXB + ((s-20) & 7)} offset:{LXB + 256*((s-20) >> 3)}")
def qsteps(lo, hi):
    qread(lo); qread(lo + 1)
    for s in range(lo, hi):
        if s + 2 < hi: qread(s + 2)
        left = min(2, hi - 1 - s)
        a = FA + 4*(s % 3); b = FB + 4*(s % 3)
        e(f"s_waitcnt lgkmcnt({3*left})")
        e(f"v_mfma_f32_32x32x16_bf16 v[{S0}:{S0+15}], v[{a}:{a+3}], v[{b}:{b+3}], {'0' if s == 0 else f'v[{S0}:{S0+15}]'}")
e("s_cmp_eq_u32 s70, 0\ns_cbranch_scc1 L_a_wa1\ns_waitcnt vmcnt(5)\ns_branch L_a_wa2\nL_a_wa1:\ns_waitcnt vmcnt(1)\nL_a_wa2:")
lds_add(C_A)
lds_spin(C_A, 12)
stamp(2)
e("s_setprio 3")
qsteps(0, 20)
lds_add(C_Q1)
e("s_waitcnt vmcnt(0)")
lds_add(C_B)
lds_spin(C_B, 9)
stamp(13)
hload()
e("buffer_load_ushort v94, v95, s[56:59], 0 offen")
qsteps(20, 36)
lds_add(C_Q)
CQ = 18 ** -0.5 * math.log2(math.e)
e(f"s_mov_b32 s60, {f32(CQ)}")
for r in range(4): e(f"v_mov_b32 v{PP+4+r}, 0")
for r in range(12): e(f"v_mul_f32 v{S0+r}, s60, v{S0+r}")
for i in range(6):
    e(f"v_cvt_pk_bf16_f32 v{24+i}, v{S0+2*i}, v{S0+2*i+1}")
    e(f"v_mul_f32 v{32+i}, v{S0+2*i}, v{S0+2*i}")
    e(f"v_fmac_f32 v{32+i}, v{S0+2*i+1}, v{S0+2*i+1}")
for i in range(4): e(f"v_cndmask_b32 v{Q1+i}, v{24+i}, v{25+i}, s[66:67]")
e(f"""v_cndmask_b32 v{Q2}, v28, v29, s[66:67]
v_cndmask_b32 v{Q2}, v{Q2}, 0, s[64:65]
v_cndmask_b32 v40, v32, v36, s[66:67]
v_cndmask_b32 v41, v36, v37, s[66:67]
v_cndmask_b32 v41, v41, 0, s[64:65]
v_add_f32 v40, v40, v41
v_add_f32 v40, v40, v33
v_add_f32 v40, v40, v34
v_add_f32 v40, v40, v35
v_mov_b32 v41, v40
v_permlane32_swap_b32 v40, v41
v_add_f32 v40, v40, v41
v_sqrt_f32 v{QN}, v40
v_mov_b32 v41, {f32(SHIFT)}
v_mov_b32 v7, {L_KC}
v_cvt_pk_bf16_f32 v{Q2+1}, -v{QN}, v41
v_cndmask_b32 v{Q2+1}, v{Q2+1}, 0, s[64:65]
v_mov_b32 v4, {f32(THR)}""")
stamp(3)
lds_spin(C_K0, 2, sleep=0)
stamp(5)
cstamp(14)
def mm_qk1(sn): e(f"v_mfma_f32_32x32x16_bf16 v[{sn}:{sn+15}], v[{K1}:{K1+3}], v[{Q1}:{Q1+3}], 0")
def mm_qk2(sn): e(f"v_mfma_f32_32x32x8_bf16 v[{sn}:{sn+15}], v[{K2}:{K2+1}], v[{Q2}:{Q2+1}], v[{sn}:{sn+15}]")
def mm_pv(v, p): e(f"v_mfma_f32_32x32x16_bf16 v[{OO}:{OO+15}], v[{v}:{v+3}], v[{p}:{p+3}], v[{OO}:{OO+15}]")
def rd_k1(t): e(f"ds_read_b128 v[{K1}:{K1+3}], v{AK1} offset:{TS*t}")
def rd_k2(t): e(f"ds_read_b32 v{K2}, v{AK2} offset:{TS*t}")
def rd_v0(t): e(f"ds_read_b128 v[{V0}:{V0+3}], v{AV0} offset:{TS*t}")
def rd_v1(t): e(f"ds_read_b128 v[{V1}:{V1+3}], v{AV1} offset:{TS*t}")
e(f"ds_read_b32 v{K2+1}, v7\nds_read_b32 v6, v7 offset:4")
rd_k1(0); rd_k2(0); rd_v1(0)
e(f"""s_waitcnt lgkmcnt(3)
v_readfirstlane_b32 s6, v6
v_lshlrev_b32 v5, 16, v{K2+1}
v_mul_f32 v5, v5, v{QN}
v_cmp_nle_f32 vcc, v5, v4
s_cbranch_vccnz L_truemax
L_pass:
s_waitcnt lgkmcnt(0)""")
mm_qk1(S0); mm_qk2(S0)
rd_k1(1); rd_v1(0); rd_k2(1); rd_v0(0)
e("s_mov_b32 s60, 0\ns_mov_b32 s71, 0\ns_setprio 0\ns_nop 7")
def prio(p):
    if "--noprio" in sys.argv: return
    l = L("pr")
    e(f"s_bitcmp1_b32 s95, 2\ns_cbranch_scc0 {l}\ns_setprio {p}\n{l}:")
def bump(n):
    for a in (AK1, AK2, AV0, AV1): e(f"v_add_u32 v{a}, {TS*n}, v{a}")
e(".p2align 6")
e("L_loop:")
for t in range(8):
    s = (S0, S1)[t & 1]; sn = (S0, S1)[(t + 1) & 1]
    ex = lambda i: e(f"v_exp_f32 v{s+i}, v{s+i}")
    cv = lambda i: e(f"v_cvt_pk_bf16_f32 v{PP+i}, v{s+2*i}, v{s+2*i+1}")
    if t == 0: e("s_bitcmp1_b32 s3, 2\ns_cbranch_scc0 L_pr0\ns_setprio 1\nL_pr0:")
    if t == opt("plu", 5): e("s_bitcmp1_b32 s96, 2\ns_cbranch_scc0 L_pr1\ns_setprio 0\nL_pr1:")
    if t == PLO: prio(0)
    e("s_waitcnt lgkmcnt(2)")
    mm_qk1(sn); rd_k1(t + 2)
    ex(0); ex(1); ex(2); ex(3); cv(0)
    mm_pv(V1, PP + 4); rd_v1(t)
    ex(4); ex(5); cv(1); ex(6); ex(7); cv(2)
    e("s_waitcnt lgkmcnt(2)")
    mm_qk2(sn); rd_k2(t + 2)
    ex(8); cv(3); ex(9); ex(10); ex(11); cv(4)
    mm_pv(V0, PP); rd_v0(t + 1)
    ex(12); ex(13); cv(5); ex(14); ex(15); cv(6); cv(7)
bump(8)
e(f"""s_add_u32 s60, s60, 1
s_cmp_eq_u32 s60, 1
s_cbranch_scc1 L_loop
s_cmp_lg_u32 s60, 8
s_cbranch_scc1 L_edge
L_fini:
s_waitcnt lgkmcnt(0)""")
mm_pv(V1, PP + 4)
e("s_setprio 0")
stamp(6)
cstamp(15)
e(f"v_rcp_f32 v4, v{OO+10}")
for r in range(10): e(f"v_mul_f32 v{OO+r}, v{OO+r}, v4")
for i in range(5): e(f"v_cvt_pk_bf16_f32 v{8+i}, v{OO+2*i}, v{OO+2*i+1}")
for i in range(5): e(f"v_min_u32 v{8+i}, -2, v{8+i}")
e(f"""buffer_store_dwordx4 v[8:11], v166, s[36:39], s68 offen sc1
s_mov_b32 exec_hi, 0
buffer_store_dword v12, v167, s[36:39], s69 offen sc1
s_mov_b32 exec_hi, -1""")
OA, TA, TB = 28, 30, 31
e(f"""s_and_b32 s60, s3, 3
s_lshr_b32 s61, s3, 2
s_lshl_b32 s62, s4, 2
s_add_u32 s62, s62, s60
s_mul_i32 s62, s62, 18432
s_mul_i32 s64, s61, 9216
s_add_u32 s62, s62, s64
s_add_u32 s64, s62, {WS_O}
s_add_u32 s65, s64, 4096
s_add_u32 s70, s64, 8192
v_lshlrev_b32 v{OA}, 4, v1
v_and_b32 v4, 15, v1
v_lshrrev_b32 v5, 4, v1
s_cmp_eq_u32 s61, 0
s_cselect_b64 s[66:67], 0, -1""")
OF, DD, WF = 40, 76, 96
def oload(i):
    r = OF + 4*i
    e(f"buffer_load_dwordx4 v[{r}:{r+3}], v{OA}, s[36:39], s{(64, 65, 70)[i >> 2]} offen offset:{1024*(i & 3)} sc1")
if opt("oearly", 0):
    for i in range(9): oload(i)
lds_add(C_L, va=13, vb=14)
e(f"""s_lshl_b32 s60, s60, 4
v_add_u32 v36, s60, v4
v_mul_u32_u24 v36, 336, v36
v_lshl_add_u32 v36, v5, 4, v36
s_mul_i32 s60, s61, {64*336}
s_add_u32 s60, s60, {LEX}
v_add_u32 v36, s60, v36
v_lshrrev_b32 v6, 2, v4
v_and_b32 v4, 3, v4
v_lshrrev_b32 v7, 1, v5
v_mul_u32_u24 v7, 18, v7
v_and_b32 v3, 1, v5
v_lshl_add_u32 v7, v3, 2, v7
v_add_u32 v7, v7, v6
v_mul_u32_u24 v7, 144, v7
v_lshl_add_u32 v7, v4, 3, v7
s_mul_i32 s60, s61, {9*5184}
v_add_u32 v{TA}, s60, v7
v_lshrrev_b32 v3, 1, v6
v_lshl_add_u32 v3, v5, 2, v3
v_mul_u32_u24 v3, 18, v3
v_and_b32 v6, 1, v6
v_add3_u32 v3, v3, v6, 16
v_mul_u32_u24 v3, 144, v3
v_lshl_add_u32 v3, v4, 3, v3""")
for j, (d0, d1) in enumerate([(7*5184, 0), (7*5184+1152, 5184), (8*5184, 41472), (8*5184+1152, 41472+5184)]):
    e(f"v_add_u32 v6, {d0}, v{TA}\nv_add_u32 v7, {d1}, v3\nv_cndmask_b32 v{TB+j}, v6, v7, s[66:67]")
lds_spin(C_WO, 1, sleep=1)
NW = 18
def wread(u):
    i, ct = divmod(u, 5)
    r = WF + 4*(u % NW)
    if i < 7:
        e(f"ds_read_b64_tr_b16 v[{r}:{r+1}], v{TA} offset:{5184*i + 32*ct}")
        e(f"ds_read_b64_tr_b16 v[{r+2}:{r+3}], v{TA} offset:{5184*i + 32*ct + 1152}")
    else:
        e(f"ds_read_b64_tr_b16 v[{r}:{r+1}], v{TB + 2*(i-7)} offset:{32*ct}")
        e(f"ds_read_b64_tr_b16 v[{r+2}:{r+3}], v{TB + 2*(i-7) + 1} offset:{32*ct}")
AHEAD = 15
for u in range(AHEAD): wread(u)
srd(48, P_OUT, 4718592)
def fin_addr(cexpr, vl, vg):
    e(f"""{cexpr}
v_mul_u32_u24 v6, {M9}, v5
v_lshrrev_b32 v6, 16, v6
v_mul_u32_u24 v7, 9, v6
v_sub_u32 v5, v5, v7
v_mul_u32_u24 v7, 336, v6
v_lshl_add_u32 v{vl}, v5, 5, v7
v_add_u32 v{vl}, {LEX}, v{vl}
v_mul_u32_u24 v7, 2304, v6
v_lshl_add_u32 v{vg}, v5, 4, v7""")
fin_addr("v_mov_b32 v5, v0", 37, 38)
fin_addr("v_add_u32 v5, 512, v0", 35, 39)
e(f"""s_mul_i32 s63, s5, 144
s_mul_i32 s60, s4, {64*2304}
s_add_u32 s63, s63, s60""")
if not opt("oearly", 0):
    lds_spin(C_L, 8, sleep=1)
    for i in range(9): oload(i)
e(f"s_mov_b32 s62, {SPIN}")
stamp(7)
def stale(k, lab, br):
    o = OF + 4*k
    e(f"""v_max3_u32 v3, v{o}, v{o+1}, v{o+2}
v_max_u32 v3, v3, v{o+3}
v_cmp_eq_u32 vcc, -1, v3
{br} {lab}""")
retry = []
for i in range(9):
    o = OF + 4*i
    lo, rt = L("ochk"), L("ort")
    e(f"s_waitcnt vmcnt({8-i})\n{lo}:")
    stale(i, rt, "s_cbranch_vccnz")
    retry.append((i, lo, rt))
    nxt = [u for u in range(5*i + AHEAD, 5*i + AHEAD + 5) if u < 45]
    e(f"s_waitcnt lgkmcnt({min(15, 2*min(10, 45 - 5*i - 5))})")
    for ct in range(5):
        u = 5*i + ct
        r = WF + 4*(u % NW); d = DD + 4*ct
        e(f"v_mfma_f32_16x16x32_bf16 v[{d}:{d+3}], v[{r}:{r+3}], v[{o}:{o+3}], {'0' if i == 0 else f'v[{d}:{d+3}]'}")
        if ct < len(nxt): wread(nxt[ct])
stamp(8)
lds_spin(C_L, 8, sleep=0)
for ct in range(5):
    e(f"ds_write_b128 v36, v[{DD+4*ct}:{DD+4*ct+3}] offset:{64*ct}")
lds_add(C_X)
lds_spin(C_X, 8, sleep=0)
def fin(vl, vg):
    e(f"""ds_read_b128 v[8:11], v{vl}
ds_read_b128 v[16:19], v{vl} offset:{64*336}
ds_read_b128 v[12:15], v{vl} offset:16
ds_read_b128 v[20:23], v{vl} offset:{64*336+16}
s_waitcnt lgkmcnt(2)
v_pk_add_f32 v[8:9], v[8:9], v[16:17]
v_pk_add_f32 v[10:11], v[10:11], v[18:19]
s_waitcnt lgkmcnt(0)
v_pk_add_f32 v[12:13], v[12:13], v[20:21]
v_pk_add_f32 v[14:15], v[14:15], v[22:23]
v_cvt_pk_bf16_f32 v24, v8, v9
v_cvt_pk_bf16_f32 v25, v10, v11
v_cvt_pk_bf16_f32 v26, v12, v13
v_cvt_pk_bf16_f32 v27, v14, v15
buffer_store_dwordx4 v[24:27], v{vg}, s[48:51], s63 offen""")
fin(37, 38)
e("s_cmp_lg_u32 s3, 0\ns_cbranch_scc1 L_t_fin\ns_nop 1")
fin(35, 39)
e("L_t_fin:")
stamp(9)
stamp_flush()
e("s_endpgm")
for i, lo, rt in retry:
    e(f"{rt}:\ns_waitcnt vmcnt(0)\ns_sleep {opt('osleep', 2)}")
    oload(i)
    for k in range(i + 1, 9):
        sk = L("osk")
        stale(k, sk, "s_cbranch_vccz")
        oload(k)
        e(f"{sk}:")
    e("s_sub_u32 s62, s62, 1\ns_waitcnt vmcnt(0)")
    e(f"s_cbranch_scc0 {lo}\ns_endpgm")

def release():
    e(f"v_mov_b32 v91, {C_P}\ns_mov_b64 exec, 1\nds_add_u32 v91, v92\ns_mov_b64 exec, -1")
e(f"""L_edge:
s_cmp_eq_u32 s60, 2
s_cbranch_scc1 L_chk
s_cmp_eq_u32 s60, 5
s_cbranch_scc0 L_loop""")
release()
e("s_waitcnt lgkmcnt(0)\ns_branch L_loop\nL_chk:")
cstamp(4)
e(f"v_mov_b32 v91, {C_T}\ns_mov_b64 exec, 1\nds_add_u32 v91, v92\ns_mov_b64 exec, -1")
lds_spin(C_K, 2, va=91, vb=93)
cstamp(10)
e("s_cmp_lt_u32 s90, 1728\ns_cbranch_scc0 L_loop")
class Ctr:
    def __init__(self, init): self.q = list(init)
    def issue(self, tag, n=1): self.q += [tag] * n
    def need(self, *tags):
        last = max((i for i, t in enumerate(self.q) if t in tags), default=-1)
        n = len(self.q) - 1 - last
        self.q = self.q[last + 1:]
        return n if last >= 0 else None
lg = Ctr(["k1_1", "v1_-1", "k2_1", "v0_0"])
vm = Ctr([f"f{k}" for k in range(FD)] + ["h1", "h1"])
def wait(ltags=(), vtags=()):
    a = lg.need(*ltags) if ltags else None
    b = vm.need(*vtags) if vtags else None
    t = []
    if b is not None: t.append(f"vmcnt({min(b, 63)})")
    if a is not None: t.append(f"lgkmcnt({min(a, 15)})")
    if t: e("s_waitcnt " + " ".join(t))
e("L_conv:")
def plain_tile(t, tl):
    s = (S0, S1)[t & 1]; sn = (S0, S1)[(t + 1) & 1]
    ex = lambda i: e(f"v_exp_f32 v{s+i}, v{s+i}")
    cv = lambda i: e(f"v_cvt_pk_bf16_f32 v{PP+i}, v{s+2*i}, v{s+2*i+1}")
    wait([f"k1_{t+1}", f"v1_{t-1}"])
    mm_qk1(sn); rd_k1(tl + 2); lg.issue(f"k1_{t+2}")
    ex(0); ex(1); ex(2); ex(3); cv(0)
    mm_pv(V1, PP + 4); rd_v1(tl); lg.issue(f"v1_{t}")
    ex(4); ex(5); cv(1); ex(6); ex(7); cv(2)
    wait([f"k2_{t+1}", f"v0_{t}"])
    mm_qk2(sn); rd_k2(tl + 2); lg.issue(f"k2_{t+2}")
    ex(8); cv(3); ex(9); ex(10); ex(11); cv(4)
    mm_pv(V0, PP); rd_v0(tl + 1); lg.issue(f"v0_{t+1}")
    ex(12); ex(13); cv(5); ex(14); ex(15); cv(6); cv(7)
def conv_tile(t, tl, k0):
    s = (S0, S1)[t & 1]; sn = (S0, S1)[(t + 1) & 1]
    ex = lambda i: e(f"v_exp_f32 v{s+i}, v{s+i}")
    cv = lambda i: e(f"v_cvt_pk_bf16_f32 v{PP+i}, v{s+2*i}, v{s+2*i+1}")
    def cstep(k):
        a = CA + 4*(k % 2); f = CF + 4*(k % FD)
        newwin = (k + 2) % 14 == 0 and k + 2 < 64
        wait([f"a{k}"], [f"f{k}"] + ([f"h{(k+2)//14}"] if newwin else []))
        e(f"v_mfma_f32_32x32x16_bf16 v[{YA}:{YA+15}], v[{a}:{a+3}], v[{f}:{f+3}], v[{YA}:{YA+15}]")
        if newwin:
            hperm(); hwrite(); lg.issue("w")
        if k + 2 < 64: aload(k + 2); lg.issue(f"a{k+2}", 2)
        if k + FD < 64: fload(k + FD); vm.issue(f"f{k+FD}")
        if newwin and k + 16 < 64: hload(); vm.issue(f"h{(k+2)//14+1}", 2)
    wait([f"k1_{t+1}", f"v1_{t-1}"])
    mm_qk1(sn); rd_k1(tl + 2); lg.issue(f"k1_{t+2}")
    ex(0); ex(1); ex(2)
    mm_pv(V1, PP + 4); rd_v1(tl); lg.issue(f"v1_{t}")
    ex(3); cv(0); ex(4); cv(1); ex(5)
    cstep(k0)
    ex(6); ex(7); cv(2); ex(8)
    wait([f"k2_{t+1}", f"v0_{t}"])
    mm_qk2(sn); rd_k2(tl + 2); lg.issue(f"k2_{t+2}")
    cv(3); ex(9); ex(10); ex(11)
    mm_pv(V0, PP); rd_v0(tl + 1); lg.issue(f"v0_{t+1}")
    cv(4); ex(12); ex(13); cv(5)
    cstep(k0 + 1)
    ex(14); ex(15); cv(6); cv(7)
for t in range(48):
    if t in (16, 32): bump(16)
    if t == 24:
        release(); lg.issue("rel")
    if t == opt("st", 44):
        e(f"v_mov_b32 v91, {C_S}\ns_mov_b64 exec, 1\nds_add_u32 v91, v92\ns_mov_b64 exec, -1"); lg.issue("sig")
    tl = t % 16
    isconv = CS <= t < CS + 32
    if t % 8 == 0: prio(1)
    if t % 8 == (PLC if isconv else PLO): prio(0)
    if t == max(CS - 3, 0):
        lds_spin(C_U, 1, va=91, vb=93); lg.q = []
        cstamp(12)
        e("s_waitcnt vmcnt(0)")
        e(f"""v_lshlrev_b32 v94, 16, v94
v_lshlrev_b32 v91, 16, v{HS+4}
v_add_f32 v91, v91, v94
s_mov_b32 s61, 0xffff
v_cvt_pk_bf16_f32 v91, v91, v91
s_cmp_eq_u32 s91, 1
s_cselect_b32 exec_lo, 0, 8
s_cselect_b32 exec_hi, 0, 8
v_bfi_b32 v{HS+4}, s61, v91, v{HS+4}
s_mov_b64 exec, -1""")
        hperm()
        hwrite(); aload(0); aload(1); lg.issue("w"); lg.issue("a0", 2); lg.issue("a1", 2)
        for k in range(FD): fload(k)
        hload()
    if isconv: conv_tile(t, tl, 2*(t - CS))
    else: plain_tile(t, tl)
    if t == CS + 32:
        for k in range(2):
            r = CF + 4*k
            for j in range(4): e(f"v_cvt_pk_bf16_f32 v{r+j}, v{YA+8*k+2*j}, v{YA+8*k+2*j+1}")
            for j in range(4): e(f"v_min_u32 v{r+j}, -2, v{r+j}")
            e(f"v_permlane32_swap_b32 v{r}, v{r+2}\nv_permlane32_swap_b32 v{r+1}, v{r+3}")
            e(f"buffer_store_dwordx4 v[{r}:{r+3}], v{YAD}, s[36:39], s93 offen offset:{32*k} sc1")
        cstamp(11)
e("s_branch L_fini")
e("L_truemax:")
lds_spin(C_K, 2)
e(f"""v_mov_b32 v{Q2+1}, 0
v_mov_b32 v5, 0xff800000
s_mov_b32 s60, 64
L_fb:""")
rd_k1(0); rd_k2(0)
e("s_waitcnt lgkmcnt(0)")
mm_qk1(S0); mm_qk2(S0)
e(f"v_add_u32 v{AK1}, {TS}, v{AK1}\nv_add_u32 v{AK2}, {TS}, v{AK2}")
for i in range(8): e(f"v_max3_f32 v5, v5, v{S0+2*i}, v{S0+2*i+1}")
e(f"""s_sub_u32 s60, s60, 1
s_cmp_lg_u32 s60, 0
s_cbranch_scc1 L_fb
v_subrev_u32 v{AK1}, {TS*64}, v{AK1}
v_subrev_u32 v{AK2}, {TS*64}, v{AK2}
v_mov_b32 v6, v5
v_permlane32_swap_b32 v5, v6
v_max_f32 v5, v5, v6
v_sub_f32 v5, 0, v5
v_cvt_pk_bf16_f32 v6, v5, v5
v_and_b32 v7, 0xffff0000, v6
v_sub_f32 v5, v5, v7
v_cvt_pk_bf16_f32 v7, v5, v5
v_and_b32 v3, 0xffff0000, v7
v_sub_f32 v5, v5, v3
v_cvt_pk_bf16_f32 v5, v5, 0
v_and_b32 v6, 0xffff, v6
v_or_b32 v6, v6, v3
v_cndmask_b32 v{Q2+1}, v6, v5, s[64:65]
v_mov_b32 v{K2+1}, 0x3f803f80""")
rd_k1(0); rd_k2(0)
e("s_branch L_pass\nL_end:\ns_endpgm")

ref = open(f"cdna_kernels/{NAME}.s.ref").read().split("\n")
head = [l for l in ref if l.startswith(";") and "@launch" not in l and not l.startswith("; Override") and not l.startswith("; grid=")]
txt = "\n".join(head) + f"""
; @launch grid=(256,1,1) block=(768,1,1) lds={LDS_BYTES}
.amdgcn_target "amdgcn-amd-amdhsa--gfx950"
.text
.globl {NAME}_kernel
.p2align 8
.type {NAME}_kernel,@function
{NAME}_kernel:
""" + e.text() + f""".section .rodata,"a"
.p2align 6
.amdhsa_kernel {NAME}_kernel
  .amdhsa_next_free_vgpr 168
  .amdhsa_next_free_sgpr 102
  .amdhsa_accum_offset 168
  .amdhsa_group_segment_fixed_size 0
  .amdhsa_kernarg_size 112
  .amdhsa_user_sgpr_count 2
  .amdhsa_user_sgpr_kernarg_segment_ptr 1
  .amdhsa_system_sgpr_workgroup_id_x 1
.end_amdhsa_kernel
"""
open(OUT, "w").write(txt)
print("wrote", OUT, len(txt), "bytes;", e.nops, "nops inserted")
```

```python
import sys, struct, math
sys.path.insert(0, "gen")
from emit import Emitter

NAME = "concat_heads__grouped_kv_mqa__ssm_conv_h3__prompt"
STAMPS = "--stamps" in sys.argv
def opt(name, default):
    for a in sys.argv:
        if a.startswith(f"--{name}="): return int(a.split("=")[1])
    return default
OUT = [a for a in sys.argv[1:] if not a.startswith("--")]
OUT = OUT[0] if OUT else f"cdna_kernels/{NAME}.s"
PSW = opt("psw", 44)
P1C = opt("p1c", 0)
PLC = opt("plc", 5)
CS = opt("cs", 6)
PLO = opt("plo", 6)

def f32(x): return struct.unpack("<I", struct.pack("<f", x))[0]
def magic(d, n):
    m = -(-65536 // d)
    assert all((c * m) >> 16 == c // d for c in range(n)), (d, n)
    return m

WS_G, WS_KVF, WS_KVTF, WS_YF = 0, 0x40000, 0x50000, 0x60000
WS_KV, WS_U, WS_Y, WS_O, WS_ST, WS_Y2 = 0x10000, 0x100000, 0x400000, 0x700000, 0xA00000, 0xB00000
WS_SIZE = 0x1000000
TAGC = 0x9E3779B9
TS = 2320
LXA, LXB, LW = 0, 40960, 73728
NDEF = 53
LWKV = LW + NDEF * 1024
LCONV = 64 * TS
LMISC = LCONV + 8 * 1088
(C_W, C_R, C_KV, C_KVT, C_A, C_B, C_K, C_P, L_MAXLO, L_MAXHI, L_KC, L_TAG, C_F, C_Y, C_YW, C_Q,
 C_K0, C_U, C_WO, C_L, C_X, C_T, C_Q1, C_G, C_S) = [LMISC + 4 * i for i in range(25)]
LDS_BYTES = 163840
LFAR = 0x40000
LEX = 90112
SPIN = opt("spin", 0x200000)
SHIFT, THR = 60.0, 45.0

e = Emitter()
uid = [0]
def L(p):
    uid[0] += 1
    return f"L_{p}{uid[0]}"
def stamp(i):
    if STAMPS: e(f"s_memrealtime s[98:99]\ns_waitcnt lgkmcnt(0)\ns_mov_b32 s{72+i}, s98")
def cstamp(i):
    if STAMPS: e(f"s_memtime s[98:99]\ns_waitcnt lgkmcnt(0)\ns_mov_b32 s{72+i}, s98")
def stamp_flush():
    if not STAMPS: return
    if "--dbg" in sys.argv:
        l = L("nodbg")
        e(f"s_cmp_lg_u32 s3, 0\ns_cbranch_scc1 {l}")
        e("s_mov_b32 s40, s32\ns_mov_b32 s41, s33\ns_mov_b32 s42, 256\ns_mov_b32 s43, 0x00020000\nv_lshlrev_b32 v3, 2, v1\ns_not_b32 s60, s72\nv_mov_b32 v4, s60")
        for k, i in enumerate((0, 1, 2, 13, 3, 5, 6, 7, 8, 9)):
            e(f"v_writelane_b32 v4, s{72+i}, {k+1}")
        e(f"s_mov_b64 exec, 0x7ff\nbuffer_atomic_umax v4, v3, s[40:43], 0 offen sc1\n{l}:")
        return
    e(f"""s_mul_i32 s60, s2, 12
s_add_u32 s60, s60, s3
s_lshl_b32 s60, s60, 6
s_add_u32 s60, s60, {WS_ST}
s_mov_b64 exec, -1
v_mov_b32 v3, 0""")
    for i in range(16):
        e(f"v_mov_b32 v4, s{72+i}\nbuffer_store_dword v4, v3, s[36:39], s60 offen offset:{4*i}")
def srd(n, plo, nbytes):
    e(f"s_mov_b32 s{n}, s{plo}\ns_mov_b32 s{n+1}, s{plo+1}\ns_mov_b32 s{n+2}, {nbytes}\ns_mov_b32 s{n+3}, 0x00020000")
def srd_off(n, plo, soff, nbytes):
    e(f"s_add_u32 s{n}, s{plo}, {soff}\ns_addc_u32 s{n+1}, s{plo+1}, 0\ns_mov_b32 s{n+2}, {nbytes}\ns_mov_b32 s{n+3}, 0x00020000")
def lds_add(addr, va=3, vb=6, rtn=None, also=None):
    e(f"v_mov_b32 v{va}, {addr}\nv_mov_b32 v{vb}, 1\ns_mov_b64 exec, 1")
    if also is not None: e(f"ds_add_u32 v{va}, v{vb} offset:{also - addr}")
    if rtn is None:
        e(f"ds_add_u32 v{va}, v{vb}\ns_mov_b64 exec, -1")
    else:
        e(f"ds_add_rtn_u32 v{vb}, v{va}, v{vb}\ns_waitcnt lgkmcnt(0)\nv_readfirstlane_b32 s{rtn}, v{vb}\ns_mov_b64 exec, -1")
TMO = "--tmo" in sys.argv
def tmo_mark(what):
    if not TMO: return
    print("timeout id", uid[0], what)
    e(f"""s_mov_b64 s[100:101], exec
s_mov_b64 exec, 1
v_mov_b32 v2, {uid[0]}
s_mul_i32 s88, s2, 12
s_add_u32 s88, s88, s3
s_lshl_b32 s88, s88, 2
s_add_u32 s88, s88, {WS_ST + 0x80000}
v_mov_b32 v0, 0
buffer_store_dword v2, v0, s[36:39], s88 offen
s_mov_b64 exec, s[100:101]""")
def lds_spin(addr, n, va=3, vb=6, sleep=1):
    l = L("spin"); d = L("spun")
    e(f"""v_mov_b32 v{va}, {addr}
s_mov_b32 s89, {SPIN}
{l}:
ds_read_b32 v{vb}, v{va}
s_waitcnt lgkmcnt(0)
v_readfirstlane_b32 s88, v{vb}
s_cmp_ge_u32 s88, {n}
s_cbranch_scc1 {d}
s_sleep {sleep}
s_sub_u32 s89, s89, 1
s_cbranch_scc0 {l}""")
    tmo_mark(f"lds {(addr - LMISC) // 4} >= {n}")
    e(f"{d}:")
def poll_all(base, sleep):
    l, d = L("poll"), L("polled")
    e(f"v_lshlrev_b32 v3, 5, v1\ns_mov_b32 s60, {base}\ns_mov_b32 s61, {base + 4096}\ns_mov_b32 s62, {SPIN}\n{l}:")
    for i in range(4):
        e(f"buffer_load_dwordx2 v[{8+2*i}:{9+2*i}], v3, s[36:39], s{60 + (i >> 1)} offen offset:{2048*(i & 1)} sc1")
    e(f"""s_waitcnt vmcnt(0)
v_cmp_ne_u32 vcc, s6, v8
v_cmp_ne_u32 s[64:65], s6, v10
s_or_b64 vcc, vcc, s[64:65]
v_cmp_ne_u32 s[64:65], s6, v12
s_or_b64 vcc, vcc, s[64:65]
v_cmp_ne_u32 s[64:65], s6, v14
s_or_b64 vcc, vcc, s[64:65]
s_sub_u32 s62, s62, 1
s_cbranch_scc1 {d}
s_cbranch_vccz {d}
s_sleep {sleep}
s_branch {l}
{d}:""")
P_X, P_WQ, P_WK, P_WV, P_WO, P_BQ, P_BK, P_BV, P_SK, P_H, P_D, P_OUT, P_DBG, P_WS = range(8, 36, 2)
M9 = magic(9, 5632)
def wslice_off(dst, cexpr):
    e(f"""{cexpr}
v_mul_u32_u24 v6, {M9}, v5
v_lshrrev_b32 v6, 16, v6
v_mul_u32_u24 v7, 1008, v6
v_lshl_add_u32 v{dst}, v5, 4, v7""")
def get_tag():
    e(f"v_readfirstlane_b32 s6, v2\ns_add_u32 s6, s6, {TAGC}")
def half(dst, src, hi):
    if hi: e(f"v_and_b32 v{dst}, 0xffff0000, v{src}")
    else: e(f"v_lshlrev_b32 v{dst}, 16, v{src}")

e(f"""s_cmp_ge_u32 s2, 256
s_cbranch_scc1 L_end
s_load_dwordx16 s[8:23], s[0:1], 0
s_load_dwordx8 s[24:31], s[0:1], 64
s_load_dwordx4 s[32:35], s[0:1], 96
v_and_b32 v1, 63, v0
v_lshrrev_b32 v2, 6, v0
v_mov_b32 v3, 0
v_readfirstlane_b32 s3, v2
s_and_b32 s4, s2, 31
s_lshr_b32 s5, s2, 5""")
if STAMPS:
    for i in range(16): e(f"s_mov_b32 s{72+i}, 0")
e("s_cmp_lt_u32 s3, 8\ns_cbranch_scc1 L_att")

M3 = magic(3, 1792)
e(f"""s_sub_u32 s7, s3, 8
s_setprio 2
v_subrev_u32 v5, 512, v0""")
for m in range(7):
    e(f"""v_mul_u32_u24 v6, {M3}, v5
v_lshrrev_b32 v6, 16, v6
v_mul_u32_u24 v6, 12, v6
v_lshlrev_b32 v7, 4, v5
v_sub_u32 v{16+m}, v7, v6""")
    if m < 6: e("v_add_u32 v5, 256, v5")
e(f"""v_lshlrev_b32 v4, 4, v1
s_and_b32 s61, s5, 3
s_lshl_b32 s61, s61, 2
s_add_u32 s61, s61, s7
s_lshl_b32 s61, s61, 2
s_lshl_b32 s60, s4, 6
s_add_u32 s60, s60, s61
s_mul_i32 s60, s60, 1152
s_lshl_b32 s62, s7, 5
v_xor_b32 v24, s62, v4
s_add_u32 s62, s62, 16
v_xor_b32 v25, s62, v4
v_lshrrev_b32 v6, 5, v1
s_lshl_b32 s62, s7, 2
v_add_u32 v7, s62, v6
v_and_b32 v5, 31, v1
v_xor_b32 v26, v5, v7
v_xor_b32 v27, 2, v26
v_mul_u32_u24 v6, 1152, v6
v_lshl_add_u32 v26, v26, 4, v6
v_lshl_add_u32 v27, v27, 4, v6
s_lshl_b32 s63, s7, 10
s_waitcnt lgkmcnt(0)""")
stamp(0)
e(f"""s_cmp_lt_u32 s5, 4
s_cselect_b32 s48, s{P_WK}, s{P_WV}
s_cselect_b32 s49, s{P_WK+1}, s{P_WV+1}
s_mov_b32 s50, 20736
s_mov_b32 s51, 0x00020000""")
srd(40, P_X, 2359296)
for m in range(7):
    e(f"s_add_u32 m0, s63, {LWKV + 4096*m}\nbuffer_load_dwordx4 v{16+m}, s[48:51], 0 offen lds")
e(f"s_mul_i32 s62, s61, 640\ns_mov_b32 exec_hi, 0xff")
for i in range(4):
    e(f"s_add_u32 m0, s62, {LXA + 640*i}\ns_add_u32 s64, s60, {1152*i}\nbuffer_load_dwordx4 v{24 + (i >> 1)}, s[40:43], s64 offen lds")
e(f"s_mov_b32 exec_hi, -1\ns_lshl_b32 s62, s61, 9")
for p in range(2):
    e(f"s_add_u32 m0, s62, {LXB + 1024*p}\ns_add_u32 s64, s60, {2304*p + 640}\nbuffer_load_dwordx4 v{26+p}, s[40:43], s64 offen lds")
srd(36, P_WS, WS_SIZE)
e(f"""buffer_load_dword v2, v3, s[36:39], 0 offen sc1
v_and_b32 v4, 15, v1
v_lshrrev_b32 v5, 4, v1
s_cmp_ge_u32 s7, 2
s_cbranch_scc1 L_h_sent
s_cmp_lg_u32 s7, 0
s_cbranch_scc1 L_h_b0
v_lshlrev_b32 v7, 2, v1
v_add_u32 v7, {LMISC}, v7
ds_write_b32 v7, v3
s_waitcnt lgkmcnt(0)
s_branch L_h_b0
L_h_sent:""")
e(f"""s_lshl_b32 s60, s4, 2
s_lshl_b32 s61, s7, 1
s_add_u32 s60, s60, s61
s_sub_u32 s60, s60, 4
s_mul_i32 s60, s60, 18432
s_lshl_b32 s61, s5, 11
s_add_u32 s60, s60, s61
s_add_u32 s60, s60, {WS_O}
v_lshlrev_b32 v6, 4, v1
v_mov_b32 v8, -1
v_mov_b32 v9, -1
v_mov_b32 v10, -1
v_mov_b32 v11, -1
buffer_store_dwordx4 v[8:11], v6, s[36:39], s60 offen sc1
buffer_store_dwordx4 v[8:11], v6, s[36:39], s60 offen offset:1024 sc1
s_add_u32 s60, s60, 18432
buffer_store_dwordx4 v[8:11], v6, s[36:39], s60 offen sc1
buffer_store_dwordx4 v[8:11], v6, s[36:39], s60 offen offset:1024 sc1
s_mul_i32 s60, s4, {4*18432}
s_lshl_b32 s61, s5, 8
s_add_u32 s60, s60, s61
s_add_u32 s60, s60, {WS_O + 16*1024}
v_mul_u32_u24 v6, 18432, v5
v_lshl_add_u32 v6, v4, 4, v6
buffer_store_dwordx4 v[8:11], v6, s[36:39], s60 offen sc1""")
M18 = magic(18, 192)
def task_regs(stask, vt0, vd):
    e(f"""v_add_u32 v6, {stask}, v1
v_mul_u32_u24 v7, {M18}, v6
v_lshrrev_b32 v7, 16, v7
s_lshl_b32 s60, s4, 6
v_lshl_add_u32 v{vt0}, v7, 3, s60
v_mul_u32_u24 v7, 18, v7
v_sub_u32 v6, v6, v7
s_mul_i32 s60, s5, 72
v_lshl_add_u32 v{vd}, v6, 2, s60""")
def p1_regs(slot):
    return (8, 30, 48, 56, 57) if slot == 0 else (120, 142, 160, 58, 59)
def p1_loads(stask, slot=0):
    PK, PV_, PS, T0, DD_ = p1_regs(slot)
    task_regs(stask, T0, DD_)
    e(f"v_mul_u32_u24 v6, 1152, v{T0}\nv_lshl_add_u32 v6, v{DD_}, 1, v6")
    for i in range(3):
        e(f"v_subrev_u32 v7, {1152*(3-i)}, v6\nbuffer_load_dwordx2 v[{PK+2*i}:{PK+2*i+1}], v7, s[44:47], 0 offen")
    for i in range(8):
        e(f"s_mov_b32 s60, {1152*i}\nbuffer_load_dwordx2 v[{PK+6+2*i}:{PK+7+2*i}], v6, s[44:47], s60 offen\nbuffer_load_dwordx2 v[{PV_+2*i}:{PV_+2*i+1}], v6, s[52:55], s60 offen")
    e(f"v_lshlrev_b32 v7, 3, v{DD_}\nbuffer_load_dwordx4 v[{PS}:{PS+3}], v7, s[56:59], 0 offen\nbuffer_load_dwordx4 v[{PS+4}:{PS+7}], v7, s[56:59], 0 offen offset:16")
UK, UW, UA = 64, 88, 96
def u_addr(vt0, vd, dst):
    e(f"""v_sub_u32 v7, 2040, v{vt0}
v_lshrrev_b32 v{dst}, 5, v7
v_lshlrev_b32 v{dst}, 5, v{dst}
v_bfe_u32 v3, v7, 4, 1
v_lshl_add_u32 v{dst}, v3, 11, v{dst}
v_bfe_u32 v3, v7, 3, 1
v_lshl_add_u32 v{dst}, v3, 4, v{dst}
v_lshl_add_u32 v{dst}, v{vd}, 12, v{dst}""")
def p1_compute(slot=0):
    if "--nop1c" in sys.argv: return
    PK, PV_, PS, T0, DD_ = p1_regs(slot)
    u_addr(T0, DD_, 6)
    pr = lambda x: f"v[{x}:{x+1}]"
    for ee in range(2):
        for i in range(11):
            half(UK + 2*i, PK + 2*i + ee, 0); half(UK + 2*i + 1, PK + 2*i + ee, 1)
        for j in range(4):
            for c in range(2):
                half(UW + 2*j + c, PS + 4*ee + 2*c + (j >> 1), j & 1)
        for i in range(8):
            a = UA + 2*i
            e(f"v_pk_mul_f32 {pr(a)}, {pr(UK+2*i)}, {pr(UW+6)}")
            for j in (2, 1, 0):
                e(f"v_pk_fma_f32 {pr(a)}, {pr(UK+2*(i+3-j))}, {pr(UW+2*j)}, {pr(a)}")
            half(112, PV_ + 2*i + ee, 0); half(113, PV_ + 2*i + ee, 1)
            e(f"v_pk_mul_f32 {pr(a)}, {pr(a)}, v[112:113]")
        for c in range(2):
            r = (60, 116)[c]
            for m in range(4):
                e(f"v_cvt_pk_bf16_f32 v{r+m}, v{UA+2*(7-2*m)+c}, v{UA+2*(6-2*m)+c}")
            e(f"s_mov_b32 s60, {WS_U + 4096*(2*ee+c)}\nbuffer_store_dwordx4 v[{r}:{r+3}], v6, s[36:39], s60 offen sc1")
def p1_issue():
    srd(44, P_BK, 2359296)
    srd(52, P_BV, 2359296)
    srd(56, P_SK, 4608)
    l = L("p1a")
    e("s_sub_u32 s63, 3, s7\ns_lshl_b32 s63, s63, 6")
    p1_loads("s63")
    e(f"s_cmp_lg_u32 s7, 3\ns_cbranch_scc1 {l}\ns_mov_b64 exec, 0xffff")
    p1_loads("0x80", 1)
    e(f"s_mov_b64 exec, -1\n{l}:")
if P1C == 2: p1_issue()
e("L_h_b0:\ns_barrier")
def publish_kv():
    nl = L("nl")
    lds_add(C_KV, rtn=60)
    e(f"""s_cmp_lg_u32 s60, 3
s_cbranch_scc1 {nl}
v_mov_b32 v3, {L_MAXLO}
ds_read_b64 v[6:7], v3
s_lshl_b32 s60, s2, 5
s_add_u32 s60, s60, {WS_KVF}
v_mov_b32 v3, 0
s_waitcnt lgkmcnt(0)
v_add_f32 v7, v6, v7
v_mov_b32 v6, s6
s_mov_b64 exec, 1
buffer_store_dwordx2 v[6:7], v3, s[36:39], s60 offen sc1
s_mov_b64 exec, -1
{nl}:""")

def publish_u():
    nl = L("nl")
    lds_add(C_KVT, rtn=60)
    e(f"""s_cmp_lg_u32 s60, 1
s_cbranch_scc1 {nl}
v_mov_b32 v6, s6
s_lshl_b32 s60, s2, 5
s_add_u32 s60, s60, {WS_KVTF}
v_mov_b32 v3, 0
s_mov_b64 exec, 1
buffer_store_dword v6, v3, s[36:39], s60 offen sc1
s_mov_b64 exec, -1
{nl}:""")
e("s_cmp_lt_u32 s7, 2\ns_cbranch_scc1 L_h_kv")
if P1C == 2: e("s_cmp_eq_u32 s7, 3\ns_cbranch_scc1 L_h_w3\ns_waitcnt vmcnt(26)\ns_branch L_h_w4\nL_h_w3:\ns_waitcnt vmcnt(47)\nL_h_w4:")
else: e("s_waitcnt vmcnt(5)")
lds_add(C_W, also=C_A)
if P1C == 2: e("s_cmp_eq_u32 s7, 3\ns_cbranch_scc1 L_h_w5\ns_waitcnt vmcnt(21)\ns_branch L_h_w6\nL_h_w5:\ns_waitcnt vmcnt(42)\nL_h_w6:")
else: e("s_waitcnt vmcnt(0)")
get_tag()
publish_kv()
stamp(1)
e("s_cmp_eq_u32 s7, 3\ns_cbranch_scc1 L_h_p1")
srd(40, P_WQ, 663552)
for n in range(NDEF, 81): wslice_off(120 + n - NDEF, f"v_add_u32 v5, {64*n}, v1")
e("s_mul_i32 s63, s5, 144")
lds_spin(C_R, 2)
e("s_setprio 0")
for n in range(NDEF, 81):
    e(f"s_mov_b32 m0, {LW + 1024*n}\nbuffer_load_dwordx4 v{120 + n - NDEF}, s[40:43], s63 offen lds")
e("s_setprio 2")
if P1C == 2:
    e("s_waitcnt vmcnt(28)")
    p1_compute()
    e("s_waitcnt vmcnt(4)")
    lds_add(C_B)
    e("s_branch L_h_p1b")
else:
    e("s_waitcnt vmcnt(0)")
    lds_add(C_B)
e("L_h_p1:")
if P1C != 2:
    if P1C == 3: lds_spin(C_G, 2, sleep=2)
    else: lds_spin(C_B if P1C else C_A, 9 if P1C else 12, sleep=2)
    stamp(2)
    p1_issue()
e(f"""v_lshlrev_b32 v6, 4, v1
s_and_b32 s60, s7, 1
s_lshl_b32 s60, s60, 10
v_add_u32 v6, s60, v6
v_mov_b32 v60, -1
v_mov_b32 v61, -1
v_mov_b32 v62, -1
v_mov_b32 v63, -1
s_mov_b32 s63, s2
L_h_ym:
s_cmp_ge_u32 s63, 576
s_cselect_b32 s61, {WS_Y2 + 2048 - 576*4096}, {0}
s_cmp_ge_u32 s63, 1152
s_cselect_b32 s61, {WS_Y + 2048 - 1152*4096}, s61
s_cmp_lt_u32 s63, 576
s_cselect_b32 s61, {WS_Y}, s61
s_lshl_b32 s60, s63, 12
s_add_u32 s60, s60, s61
s_add_u32 s63, s63, 256
buffer_store_dwordx4 v[60:63], v6, s[36:39], s60 offen sc1
s_cmp_lt_u32 s63, 1728
s_cbranch_scc1 L_h_ym""")
e("s_waitcnt vmcnt(6)")
stamp(10)
p1_compute()
e("s_cmp_lg_u32 s7, 3\ns_cbranch_scc1 L_h_p1b\ns_mov_b64 exec, 0xffff")
p1_compute(1)
e("s_mov_b64 exec, -1\nL_h_p1b:\ns_waitcnt vmcnt(0)")
stamp(11)
publish_u()
e(f"""s_cmp_lg_u32 s7, 3
s_cbranch_scc1 L_h_epi""")
lds_spin(C_T, 1, sleep=8)
stamp(3)
poll_all(WS_KVTF, 8)
lds_add(C_U)
stamp(6)
srd(40, P_WO, 663552)
for n in range(9): wslice_off(16 + n, f"v_add_u32 v5, {64*n}, v1")
lds_spin(C_P, 8, sleep=16)
e(f"""s_mul_i32 s63, s5, 144
s_mov_b32 s60, 0
L_wo:""")
for n in range(9):
    e(f"s_add_u32 m0, s60, {1024*n}\ns_sleep {opt('wosleep', 1)}\nbuffer_load_dwordx4 v{16+n}, s[40:43], s63 offen lds")
e(f"""s_add_u32 s60, s60, 9216
s_add_u32 s63, s63, {64*1152}
s_cmp_lt_u32 s60, 82944
s_cbranch_scc1 L_wo
s_waitcnt vmcnt(0)""")
lds_add(C_WO)
stamp(7)
e("s_branch L_h_epi")

e("L_h_kv:")
XAD, WAD = 8, 14
e(f"""v_lshrrev_b32 v6, 2, v4
v_lshl_add_u32 v6, v5, 3, v6
v_mul_u32_u24 v6, 48, v6
v_and_b32 v7, 3, v4
v_lshlrev_b32 v7, 3, v7
s_cmp_eq_u32 s7, 1
s_cselect_b64 s[64:65], -1, 0
v_cndmask_b32 v7, v7, 32, s[64:65]
v_add_u32 v{WAD}, v6, v7
v_add_u32 v{WAD}, {LWKV}, v{WAD}
s_and_b32 s60, s5, 3
s_lshl_b32 s60, s60, 4
v_add_u32 v6, s60, v4
v_bfe_u32 v7, v6, 1, 3
v_mul_u32_u24 v3, 640, v6""")
for j in range(2):
    e(f"v_add_u32 v15, {4*j}, v5\nv_xor_b32 v15, v15, v7\nv_lshl_add_u32 v{XAD+j}, v15, 4, v3")
e("v_lshlrev_b32 v3, 9, v6")
for j in range(4):
    e(f"v_add_u32 v15, {4*j}, v5\nv_xor_b32 v15, v15, v4\nv_lshl_add_u32 v{XAD+2+j}, v15, 4, v3")
e(f"""s_lshl_b32 s60, s4, 1
s_bfe_u32 s61, s5, 0x10001
s_add_u32 s60, s60, s61
s_mul_i32 s60, s60, {TS}
s_add_u32 s66, s60, {WS_KV}
s_and_b32 s61, s5, 1
s_cmp_ge_u32 s5, 4
s_cbranch_scc1 L_h_av
s_lshl_b32 s60, s61, 4
v_add_u32 v6, s60, v4
v_lshlrev_b32 v7, 4, v6
v_lshl_add_u32 v16, v5, 3, v7
v_add_u32 v17, 4, v16
v_lshlrev_b32 v3, 2, v6
v_add_u32 v3, 1024, v3
v_add_u32 v15, 512, v7
v_cmp_eq_u32 vcc, 2, v5
v_cndmask_b32 v16, v16, v3, vcc
v_cndmask_b32 v17, v17, v15, vcc
v_add_u32 v3, 4, v15
v_add_u32 v6, 8, v15
v_cmp_eq_u32 vcc, 3, v5
v_cndmask_b32 v16, v16, v3, vcc
v_cndmask_b32 v17, v17, v6, vcc
v_add_u32 v15, 12, v15
v_cndmask_b32 v16, v16, v15, s[64:65]
s_branch L_h_adone
L_h_av:
s_mul_i32 s61, s61, 576
s_lshl_b32 s60, s7, 8
s_add_u32 s61, s61, s60
v_lshrrev_b32 v6, 1, v5
v_and_b32 v7, 1, v5
v_mul_u32_u24 v7, 288, v7
v_lshl_add_u32 v7, v6, 3, v7
v_lshl_add_u32 v7, v4, 4, v7
v_add_u32 v16, s61, v7
v_add_u32 v16, 1152, v16
v_lshlrev_b32 v6, 3, v6
v_add_u32 v17, 2304, v6
L_h_adone:
s_waitcnt vmcnt(0)""")
get_tag()
lds_add(C_W, also=C_A)
lds_spin(C_W, 4, sleep=0)
stamp(10)
WR, XF, DK, KD = 64, 96, 92, 5
def kvread(s):
    r = WR + 4*(s % KD); x = XF + 4*(s % KD)
    e(f"ds_read_b64_tr_b16 v[{r}:{r+1}], v{WAD} offset:{1536*s}\nds_read_b64_tr_b16 v[{r+2}:{r+3}], v{WAD} offset:{1536*s + 192}")
    if s < 10: e(f"ds_read_b128 v[{x}:{x+3}], v{XAD + (s & 1)} offset:{LXA + 128*(s >> 1)}")
    else: e(f"ds_read_b128 v[{x}:{x+3}], v{XAD + 2 + ((s-10) & 3)} offset:{LXB + 256*((s-10) >> 2)}")
def kvproj(kside):
    for s in range(KD): kvread(s)
    for s in range(18):
        left = min(KD - 1, 17 - s)
        f = WR + 4*(s % KD); x = XF + 4*(s % KD)
        e(f"s_waitcnt lgkmcnt({3*left})")
        a, b = (f, x) if kside else (x, f)
        e(f"v_mfma_f32_16x16x32_bf16 v[{DK}:{DK+3}], v[{a}:{a+3}], v[{b}:{b+3}], {'0' if s == 0 else f'v[{DK}:{DK+3}]'}")
        if s + KD < 18: kvread(s + KD)
e("s_cmp_ge_u32 s5, 4\ns_cbranch_scc1 L_h_vproj")
kvproj(True)
e(f"""v_cvt_pk_bf16_f32 v64, v{DK}, v{DK+1}
v_cvt_pk_bf16_f32 v65, v{DK+2}, v{DK+3}
v_mul_f32 v66, v{DK}, v{DK}
v_fmac_f32 v66, v{DK+1}, v{DK+1}
s_cmp_eq_u32 s7, 1
s_cbranch_scc1 L_h_stk2
buffer_store_dword v64, v16, s[36:39], s66 offen sc1
buffer_store_dword v65, v17, s[36:39], s66 offen sc1
v_fmac_f32 v66, v{DK+2}, v{DK+2}
v_fmac_f32 v66, v{DK+3}, v{DK+3}
v_mov_b32 v67, v66
v_permlane32_swap_b32 v66, v67
v_add_f32 v66, v66, v67
v_mov_b32 v67, v66
v_permlane16_swap_b32 v66, v67
v_add_f32 v66, v66, v67
v_mov_b32 v3, {L_MAXLO}
s_branch L_h_stmax
L_h_stk2:
s_mov_b64 exec, 0xffff
buffer_store_dword v64, v16, s[36:39], s66 offen sc1
s_mov_b64 exec, -1
v_mov_b32 v3, {L_MAXHI}
L_h_stmax:""")
for k in (8, 4, 2, 1): e(f"v_max_f32_dpp v66, v66, v66 row_ror:{k} row_mask:0xf bank_mask:0xf")
e("ds_write_b32 v3, v66\ns_branch L_h_std\nL_h_vproj:")
kvproj(False)
e(f"""v_cvt_pk_bf16_f32 v64, v{DK}, v{DK+1}
v_cvt_pk_bf16_f32 v65, v{DK+2}, v{DK+3}
s_cmp_eq_u32 s7, 0
s_cbranch_scc1 L_h_stv
v_mov_b32 v3, 0x3f803f80
v_cmp_eq_u32 vcc, 2, v4
v_cndmask_b32 v16, v16, v17, vcc
v_cndmask_b32 v64, v64, v3, vcc
v_cndmask_b32 v65, v65, v3, vcc
v_cmp_gt_u32 vcc, 3, v4
s_mov_b64 exec, vcc
L_h_stv:
buffer_store_dwordx2 v[64:65], v16, s[36:39], s66 offen sc1
s_mov_b64 exec, -1
L_h_std:""")
stamp(11)
lds_add(C_R)
e("s_waitcnt vmcnt(0)")
publish_kv()
stamp(12)
e("s_cmp_lg_u32 s7, 0\ns_cbranch_scc1 L_h_wait")
lds_spin(C_B if opt("pollc", 0) else C_A, 9 if opt("pollc", 0) else 12, sleep=2)
stamp(2)
poll_all(WS_KVF, opt("pollsleep", 6))
lds_add(C_F)
e("s_branch L_h_go\nL_h_wait:")
lds_spin(C_F, 1, sleep=2)
e("L_h_go:")
stamp(3)
NC0 = 20
e(f"""s_cmp_lg_u32 s7, 0
s_cbranch_scc1 L_h_nokc
v_max_f32 v9, v9, v11
v_max3_f32 v9, v9, v13, v15""")
for k in (8, 4, 2, 1):
    e(f"v_max_f32_dpp v9, v9, v9 row_ror:{k} row_mask:0xf bank_mask:0xf")
for sw in ("v_permlane16_swap_b32", "v_permlane32_swap_b32"):
    e(f"v_mov_b32 v13, v9\n{sw} v9, v13\nv_max_f32 v9, v9, v13")
e(f"""v_sqrt_f32 v9, v9
v_mov_b32 v10, 1.0
v_mov_b32 v3, {L_KC}
v_mul_f32 v9, {f32(1.02)}, v9
v_cvt_pk_bf16_f32 v10, v9, v10
v_mov_b32 v11, s6
ds_write_b64 v3, v[10:11]
s_cmp_lg_u32 s2, 0
s_cbranch_scc1 L_h_nokc
v_mov_b32 v3, 0
v_mov_b32 v6, s6
s_mov_b64 exec, 1
buffer_store_dword v6, v3, s[36:39], 0 offen sc1
s_mov_b64 exec, -1
L_h_nokc:""")
def kv_dma(lo, hi):
    l = L("kvdma")
    e(f"""s_lshl_b32 s60, s7, 10
s_add_u32 s60, s60, {lo}
{l}:
s_mov_b32 m0, s60
s_add_u32 s61, s60, {WS_KV}
s_add_u32 s60, s60, 2048
buffer_load_dwordx4 v4, s[36:39], s61 offen sc1 lds
s_cmp_lt_u32 s60, {hi}
s_cbranch_scc1 {l}""")
e("v_lshlrev_b32 v4, 4, v1")
lds_spin(C_Q1, 8, sleep=0)
stamp(4)
kv_dma(0, 2048*NC0)
lds_add(C_G)
e("s_waitcnt vmcnt(0)")
lds_add(C_K0)
stamp(5)
lds_spin(C_Q, 8, sleep=1)
kv_dma(2048*NC0, 64*TS)
e("s_waitcnt vmcnt(0)")
lds_add(C_K)
stamp(6)
e("s_cmp_lg_u32 s7, 0\ns_cbranch_scc1 L_h_epi")
srd(40, P_WO, 663552)
e(f"""v_lshlrev_b32 v4, 7, v1
s_lshr_b32 s60, s2, 3
s_mul_i32 s60, s60, {162*128}
buffer_load_dword v8, v4, s[40:43], s60 offen
s_add_u32 s60, s60, 8192
buffer_load_dword v9, v4, s[40:43], s60 offen
s_add_u32 s60, s60, 8192
s_mov_b32 exec_hi, 3
buffer_load_dword v10, v4, s[40:43], s60 offen
s_branch L_h_end""")
e("L_h_epi:\ns_sub_u32 s70, 3, s7\ns_lshl_b32 s70, s70, 6")
srd(40, P_BQ, 2359296)
srd(48, P_OUT, 4718592)
srd(52, P_WS, WS_SIZE)
e("s_cmp_ge_u32 s4, 16\ns_cselect_b32 s54, s54, 0")
lds_spin(C_U, 1, sleep=16)
e(f"""v_add_u32 v6, s70, v1
v_and_b32 v7, 7, v6
s_lshl_b32 s60, s4, 6
v_lshl_add_u32 v56, v7, 3, s60
v_lshrrev_b32 v6, 3, v6
s_mul_i32 s60, s5, 72
v_lshl_add_u32 v57, v6, 2, s60""")
EU, EY, EZ, EQ, ED = 64, 80, 96, 112, 24
e(f"""s_cmp_eq_u32 s7, 1
s_cselect_b64 s[66:67], 0xffff, -1
s_mov_b64 exec, s[66:67]
v_lshlrev_b32 v7, 1, v57
v_mul_u32_u24 v6, 1152, v56
v_add_u32 v6, v6, v7""")
for i in range(8):
    e(f"s_mov_b32 s60, {1152*i}\nbuffer_load_dwordx2 v[{EQ+2*i}:{EQ+2*i+1}], v6, s[40:43], s60 offen")
e(f"v_mul_u32_u24 v59, 2304, v56\nv_add_u32 v59, v59, v7")
e(f"""v_lshlrev_b32 v60, 1, v56
v_lshl_add_u32 v60, v57, 12, v60
s_mov_b64 exec, -1
""")
lds_spin(C_S, opt("sn", 4), sleep=8)
e(f"s_mov_b64 exec, s[66:67]\ns_mov_b32 s62, {SPIN}\nL_e_poll:")
for c in range(4):
    e(f"s_mov_b32 s60, {WS_Y + 4096*c}\nbuffer_load_dwordx4 v[{EY+4*c}:{EY+4*c+3}], v60, s[36:39], s60 offen sc1")
    e(f"s_mov_b32 s60, {WS_Y2 + 4096*c}\nbuffer_load_dwordx4 v[{EZ+4*c}:{EZ+4*c+3}], v60, s[52:55], s60 offen sc1")
e(f"s_waitcnt vmcnt(0)\nv_max_u32 v3, v{EY}, v{EY+1}")
for r in range(EY + 2, EY + 32, 2): e(f"v_max3_u32 v3, v3, v{r}, v{r+1}")
e(f"""v_cmp_eq_u32 vcc, -1, v3
s_sub_u32 s62, s62, 1
s_cbranch_scc1 L_e_go
s_cbranch_vccz L_e_go
s_sleep 16
s_branch L_e_poll
L_e_go:
s_setprio {opt("eprio", 0)}""")
stamp(8)
def gate(two):
    for i in range(8):
        for ee in range(2):
            half(38, EY + 8*ee + (i >> 1), i & 1); half(39, EY + 8*ee + 4 + (i >> 1), i & 1)
            if two:
                half(36, EZ + 8*ee + (i >> 1), i & 1); half(37, EZ + 8*ee + 4 + (i >> 1), i & 1)
                e("v_pk_add_f32 v[38:39], v[38:39], v[36:37]")
            half(36, EQ + 2*i + ee, 0); half(37, EQ + 2*i + ee, 1)
            e("v_pk_mul_f32 v[38:39], v[38:39], v[36:37]")
            e(f"v_cvt_pk_bf16_f32 v{40+2*i+ee}, v38, v39")
        e(f"s_mov_b32 s60, {2304*i + 1152}\nbuffer_store_dwordx2 v[{40+2*i}:{41+2*i}], v59, s[48:51], s60 offen")
e("s_cmp_lt_u32 s4, 16\ns_cbranch_scc1 L_e_one")
gate(True)
e("s_branch L_h_end\nL_e_one:")
gate(False)
e("L_h_end:")
stamp(9)
stamp_flush()
e("s_endpgm")

S0, S1, PP, OO, K1, K2, V0, V1, Q1, Q2 = 8, 24, 40, 48, 64, 68, 72, 76, 80, 84
AK1, AK2, AV0, AV1, QN = 86, 87, 88, 89, 90
FD = 8
YA, CA, CF, HS, SO, SH, SL, AH, AFV, YAD = 96, 112, 120, 152, 157, 158, 159, 160, 161, 162
e("L_att:")
e(f"""s_lshr_b32 s66, s3, 1
s_and_b32 s67, s5, 3
v_lshlrev_b32 v4, 7, v1
s_waitcnt lgkmcnt(0)""")
stamp(0)
srd(44, P_WQ, 663552)
e("s_barrier")
stamp(1)
e(f"""s_mov_b32 s70, 1
s_cmp_eq_u32 s66, s67
s_cbranch_scc1 L_pf3
s_sub_u32 s92, s3, 2
s_cmp_gt_u32 s66, s67
s_cselect_b32 s92, s92, s3
s_lshl_b32 s93, s4, 3
s_add_u32 s93, s93, s5
s_mul_i32 s93, s93, 9216
s_cmp_ge_u32 s92, 3
s_cselect_b32 s91, 3, 0
s_sub_u32 s91, s92, s91
s_cmp_eq_u32 s91, 0
s_cselect_b32 s48, s{P_X}, s{P_BK}
s_cselect_b32 s49, s{P_X+1}, s{P_BK+1}
s_cmp_eq_u32 s91, 2
s_cselect_b32 s48, s{P_BV}, s48
s_cselect_b32 s49, s{P_BV+1}, s49
s_mov_b32 s50, 2359296
s_mov_b32 s51, 0x00020000
s_cmp_ge_u32 s92, 3
s_cbranch_scc1 L_pf2
s_lshr_b32 s90, s2, 3
s_mul_i32 s90, s90, {162*128}
s_lshl_b32 s91, s92, 13
s_add_u32 s90, s90, s91
s_cmp_eq_u32 s92, 2
s_cselect_b32 exec_hi, 3, -1
buffer_load_dword v164, v4, s[44:47], s90 offen
s_mov_b64 exec, 0xff
s_add_u32 s93, s93, 8192
L_pf2:
{"" if opt("kvpf", 0) else "s_cmp_eq_u32 s48, s8"}
{"" if opt("kvpf", 0) else "s_cbranch_scc0 L_pf4"}
buffer_load_dword v165, v4, s[48:51], s93 offen
L_pf4:
s_mov_b64 exec, -1
""")
e(f"""s_branch L_nopf
L_pf3:
s_getpc_b64 s[90:91]
L_pc:
s_sub_u32 s90, s90, L_pc-{NAME}_kernel
s_subb_u32 s91, s91, 0
s_and_b32 s92, s3, 1
s_mul_i32 s92, s92, 24576
v_add_u32 v4, s92, v4
s_mov_b32 s70, 0""")
for k in range(3):
    e(f"v_min_u32 v5, L_end-{NAME}_kernel, v4\nglobal_load_dword v{164+(k&1)}, v5, s[90:91]\nv_add_u32 v4, 8192, v4")
e("L_nopf:")
DA = 120
M40 = magic(40, 320)
e("s_lshl_b32 s62, s3, 2\ns_lshl_b32 s64, s3, 3")
for n in range(5):
    e(f"""v_add_u32 v5, {64*n}, v1
v_mul_u32_u24 v6, {M40}, v5
v_lshrrev_b32 v6, 16, v6
v_mul_u32_u24 v7, 40, v6
v_sub_u32 v5, v5, v7
v_lshrrev_b32 v7, 1, v6
v_add_u32 v7, s62, v7
v_and_b32 v7, 7, v7
v_xor_b32 v5, v5, v7
v_mul_u32_u24 v6, 1152, v6
v_lshl_add_u32 v{DA+n}, v5, 4, v6""")
for m in range(6): wslice_off(DA + 9 + m, f"v_add_u32 v5, {512*m}, v0")
e(f"""s_lshl_b32 s60, s4, 6
s_add_u32 s60, s60, s64
s_mul_i32 s60, s60, 1152
s_add_u32 s65, s60, 640
s_mul_i32 s61, s3, 5120
s_lshl_b32 s62, s3, 10
s_mul_i32 s63, s5, 144
""")
srd(36, P_WS, WS_SIZE)
srd(40, P_X, 2359296)
def xa_dma(n): e(f"s_add_u32 m0, s61, {LXA + 1024*n}\nbuffer_load_dwordx4 v{DA+n}, s[40:43], s60 offen lds")
def xb_dma(n): e(f"s_add_u32 m0, s64, {LXB + 1024*n}\nbuffer_load_dwordx4 v{DA+5+n}, s[40:43], s65 offen lds")
def wa_dma(m): e(f"s_add_u32 m0, s62, {LW + 8192*m}\nbuffer_load_dwordx4 v{DA+9+m}, s[44:47], s63 offen lds")
e("s_cmp_eq_u32 s70, 0\ns_cbranch_scc1 L_a_wq")
for n in range(5): xa_dma(n)
e("L_a_wq:")
for m in range(5): wa_dma(m)
e("s_cmp_ge_u32 s3, 5\ns_cbranch_scc1 L_a_s5")
wa_dma(5)
e("L_a_s5:")
wslice_off(DA + 15, f"v_add_u32 v5, {45*64}, v0")
e(f"""s_add_u32 m0, s62, {LW + 45*1024}
s_lshl_b32 s92, s3, 3
buffer_load_dwordx4 v{DA+15}, s[44:47], s63 offen lds
s_cmp_eq_u32 s70, 0
s_cbranch_scc1 L_a_noxb
s_lshl_b32 s64, s3, 12""")
for n in range(4):
    e(f"""v_lshrrev_b32 v6, 5, v1
v_add_u32 v6, {2*n}, v6
v_add_u32 v7, s92, v6
v_and_b32 v7, 15, v7
v_and_b32 v5, 31, v1
v_xor_b32 v5, v5, v7
v_mul_u32_u24 v6, 1152, v6
v_lshl_add_u32 v{DA+5+n}, v5, 4, v6""")
    xb_dma(n)
e("L_a_noxb:")
if opt("spf", 0):
    e(f"""s_lshl_b32 s60, s4, 6
s_add_u32 s60, s60, s3
s_mul_i32 s60, s60, 1152
s_mul_i32 s61, s5, 144
s_add_u32 s60, s60, s61""")
    for r in range(8):
        e(f"""s_load_dword s97, s[{P_BK}:{P_BK+1}], s60
s_load_dword s97, s[{P_BV}:{P_BV+1}], s60
s_add_u32 s61, s60, 128
s_load_dword s97, s[{P_BK}:{P_BK+1}], s61
s_load_dword s97, s[{P_BV}:{P_BV+1}], s61
s_add_u32 s60, s60, 9216""")
AW0, AW1, AXA, AXB = 64, 65, 66, 70
e(f"""v_lshrrev_b32 v4, 5, v1
v_bfe_u32 v5, v1, 2, 2
v_lshl_add_u32 v5, v4, 3, v5
v_mul_u32_u24 v5, 144, v5
v_and_b32 v6, 1, v1
v_bfe_u32 v7, v1, 1, 1
v_bfe_u32 v3, v1, 4, 1
v_lshl_add_u32 v7, v3, 1, v7
s_lshr_b32 s60, s3, 1
s_and_b32 s61, s60, 1
s_mul_i32 s62, s60, 36
s_lshl_b32 s64, s61, 2
s_sub_u32 s62, s62, s64
s_add_u32 s62, s62, {LW}
s_lshl_b32 s64, s61, 3
s_add_u32 s64, s64, 16
v_mul_u32_u24 v6, s64, v6
v_lshl_add_u32 v6, v7, 3, v6
v_add3_u32 v{AW0}, v5, v6, s62
v_add_u32 v{AW1}, {18*2304}, v{AW0}
s_and_b32 s62, s3, 1
s_lshl_b32 s62, s62, 5
v_and_b32 v5, 31, v1
v_add_u32 v5, s62, v5
v_bfe_u32 v6, v5, 1, 3
v_mul_u32_u24 v3, 640, v5""")
for j in range(4):
    e(f"v_add_u32 v7, {2*j}, v4\nv_xor_b32 v7, v7, v6\nv_lshl_add_u32 v{AXA+j}, v7, 4, v3")
e("v_and_b32 v6, 15, v5\nv_lshlrev_b32 v3, 9, v5")
for j in range(8):
    e(f"v_add_u32 v7, {2*j}, v4\nv_xor_b32 v7, v7, v6\nv_lshl_add_u32 v{AXB+j}, v7, 4, v3")
e(f"""s_mov_b32 s64, 0
s_mov_b32 s65, -1
s_cmp_eq_u32 s61, 0
s_cselect_b32 s66, 0, -1
s_cselect_b32 s67, -1, 0
v_lshlrev_b32 v{AK1}, 4, v1
v_and_b32 v5, 31, v1
v_lshlrev_b32 v{AK2}, 2, v5
v_add_u32 v{AK2}, 1024, v{AK2}
v_mul_u32_u24 v6, 288, v4
v_lshl_add_u32 v6, v5, 4, v6
v_add_u32 v6, 1152, v6
v_add_u32 v7, 576, v6
v_and_b32 v3, 27, v5
v_cmp_eq_u32 vcc, 18, v3
v_mov_b32 v3, {LFAR}
v_mov_b32 v8, 2304
v_cndmask_b32 v3, v3, v8, vcc
v_cmp_gt_u32 vcc, 18, v5
v_cndmask_b32 v{AV0}, v3, v6, vcc
v_cndmask_b32 v{AV1}, v3, v7, vcc
v_mov_b32 v92, 1""")
for r in range(16): e(f"v_mov_b32 v{OO+r}, 0")
for r in range(16): e(f"v_mov_b32 v{YA+r}, 0")
e(f"""s_lshl_b32 s90, s3, 8
s_add_u32 s90, s90, s2
s_cmp_ge_u32 s90, 576
s_cselect_b32 s91, 1, 0
s_cmp_ge_u32 s90, 1152
s_cselect_b32 s91, 2, s91
s_mul_i32 s60, s91, 576
s_sub_u32 s92, s90, s60
s_min_u32 s92, s92, 575
s_cmp_lt_u32 s90, 1728
s_cselect_b32 s95, s3, 0
s_cselect_b32 s96, 0, s3
s_lshl_b32 s60, s92, 12""")
srd_off(40, P_H, "s60", 4096)
e(f"s_add_u32 s61, s60, {WS_U}")
srd_off(44, P_WS, "s61", 2048)
e(f"s_add_u32 s61, s61, 2048")
srd_off(52, P_WS, "s61", 2048)
e(f"""s_cmp_eq_u32 s91, 1
s_cselect_b32 s61, {WS_Y2-WS_Y}, 0
s_cselect_b32 s62, 2048, 0
s_sub_u32 s62, s62, 64
s_add_u32 s93, s60, s61
s_add_u32 s93, s93, {WS_Y}
s_cmp_eq_u32 s91, 0
s_cselect_b32 s61, 0, 2048
s_add_u32 s93, s93, s61
s_cmp_eq_u32 s91, 2
s_cselect_b32 s94, 0, 1024
s_mul_i32 s60, s3, 1088
s_add_u32 s60, s60, {LCONV}
v_lshlrev_b32 v{SO}, 4, v5
v_add_u32 v{SO}, s62, v{SO}
v_mov_b32 v3, 0x05040302
v_mov_b32 v6, 0x07060504
v_cndmask_b32 v{SH}, v3, v6, s[64:65]
v_lshlrev_b32 v3, 4, v5
v_mul_u32_u24 v6, 576, v4
v_add3_u32 v{SL}, v3, v6, s60
v_lshrrev_b32 v3, 1, v5
v_lshlrev_b32 v3, 2, v3
v_lshl_add_u32 v3, v4, 4, v3
v_and_b32 v6, 1, v5
v_mul_u32_u24 v6, 576, v6
v_add3_u32 v{AH}, v3, v6, s60
v_sub_u32 v3, 31, v5
v_lshlrev_b32 v3, 5, v3
v_lshl_add_u32 v{AFV}, v4, 4, v3
v_lshlrev_b32 v3, 6, v5
v_lshl_add_u32 v{YAD}, v4, 4, v3
s_lshl_b32 s60, s92, 1
v_mov_b32 v95, s60""")
srd(56, P_D, 1152)
e(f"""s_lshl_b32 s60, s4, 2
s_and_b32 s61, s3, 1
s_lshl_b32 s61, s61, 1
s_add_u32 s60, s60, s61
s_mul_i32 s60, s60, 18432
s_add_u32 s60, s60, {WS_O}
s_lshr_b32 s61, s3, 1
s_lshl_b32 s68, s5, 2
s_add_u32 s61, s61, s68
s_lshl_b32 s68, s61, 9
s_add_u32 s68, s68, s60
s_lshl_b32 s69, s5, 8
s_add_u32 s69, s69, s60
s_lshr_b32 s61, s3, 1
s_lshl_b32 s61, s61, 2
s_add_u32 s69, s69, s61
s_add_u32 s69, s69, 16384
v_bfe_u32 v5, v1, 4, 1
v_mul_u32_u24 v7, 18432, v5
v_and_b32 v5, 15, v1
v_lshl_add_u32 v167, v5, 4, v7
v_lshrrev_b32 v6, 5, v1
v_lshl_add_u32 v166, v6, 8, v167
""")
def hload():
    e(f"""v_add_u32 v163, 16, v{SO}
buffer_load_dwordx4 v[{HS}:{HS+3}], v{SO}, s[40:43], 0 offen
buffer_load_dword v{HS+4}, v163, s[40:43], 0 offen
v_add_u32 v{SO}, 448, v{SO}""")
def hperm():
    for i in range(4): e(f"v_perm_b32 v{HS+i}, v{HS+i+1}, v{HS+i}, v{SH}")
def hwrite(): e(f"ds_write_b128 v{SL}, v[{HS}:{HS+3}]")
def fload(s):
    if "--nof" in sys.argv: return
    r = CF + 4*(s % FD); sr = (44, 52)[s & 1]
    e(f"buffer_load_dwordx4 v[{r}:{r+3}], v{AFV}, s[{sr}:{sr+3}], s94 offen offset:{32*(s >> 1)} {'' if '--fplain' in sys.argv else 'sc1'}")
def aload(s):
    if "--noa" in sys.argv: return
    r = CA + 4*(s % 2); o = 8*(s % 14)
    e(f"ds_read2_b32 v[{r}:{r+1}], v{AH} offset0:{o} offset1:{o+1}")
    e(f"ds_read2_b32 v[{r+2}:{r+3}], v{AH} offset0:{o+2} offset1:{o+3}")
FA, FB = 24, 36
def qread(s):
    a = FA + 4*(s % 3); b = FB + 4*(s % 3)
    base = AW0 if s < 18 else AW1
    off = 2304 * (s % 18)
    e(f"ds_read_b64_tr_b16 v[{a}:{a+1}], v{base} offset:{off}\nds_read_b64_tr_b16 v[{a+2}:{a+3}], v{base} offset:{off+576}")
    if s < 20: e(f"ds_read_b128 v[{b}:{b+3}], v{AXA + (s & 3)} offset:{LXA + 128*(s >> 2)}")
    else: e(f"ds_read_b128 v[{b}:{b+3}], v{AXB + ((s-20) & 7)} offset:{LXB + 256*((s-20) >> 3)}")
def qsteps(lo, hi):
    qread(lo); qread(lo + 1)
    for s in range(lo, hi):
        if s + 2 < hi: qread(s + 2)
        left = min(2, hi - 1 - s)
        a = FA + 4*(s % 3); b = FB + 4*(s % 3)
        e(f"s_waitcnt lgkmcnt({3*left})")
        e(f"v_mfma_f32_32x32x16_bf16 v[{S0}:{S0+15}], v[{a}:{a+3}], v[{b}:{b+3}], {'0' if s == 0 else f'v[{S0}:{S0+15}]'}")
e("s_cmp_eq_u32 s70, 0\ns_cbranch_scc1 L_a_wa1\ns_waitcnt vmcnt(5)\ns_branch L_a_wa2\nL_a_wa1:\ns_waitcnt vmcnt(1)\nL_a_wa2:")
lds_add(C_A)
lds_spin(C_A, 12)
stamp(2)
e("s_setprio 3")
qsteps(0, 20)
lds_add(C_Q1)
e("s_waitcnt vmcnt(0)")
lds_add(C_B)
lds_spin(C_B, 9)
stamp(13)
hload()
e("buffer_load_ushort v94, v95, s[56:59], 0 offen")
qsteps(20, 36)
lds_add(C_Q)
CQ = 18 ** -0.5 * math.log2(math.e)
e(f"s_mov_b32 s60, {f32(CQ)}")
for r in range(4): e(f"v_mov_b32 v{PP+4+r}, 0")
for r in range(12): e(f"v_mul_f32 v{S0+r}, s60, v{S0+r}")
for i in range(6):
    e(f"v_cvt_pk_bf16_f32 v{24+i}, v{S0+2*i}, v{S0+2*i+1}")
    e(f"v_mul_f32 v{32+i}, v{S0+2*i}, v{S0+2*i}")
    e(f"v_fmac_f32 v{32+i}, v{S0+2*i+1}, v{S0+2*i+1}")
for i in range(4): e(f"v_cndmask_b32 v{Q1+i}, v{24+i}, v{25+i}, s[66:67]")
e(f"""v_cndmask_b32 v{Q2}, v28, v29, s[66:67]
v_cndmask_b32 v{Q2}, v{Q2}, 0, s[64:65]
v_cndmask_b32 v40, v32, v36, s[66:67]
v_cndmask_b32 v41, v36, v37, s[66:67]
v_cndmask_b32 v41, v41, 0, s[64:65]
v_add_f32 v40, v40, v41
v_add_f32 v40, v40, v33
v_add_f32 v40, v40, v34
v_add_f32 v40, v40, v35
v_mov_b32 v41, v40
v_permlane32_swap_b32 v40, v41
v_add_f32 v40, v40, v41
v_sqrt_f32 v{QN}, v40
v_mov_b32 v41, {f32(SHIFT)}
v_mov_b32 v7, {L_KC}
v_cvt_pk_bf16_f32 v{Q2+1}, -v{QN}, v41
v_cndmask_b32 v{Q2+1}, v{Q2+1}, 0, s[64:65]
v_mov_b32 v4, {f32(THR)}""")
stamp(3)
lds_spin(C_K0, 2, sleep=0)
stamp(5)
cstamp(14)
def mm_qk1(sn): e(f"v_mfma_f32_32x32x16_bf16 v[{sn}:{sn+15}], v[{K1}:{K1+3}], v[{Q1}:{Q1+3}], 0")
def mm_qk2(sn): e(f"v_mfma_f32_32x32x8_bf16 v[{sn}:{sn+15}], v[{K2}:{K2+1}], v[{Q2}:{Q2+1}], v[{sn}:{sn+15}]")
def mm_pv(v, p): e(f"v_mfma_f32_32x32x16_bf16 v[{OO}:{OO+15}], v[{v}:{v+3}], v[{p}:{p+3}], v[{OO}:{OO+15}]")
def rd_k1(t): e(f"ds_read_b128 v[{K1}:{K1+3}], v{AK1} offset:{TS*t}")
def rd_k2(t): e(f"ds_read_b32 v{K2}, v{AK2} offset:{TS*t}")
def rd_v0(t): e(f"ds_read_b128 v[{V0}:{V0+3}], v{AV0} offset:{TS*t}")
def rd_v1(t): e(f"ds_read_b128 v[{V1}:{V1+3}], v{AV1} offset:{TS*t}")
e(f"ds_read_b32 v{K2+1}, v7\nds_read_b32 v6, v7 offset:4")
rd_k1(0); rd_k2(0); rd_v1(0)
e(f"""s_waitcnt lgkmcnt(3)
v_readfirstlane_b32 s6, v6
v_lshlrev_b32 v5, 16, v{K2+1}
v_mul_f32 v5, v5, v{QN}
v_cmp_nle_f32 vcc, v5, v4
s_cbranch_vccnz L_truemax
L_pass:
s_waitcnt lgkmcnt(0)""")
mm_qk1(S0); mm_qk2(S0)
rd_k1(1); rd_v1(0); rd_k2(1); rd_v0(0)
e("s_mov_b32 s60, 0\ns_mov_b32 s71, 0\ns_setprio 0\ns_nop 7")
def prio(p):
    if "--noprio" in sys.argv: return
    l = L("pr")
    e(f"s_bitcmp1_b32 s95, 2\ns_cbranch_scc0 {l}\ns_setprio {p}\n{l}:")
def bump(n):
    for a in (AK1, AK2, AV0, AV1): e(f"v_add_u32 v{a}, {TS*n}, v{a}")
e(".p2align 6")
e("L_loop:")
for t in range(8):
    s = (S0, S1)[t & 1]; sn = (S0, S1)[(t + 1) & 1]
    ex = lambda i: e(f"v_exp_f32 v{s+i}, v{s+i}")
    cv = lambda i: e(f"v_cvt_pk_bf16_f32 v{PP+i}, v{s+2*i}, v{s+2*i+1}")
    if t == 0: e("s_bitcmp1_b32 s3, 2\ns_cbranch_scc0 L_pr0\ns_setprio 1\nL_pr0:")
    if t == opt("plu", 5): e("s_bitcmp1_b32 s96, 2\ns_cbranch_scc0 L_pr1\ns_setprio 0\nL_pr1:")
    if t == PLO: prio(0)
    e("s_waitcnt lgkmcnt(2)")
    mm_qk1(sn); rd_k1(t + 2)
    ex(0); ex(1); ex(2); ex(3); cv(0)
    mm_pv(V1, PP + 4); rd_v1(t)
    ex(4); ex(5); cv(1); ex(6); ex(7); cv(2)
    e("s_waitcnt lgkmcnt(2)")
    mm_qk2(sn); rd_k2(t + 2)
    ex(8); cv(3); ex(9); ex(10); ex(11); cv(4)
    mm_pv(V0, PP); rd_v0(t + 1)
    ex(12); ex(13); cv(5); ex(14); ex(15); cv(6); cv(7)
bump(8)
e(f"""s_add_u32 s60, s60, 1
s_cmp_eq_u32 s60, 1
s_cbranch_scc1 L_loop
s_cmp_lg_u32 s60, 8
s_cbranch_scc1 L_edge
L_fini:
s_waitcnt lgkmcnt(0)""")
mm_pv(V1, PP + 4)
e("s_setprio 0")
stamp(6)
cstamp(15)
e(f"v_rcp_f32 v4, v{OO+10}")
for r in range(10): e(f"v_mul_f32 v{OO+r}, v{OO+r}, v4")
for i in range(5): e(f"v_cvt_pk_bf16_f32 v{8+i}, v{OO+2*i}, v{OO+2*i+1}")
for i in range(5): e(f"v_min_u32 v{8+i}, -2, v{8+i}")
e(f"""buffer_store_dwordx4 v[8:11], v166, s[36:39], s68 offen sc1
s_mov_b32 exec_hi, 0
buffer_store_dword v12, v167, s[36:39], s69 offen sc1
s_mov_b32 exec_hi, -1""")
OA, TA, TB = 28, 30, 31
e(f"""s_and_b32 s60, s3, 3
s_lshr_b32 s61, s3, 2
s_lshl_b32 s62, s4, 2
s_add_u32 s62, s62, s60
s_mul_i32 s62, s62, 18432
s_mul_i32 s64, s61, 9216
s_add_u32 s62, s62, s64
s_add_u32 s64, s62, {WS_O}
s_add_u32 s65, s64, 4096
s_add_u32 s70, s64, 8192
v_lshlrev_b32 v{OA}, 4, v1
v_and_b32 v4, 15, v1
v_lshrrev_b32 v5, 4, v1
s_cmp_eq_u32 s61, 0
s_cselect_b64 s[66:67], 0, -1""")
OF, DD, WF = 40, 76, 96
def oload(i):
    r = OF + 4*i
    e(f"buffer_load_dwordx4 v[{r}:{r+3}], v{OA}, s[36:39], s{(64, 65, 70)[i >> 2]} offen offset:{1024*(i & 3)} sc1")
if opt("oearly", 0):
    for i in range(9): oload(i)
lds_add(C_L, va=13, vb=14)
e(f"""s_lshl_b32 s60, s60, 4
v_add_u32 v36, s60, v4
v_mul_u32_u24 v36, 336, v36
v_lshl_add_u32 v36, v5, 4, v36
s_mul_i32 s60, s61, {64*336}
s_add_u32 s60, s60, {LEX}
v_add_u32 v36, s60, v36
v_lshrrev_b32 v6, 2, v4
v_and_b32 v4, 3, v4
v_lshrrev_b32 v7, 1, v5
v_mul_u32_u24 v7, 18, v7
v_and_b32 v3, 1, v5
v_lshl_add_u32 v7, v3, 2, v7
v_add_u32 v7, v7, v6
v_mul_u32_u24 v7, 144, v7
v_lshl_add_u32 v7, v4, 3, v7
s_mul_i32 s60, s61, {9*5184}
v_add_u32 v{TA}, s60, v7
v_lshrrev_b32 v3, 1, v6
v_lshl_add_u32 v3, v5, 2, v3
v_mul_u32_u24 v3, 18, v3
v_and_b32 v6, 1, v6
v_add3_u32 v3, v3, v6, 16
v_mul_u32_u24 v3, 144, v3
v_lshl_add_u32 v3, v4, 3, v3""")
for j, (d0, d1) in enumerate([(7*5184, 0), (7*5184+1152, 5184), (8*5184, 41472), (8*5184+1152, 41472+5184)]):
    e(f"v_add_u32 v6, {d0}, v{TA}\nv_add_u32 v7, {d1}, v3\nv_cndmask_b32 v{TB+j}, v6, v7, s[66:67]")
lds_spin(C_WO, 1, sleep=1)
NW = 18
def wread(u):
    i, ct = divmod(u, 5)
    r = WF + 4*(u % NW)
    if i < 7:
        e(f"ds_read_b64_tr_b16 v[{r}:{r+1}], v{TA} offset:{5184*i + 32*ct}")
        e(f"ds_read_b64_tr_b16 v[{r+2}:{r+3}], v{TA} offset:{5184*i + 32*ct + 1152}")
    else:
        e(f"ds_read_b64_tr_b16 v[{r}:{r+1}], v{TB + 2*(i-7)} offset:{32*ct}")
        e(f"ds_read_b64_tr_b16 v[{r+2}:{r+3}], v{TB + 2*(i-7) + 1} offset:{32*ct}")
AHEAD = 15
for u in range(AHEAD): wread(u)
srd(48, P_OUT, 4718592)
def fin_addr(cexpr, vl, vg):
    e(f"""{cexpr}
v_mul_u32_u24 v6, {M9}, v5
v_lshrrev_b32 v6, 16, v6
v_mul_u32_u24 v7, 9, v6
v_sub_u32 v5, v5, v7
v_mul_u32_u24 v7, 336, v6
v_lshl_add_u32 v{vl}, v5, 5, v7
v_add_u32 v{vl}, {LEX}, v{vl}
v_mul_u32_u24 v7, 2304, v6
v_lshl_add_u32 v{vg}, v5, 4, v7""")
fin_addr("v_mov_b32 v5, v0", 37, 38)
fin_addr("v_add_u32 v5, 512, v0", 35, 39)
e(f"""s_mul_i32 s63, s5, 144
s_mul_i32 s60, s4, {64*2304}
s_add_u32 s63, s63, s60""")
if not opt("oearly", 0):
    lds_spin(C_L, 8, sleep=1)
    for i in range(9): oload(i)
e(f"s_mov_b32 s62, {SPIN}")
stamp(7)
def stale(k, lab, br):
    o = OF + 4*k
    e(f"""v_max3_u32 v3, v{o}, v{o+1}, v{o+2}
v_max_u32 v3, v3, v{o+3}
v_cmp_eq_u32 vcc, -1, v3
{br} {lab}""")
retry = []
for i in range(9):
    o = OF + 4*i
    lo, rt = L("ochk"), L("ort")
    e(f"s_waitcnt vmcnt({8-i})\n{lo}:")
    stale(i, rt, "s_cbranch_vccnz")
    retry.append((i, lo, rt))
    nxt = [u for u in range(5*i + AHEAD, 5*i + AHEAD + 5) if u < 45]
    e(f"s_waitcnt lgkmcnt({min(15, 2*min(10, 45 - 5*i - 5))})")
    for ct in range(5):
        u = 5*i + ct
        r = WF + 4*(u % NW); d = DD + 4*ct
        e(f"v_mfma_f32_16x16x32_bf16 v[{d}:{d+3}], v[{r}:{r+3}], v[{o}:{o+3}], {'0' if i == 0 else f'v[{d}:{d+3}]'}")
        if ct < len(nxt): wread(nxt[ct])
stamp(8)
lds_spin(C_L, 8, sleep=0)
for ct in range(5):
    e(f"ds_write_b128 v36, v[{DD+4*ct}:{DD+4*ct+3}] offset:{64*ct}")
lds_add(C_X)
lds_spin(C_X, 8, sleep=0)
def fin(vl, vg):
    e(f"""ds_read_b128 v[8:11], v{vl}
ds_read_b128 v[16:19], v{vl} offset:{64*336}
ds_read_b128 v[12:15], v{vl} offset:16
ds_read_b128 v[20:23], v{vl} offset:{64*336+16}
s_waitcnt lgkmcnt(2)
v_pk_add_f32 v[8:9], v[8:9], v[16:17]
v_pk_add_f32 v[10:11], v[10:11], v[18:19]
s_waitcnt lgkmcnt(0)
v_pk_add_f32 v[12:13], v[12:13], v[20:21]
v_pk_add_f32 v[14:15], v[14:15], v[22:23]
v_cvt_pk_bf16_f32 v24, v8, v9
v_cvt_pk_bf16_f32 v25, v10, v11
v_cvt_pk_bf16_f32 v26, v12, v13
v_cvt_pk_bf16_f32 v27, v14, v15
buffer_store_dwordx4 v[24:27], v{vg}, s[48:51], s63 offen""")
fin(37, 38)
e("s_cmp_lg_u32 s3, 0\ns_cbranch_scc1 L_t_fin\ns_nop 1")
fin(35, 39)
e("L_t_fin:")
stamp(9)
stamp_flush()
e("s_endpgm")
for i, lo, rt in retry:
    e(f"{rt}:\ns_waitcnt vmcnt(0)\ns_sleep {opt('osleep', 2)}")
    oload(i)
    for k in range(i + 1, 9):
        sk = L("osk")
        stale(k, sk, "s_cbranch_vccz")
        oload(k)
        e(f"{sk}:")
    e("s_sub_u32 s62, s62, 1\ns_waitcnt vmcnt(0)")
    e(f"s_cbranch_scc0 {lo}\ns_endpgm")

def release():
    e(f"v_mov_b32 v91, {C_P}\ns_mov_b64 exec, 1\nds_add_u32 v91, v92\ns_mov_b64 exec, -1")
e(f"""L_edge:
s_cmp_eq_u32 s60, 2
s_cbranch_scc1 L_chk
s_cmp_eq_u32 s60, 5
s_cbranch_scc0 L_loop""")
release()
e("s_waitcnt lgkmcnt(0)\ns_branch L_loop\nL_chk:")
cstamp(4)
e(f"v_mov_b32 v91, {C_T}\ns_mov_b64 exec, 1\nds_add_u32 v91, v92\ns_mov_b64 exec, -1")
lds_spin(C_K, 2, va=91, vb=93)
cstamp(10)
e("s_cmp_lt_u32 s90, 1728\ns_cbranch_scc0 L_loop")
class Ctr:
    def __init__(self, init): self.q = list(init)
    def issue(self, tag, n=1): self.q += [tag] * n
    def need(self, *tags):
        last = max((i for i, t in enumerate(self.q) if t in tags), default=-1)
        n = len(self.q) - 1 - last
        self.q = self.q[last + 1:]
        return n if last >= 0 else None
lg = Ctr(["k1_1", "v1_-1", "k2_1", "v0_0"])
vm = Ctr([f"f{k}" for k in range(FD)] + ["h1", "h1"])
def wait(ltags=(), vtags=()):
    a = lg.need(*ltags) if ltags else None
    b = vm.need(*vtags) if vtags else None
    t = []
    if b is not None: t.append(f"vmcnt({min(b, 63)})")
    if a is not None: t.append(f"lgkmcnt({min(a, 15)})")
    if t: e("s_waitcnt " + " ".join(t))
e("L_conv:")
def plain_tile(t, tl):
    s = (S0, S1)[t & 1]; sn = (S0, S1)[(t + 1) & 1]
    ex = lambda i: e(f"v_exp_f32 v{s+i}, v{s+i}")
    cv = lambda i: e(f"v_cvt_pk_bf16_f32 v{PP+i}, v{s+2*i}, v{s+2*i+1}")
    wait([f"k1_{t+1}", f"v1_{t-1}"])
    mm_qk1(sn); rd_k1(tl + 2); lg.issue(f"k1_{t+2}")
    ex(0); ex(1); ex(2); ex(3); cv(0)
    mm_pv(V1, PP + 4); rd_v1(tl); lg.issue(f"v1_{t}")
    ex(4); ex(5); cv(1); ex(6); ex(7); cv(2)
    wait([f"k2_{t+1}", f"v0_{t}"])
    mm_qk2(sn); rd_k2(tl + 2); lg.issue(f"k2_{t+2}")
    ex(8); cv(3); ex(9); ex(10); ex(11); cv(4)
    mm_pv(V0, PP); rd_v0(tl + 1); lg.issue(f"v0_{t+1}")
    ex(12); ex(13); cv(5); ex(14); ex(15); cv(6); cv(7)
def conv_tile(t, tl, k0):
    s = (S0, S1)[t & 1]; sn = (S0, S1)[(t + 1) & 1]
    ex = lambda i: e(f"v_exp_f32 v{s+i}, v{s+i}")
    cv = lambda i: e(f"v_cvt_pk_bf16_f32 v{PP+i}, v{s+2*i}, v{s+2*i+1}")
    def cstep(k):
        a = CA + 4*(k % 2); f = CF + 4*(k % FD)
        newwin = (k + 2) % 14 == 0 and k + 2 < 64
        wait([f"a{k}"], [f"f{k}"] + ([f"h{(k+2)//14}"] if newwin else []))
        e(f"v_mfma_f32_32x32x16_bf16 v[{YA}:{YA+15}], v[{a}:{a+3}], v[{f}:{f+3}], v[{YA}:{YA+15}]")
        if newwin:
            hperm(); hwrite(); lg.issue("w")
        if k + 2 < 64: aload(k + 2); lg.issue(f"a{k+2}", 2)
        if k + FD < 64: fload(k + FD); vm.issue(f"f{k+FD}")
        if newwin and k + 16 < 64: hload(); vm.issue(f"h{(k+2)//14+1}", 2)
    wait([f"k1_{t+1}", f"v1_{t-1}"])
    mm_qk1(sn); rd_k1(tl + 2); lg.issue(f"k1_{t+2}")
    ex(0); ex(1); ex(2)
    mm_pv(V1, PP + 4); rd_v1(tl); lg.issue(f"v1_{t}")
    ex(3); cv(0); ex(4); cv(1); ex(5)
    cstep(k0)
    ex(6); ex(7); cv(2); ex(8)
    wait([f"k2_{t+1}", f"v0_{t}"])
    mm_qk2(sn); rd_k2(tl + 2); lg.issue(f"k2_{t+2}")
    cv(3); ex(9); ex(10); ex(11)
    mm_pv(V0, PP); rd_v0(tl + 1); lg.issue(f"v0_{t+1}")
    cv(4); ex(12); ex(13); cv(5)
    cstep(k0 + 1)
    ex(14); ex(15); cv(6); cv(7)
for t in range(48):
    if t in (16, 32): bump(16)
    if t == 24:
        release(); lg.issue("rel")
    if t == opt("st", 44):
        e(f"v_mov_b32 v91, {C_S}\ns_mov_b64 exec, 1\nds_add_u32 v91, v92\ns_mov_b64 exec, -1"); lg.issue("sig")
    tl = t % 16
    isconv = CS <= t < CS + 32
    if t % 8 == 0: prio(1)
    if t % 8 == (PLC if isconv else PLO): prio(0)
    if t == max(CS - 3, 0):
        lds_spin(C_U, 1, va=91, vb=93); lg.q = []
        cstamp(12)
        e("s_waitcnt vmcnt(0)")
        e(f"""v_lshlrev_b32 v94, 16, v94
v_lshlrev_b32 v91, 16, v{HS+4}
v_add_f32 v91, v91, v94
s_mov_b32 s61, 0xffff
v_cvt_pk_bf16_f32 v91, v91, v91
s_cmp_eq_u32 s91, 1
s_cselect_b32 exec_lo, 0, 8
s_cselect_b32 exec_hi, 0, 8
v_bfi_b32 v{HS+4}, s61, v91, v{HS+4}
s_mov_b64 exec, -1""")
        hperm()
        hwrite(); aload(0); aload(1); lg.issue("w"); lg.issue("a0", 2); lg.issue("a1", 2)
        for k in range(FD): fload(k)
        hload()
    if isconv: conv_tile(t, tl, 2*(t - CS))
    else: plain_tile(t, tl)
    if t == CS + 32:
        for k in range(2):
            r = CF + 4*k
            for j in range(4): e(f"v_cvt_pk_bf16_f32 v{r+j}, v{YA+8*k+2*j}, v{YA+8*k+2*j+1}")
            for j in range(4): e(f"v_min_u32 v{r+j}, -2, v{r+j}")
            e(f"v_permlane32_swap_b32 v{r}, v{r+2}\nv_permlane32_swap_b32 v{r+1}, v{r+3}")
            e(f"buffer_store_dwordx4 v[{r}:{r+3}], v{YAD}, s[36:39], s93 offen offset:{32*k} sc1")
        cstamp(11)
e("s_branch L_fini")
e("L_truemax:")
lds_spin(C_K, 2)
e(f"""v_mov_b32 v{Q2+1}, 0
v_mov_b32 v5, 0xff800000
s_mov_b32 s60, 64
L_fb:""")
rd_k1(0); rd_k2(0)
e("s_waitcnt lgkmcnt(0)")
mm_qk1(S0); mm_qk2(S0)
e(f"v_add_u32 v{AK1}, {TS}, v{AK1}\nv_add_u32 v{AK2}, {TS}, v{AK2}")
for i in range(8): e(f"v_max3_f32 v5, v5, v{S0+2*i}, v{S0+2*i+1}")
e(f"""s_sub_u32 s60, s60, 1
s_cmp_lg_u32 s60, 0
s_cbranch_scc1 L_fb
v_subrev_u32 v{AK1}, {TS*64}, v{AK1}
v_subrev_u32 v{AK2}, {TS*64}, v{AK2}
v_mov_b32 v6, v5
v_permlane32_swap_b32 v5, v6
v_max_f32 v5, v5, v6
v_sub_f32 v5, 0, v5
v_cvt_pk_bf16_f32 v6, v5, v5
v_and_b32 v7, 0xffff0000, v6
v_sub_f32 v5, v5, v7
v_cvt_pk_bf16_f32 v7, v5, v5
v_and_b32 v3, 0xffff0000, v7
v_sub_f32 v5, v5, v3
v_cvt_pk_bf16_f32 v5, v5, 0
v_and_b32 v6, 0xffff, v6
v_or_b32 v6, v6, v3
v_cndmask_b32 v{Q2+1}, v6, v5, s[64:65]
v_mov_b32 v{K2+1}, 0x3f803f80""")
rd_k1(0); rd_k2(0)
e("s_branch L_pass\nL_end:\ns_endpgm")

ref = open(f"cdna_kernels/{NAME}.s.ref").read().split("\n")
head = [l for l in ref if l.startswith(";") and "@launch" not in l and not l.startswith("; Override") and not l.startswith("; grid=")]
txt = "\n".join(head) + f"""
; @launch grid=(256,1,1) block=(768,1,1) lds={LDS_BYTES}
.amdgcn_target "amdgcn-amd-amdhsa--gfx950"
.text
.globl {NAME}_kernel
.p2align 8
.type {NAME}_kernel,@function
{NAME}_kernel:
""" + e.text() + f""".section .rodata,"a"
.p2align 6
.amdhsa_kernel {NAME}_kernel
  .amdhsa_next_free_vgpr 168
  .amdhsa_next_free_sgpr 102
  .amdhsa_accum_offset 168
  .amdhsa_group_segment_fixed_size 0
  .amdhsa_kernarg_size 112
  .amdhsa_user_sgpr_count 2
  .amdhsa_user_sgpr_kernarg_segment_ptr 1
  .amdhsa_system_sgpr_workgroup_id_x 1
.end_amdhsa_kernel
"""
open(OUT, "w").write(txt)
print("wrote", OUT, len(txt), "bytes;", e.nops, "nops inserted")
```

```python
import sys, struct, math
sys.path.insert(0, "gen")
from emit import Emitter

NAME = "concat_heads__grouped_kv_mqa__ssm_conv_h3__prompt"
STAMPS = "--stamps" in sys.argv
def opt(name, default):
    for a in sys.argv:
        if a.startswith(f"--{name}="): return int(a.split("=")[1])
    return default
OUT = [a for a in sys.argv[1:] if not a.startswith("--")]
OUT = OUT[0] if OUT else f"cdna_kernels/{NAME}.s"
PSW = opt("psw", 44)
P1C = opt("p1c", 0)
PLC = opt("plc", 5)
CS = opt("cs", 6)
PLO = opt("plo", 6)

def f32(x): return struct.unpack("<I", struct.pack("<f", x))[0]
def magic(d, n):
    m = -(-65536 // d)
    assert all((c * m) >> 16 == c // d for c in range(n)), (d, n)
    return m

WS_G, WS_KVF, WS_KVTF, WS_MF = 0, 0x40000, 0x50000, 0x60000
WS_KV, WS_U, WS_Y, WS_O, WS_ST, WS_Y2 = 0x10000, 0x100000, 0x400000, 0x700000, 0xA00000, 0xB00000
WS_SIZE = 0x1000000
TAGC = 0x9E3779B9
TS = 2320
LXA, LXB, LW = 0, 40960, 73728
NDEF = 53
LWKV = LW + NDEF * 1024
LCONV = 64 * TS
LMISC = LCONV + 8 * 1088
(C_W, C_R, C_KV, C_KVT, C_A, C_B, C_K, C_P, L_MAXLO, L_MAXHI, L_KC, L_TAG, C_F, C_Y, C_YW, C_Q,
 C_K0, C_U, C_WO, C_L, C_X, C_T, C_Q1, C_G, C_S, C_MK, C_M) = [LMISC + 4 * i for i in range(27)]
LDS_BYTES = 163840
LFAR = 0x40000
LEX = 90112
SPIN = opt("spin", 0x200000)
SHIFT, THR = 60.0, 45.0

e = Emitter()
uid = [0]
def L(p):
    uid[0] += 1
    return f"L_{p}{uid[0]}"
def stamp(i):
    if STAMPS: e(f"s_memrealtime s[98:99]\ns_waitcnt lgkmcnt(0)\ns_mov_b32 s{72+i}, s98")
def cstamp(i):
    if STAMPS: e(f"s_memtime s[98:99]\ns_waitcnt lgkmcnt(0)\ns_mov_b32 s{72+i}, s98")
def stamp_flush():
    if not STAMPS: return
    e(f"""s_mul_i32 s60, s2, 12
s_add_u32 s60, s60, s3
s_lshl_b32 s60, s60, 6
s_add_u32 s60, s60, {WS_ST}
s_mov_b64 exec, -1
v_mov_b32 v3, 0""")
    for i in range(16):
        e(f"v_mov_b32 v4, s{72+i}\nbuffer_store_dword v4, v3, s[36:39], s60 offen offset:{4*i}")
def srd(n, plo, nbytes):
    e(f"s_mov_b32 s{n}, s{plo}\ns_mov_b32 s{n+1}, s{plo+1}\ns_mov_b32 s{n+2}, {nbytes}\ns_mov_b32 s{n+3}, 0x00020000")
def srd_off(n, plo, soff, nbytes):
    e(f"s_add_u32 s{n}, s{plo}, {soff}\ns_addc_u32 s{n+1}, s{plo+1}, 0\ns_mov_b32 s{n+2}, {nbytes}\ns_mov_b32 s{n+3}, 0x00020000")
def lds_add(addr, va=3, vb=6, rtn=None, also=None):
    e(f"v_mov_b32 v{va}, {addr}\nv_mov_b32 v{vb}, 1\ns_mov_b64 exec, 1")
    if also is not None: e(f"ds_add_u32 v{va}, v{vb} offset:{also - addr}")
    if rtn is None:
        e(f"ds_add_u32 v{va}, v{vb}\ns_mov_b64 exec, -1")
    else:
        e(f"ds_add_rtn_u32 v{vb}, v{va}, v{vb}\ns_waitcnt lgkmcnt(0)\nv_readfirstlane_b32 s{rtn}, v{vb}\ns_mov_b64 exec, -1")
TMO = "--tmo" in sys.argv
def tmo_mark(what):
    if not TMO: return
    print("timeout id", uid[0], what)
    e(f"""s_mov_b64 s[100:101], exec
s_mov_b64 exec, 1
v_mov_b32 v2, {uid[0]}
s_mul_i32 s88, s2, 12
s_add_u32 s88, s88, s3
s_lshl_b32 s88, s88, 2
s_add_u32 s88, s88, {WS_ST + 0x80000}
v_mov_b32 v0, 0
buffer_store_dword v2, v0, s[36:39], s88 offen
s_mov_b64 exec, s[100:101]""")
def lds_spin(addr, n, va=3, vb=6, sleep=1):
    l = L("spin"); d = L("spun")
    e(f"""v_mov_b32 v{va}, {addr}
s_mov_b32 s89, {SPIN}
{l}:
ds_read_b32 v{vb}, v{va}
s_waitcnt lgkmcnt(0)
v_readfirstlane_b32 s88, v{vb}
s_cmp_ge_u32 s88, {n}
s_cbranch_scc1 {d}
s_sleep {sleep}
s_sub_u32 s89, s89, 1
s_cbranch_scc0 {l}""")
    tmo_mark(f"lds {(addr - LMISC) // 4} >= {n}")
    e(f"{d}:")
def poll_all(base, sleep):
    l, d = L("poll"), L("polled")
    e(f"v_lshlrev_b32 v3, 5, v1\ns_mov_b32 s60, {base}\ns_mov_b32 s61, {base + 4096}\ns_mov_b32 s62, {SPIN}\n{l}:")
    for i in range(4):
        e(f"buffer_load_dwordx2 v[{8+2*i}:{9+2*i}], v3, s[36:39], s{60 + (i >> 1)} offen offset:{2048*(i & 1)} sc1")
    e(f"""s_waitcnt vmcnt(0)
v_cmp_ne_u32 vcc, s6, v8
v_cmp_ne_u32 s[64:65], s6, v10
s_or_b64 vcc, vcc, s[64:65]
v_cmp_ne_u32 s[64:65], s6, v12
s_or_b64 vcc, vcc, s[64:65]
v_cmp_ne_u32 s[64:65], s6, v14
s_or_b64 vcc, vcc, s[64:65]
s_sub_u32 s62, s62, 1
s_cbranch_scc1 {d}
s_cbranch_vccz {d}
s_sleep {sleep}
s_branch {l}
{d}:""")
P_X, P_WQ, P_WK, P_WV, P_WO, P_BQ, P_BK, P_BV, P_SK, P_H, P_D, P_OUT, P_DBG, P_WS = range(8, 36, 2)
M9 = magic(9, 5632)
def wslice_off(dst, cexpr):
    e(f"""{cexpr}
v_mul_u32_u24 v6, {M9}, v5
v_lshrrev_b32 v6, 16, v6
v_mul_u32_u24 v7, 1008, v6
v_lshl_add_u32 v{dst}, v5, 4, v7""")
def get_tag():
    e(f"v_readfirstlane_b32 s6, v2\ns_add_u32 s6, s6, {TAGC}")
def half(dst, src, hi):
    if hi: e(f"v_and_b32 v{dst}, 0xffff0000, v{src}")
    else: e(f"v_lshlrev_b32 v{dst}, 16, v{src}")

e(f"""s_cmp_ge_u32 s2, 256
s_cbranch_scc1 L_end
s_load_dwordx16 s[8:23], s[0:1], 0
s_load_dwordx8 s[24:31], s[0:1], 64
s_load_dwordx4 s[32:35], s[0:1], 96
v_and_b32 v1, 63, v0
v_lshrrev_b32 v2, 6, v0
v_mov_b32 v3, 0
v_readfirstlane_b32 s3, v2
s_and_b32 s4, s2, 31
s_lshr_b32 s5, s2, 5""")
if STAMPS:
    for i in range(16): e(f"s_mov_b32 s{72+i}, 0")
e("s_cmp_lt_u32 s3, 8\ns_cbranch_scc1 L_att")

M3 = magic(3, 1792)
e(f"""s_sub_u32 s7, s3, 8
s_setprio 2
v_subrev_u32 v5, 512, v0""")
for m in range(7):
    e(f"""v_mul_u32_u24 v6, {M3}, v5
v_lshrrev_b32 v6, 16, v6
v_mul_u32_u24 v6, 12, v6
v_lshlrev_b32 v7, 4, v5
v_sub_u32 v{16+m}, v7, v6""")
    if m < 6: e("v_add_u32 v5, 256, v5")
e(f"""v_lshlrev_b32 v4, 4, v1
s_and_b32 s61, s5, 3
s_lshl_b32 s61, s61, 2
s_add_u32 s61, s61, s7
s_lshl_b32 s61, s61, 2
s_lshl_b32 s60, s4, 6
s_add_u32 s60, s60, s61
s_mul_i32 s60, s60, 1152
s_lshl_b32 s62, s7, 5
v_xor_b32 v24, s62, v4
s_add_u32 s62, s62, 16
v_xor_b32 v25, s62, v4
v_lshrrev_b32 v6, 5, v1
s_lshl_b32 s62, s7, 2
v_add_u32 v7, s62, v6
v_and_b32 v5, 31, v1
v_xor_b32 v26, v5, v7
v_xor_b32 v27, 2, v26
v_mul_u32_u24 v6, 1152, v6
v_lshl_add_u32 v26, v26, 4, v6
v_lshl_add_u32 v27, v27, 4, v6
s_lshl_b32 s63, s7, 10
s_waitcnt lgkmcnt(0)""")
stamp(0)
e(f"""s_cmp_lt_u32 s5, 4
s_cselect_b32 s48, s{P_WK}, s{P_WV}
s_cselect_b32 s49, s{P_WK+1}, s{P_WV+1}
s_mov_b32 s50, 20736
s_mov_b32 s51, 0x00020000""")
srd(40, P_X, 2359296)
for m in range(7):
    e(f"s_add_u32 m0, s63, {LWKV + 4096*m}\nbuffer_load_dwordx4 v{16+m}, s[48:51], 0 offen lds")
e(f"s_mul_i32 s62, s61, 640\ns_mov_b32 exec_hi, 0xff")
for i in range(4):
    e(f"s_add_u32 m0, s62, {LXA + 640*i}\ns_add_u32 s64, s60, {1152*i}\nbuffer_load_dwordx4 v{24 + (i >> 1)}, s[40:43], s64 offen lds")
e(f"s_mov_b32 exec_hi, -1\ns_lshl_b32 s62, s61, 9")
for p in range(2):
    e(f"s_add_u32 m0, s62, {LXB + 1024*p}\ns_add_u32 s64, s60, {2304*p + 640}\nbuffer_load_dwordx4 v{26+p}, s[40:43], s64 offen lds")
srd(36, P_WS, WS_SIZE)
e(f"""buffer_load_dword v2, v3, s[36:39], 0 offen sc1
v_and_b32 v4, 15, v1
v_lshrrev_b32 v5, 4, v1
v_lshlrev_b32 v7, 2, v1
v_add_u32 v7, {LMISC}, v7
ds_write_b32 v7, v3
s_waitcnt lgkmcnt(0)""")
M18 = magic(18, 192)
def task_regs(stask, vt0, vd):
    e(f"""v_add_u32 v6, {stask}, v1
v_mul_u32_u24 v7, {M18}, v6
v_lshrrev_b32 v7, 16, v7
s_lshl_b32 s60, s4, 6
v_lshl_add_u32 v{vt0}, v7, 3, s60
v_mul_u32_u24 v7, 18, v7
v_sub_u32 v6, v6, v7
s_mul_i32 s60, s5, 72
v_lshl_add_u32 v{vd}, v6, 2, s60""")
def p1_regs(slot):
    return (8, 30, 48, 56, 57) if slot == 0 else (120, 142, 160, 58, 59)
def p1_loads(stask, slot=0):
    PK, PV_, PS, T0, DD_ = p1_regs(slot)
    task_regs(stask, T0, DD_)
    e(f"v_mul_u32_u24 v6, 1152, v{T0}\nv_lshl_add_u32 v6, v{DD_}, 1, v6")
    for i in range(3):
        e(f"v_subrev_u32 v7, {1152*(3-i)}, v6\nbuffer_load_dwordx2 v[{PK+2*i}:{PK+2*i+1}], v7, s[44:47], 0 offen")
    for i in range(8):
        e(f"s_mov_b32 s60, {1152*i}\nbuffer_load_dwordx2 v[{PK+6+2*i}:{PK+7+2*i}], v6, s[44:47], s60 offen\nbuffer_load_dwordx2 v[{PV_+2*i}:{PV_+2*i+1}], v6, s[52:55], s60 offen")
    e(f"v_lshlrev_b32 v7, 3, v{DD_}\nbuffer_load_dwordx4 v[{PS}:{PS+3}], v7, s[56:59], 0 offen\nbuffer_load_dwordx4 v[{PS+4}:{PS+7}], v7, s[56:59], 0 offen offset:16")
UK, UW, UA = 64, 88, 96
def u_addr(vt0, vd, dst):
    e(f"""v_sub_u32 v7, 2040, v{vt0}
v_lshrrev_b32 v{dst}, 5, v7
v_lshlrev_b32 v{dst}, 5, v{dst}
v_bfe_u32 v3, v7, 4, 1
v_lshl_add_u32 v{dst}, v3, 11, v{dst}
v_bfe_u32 v3, v7, 3, 1
v_lshl_add_u32 v{dst}, v3, 4, v{dst}
v_lshl_add_u32 v{dst}, v{vd}, 12, v{dst}""")
def p1_compute(slot=0):
    if "--nop1c" in sys.argv: return
    PK, PV_, PS, T0, DD_ = p1_regs(slot)
    u_addr(T0, DD_, 6)
    pr = lambda x: f"v[{x}:{x+1}]"
    for ee in range(2):
        for i in range(11):
            half(UK + 2*i, PK + 2*i + ee, 0); half(UK + 2*i + 1, PK + 2*i + ee, 1)
        for j in range(4):
            for c in range(2):
                half(UW + 2*j + c, PS + 4*ee + 2*c + (j >> 1), j & 1)
        for i in range(8):
            a = UA + 2*i
            e(f"v_pk_mul_f32 {pr(a)}, {pr(UK+2*i)}, {pr(UW+6)}")
            for j in (2, 1, 0):
                e(f"v_pk_fma_f32 {pr(a)}, {pr(UK+2*(i+3-j))}, {pr(UW+2*j)}, {pr(a)}")
            half(112, PV_ + 2*i + ee, 0); half(113, PV_ + 2*i + ee, 1)
            e(f"v_pk_mul_f32 {pr(a)}, {pr(a)}, v[112:113]")
        for c in range(2):
            r = (60, 116)[c]
            for m in range(4):
                e(f"v_cvt_pk_bf16_f32 v{r+m}, v{UA+2*(7-2*m)+c}, v{UA+2*(6-2*m)+c}")
            e(f"s_mov_b32 s60, {WS_U + 4096*(2*ee+c)}\nbuffer_store_dwordx4 v[{r}:{r+3}], v6, s[36:39], s60 offen sc1")
def p1_issue():
    srd(44, P_BK, 2359296)
    srd(52, P_BV, 2359296)
    srd(56, P_SK, 4608)
    l = L("p1a")
    e("s_sub_u32 s63, 3, s7\ns_lshl_b32 s63, s63, 6")
    p1_loads("s63")
    e(f"s_cmp_lg_u32 s7, 3\ns_cbranch_scc1 {l}\ns_mov_b64 exec, 0xffff")
    p1_loads("0x80", 1)
    e(f"s_mov_b64 exec, -1\n{l}:")
if P1C == 2: p1_issue()
e("L_h_b0:\ns_barrier")
def publish_kv():
    nl = L("nl")
    lds_add(C_KV, rtn=60)
    e(f"""s_cmp_lg_u32 s60, 3
s_cbranch_scc1 {nl}
v_mov_b32 v3, {L_MAXLO}
ds_read_b64 v[6:7], v3
s_lshl_b32 s60, s2, 5
s_add_u32 s60, s60, {WS_KVF}
v_mov_b32 v3, 0
s_waitcnt lgkmcnt(0)
v_add_f32 v7, v6, v7
v_mov_b32 v6, s6
s_mov_b64 exec, 1
buffer_store_dwordx2 v[6:7], v3, s[36:39], s60 offen sc1
s_mov_b64 exec, -1
{nl}:""")

def publish_u():
    nl = L("nl")
    lds_add(C_KVT, rtn=60)
    e(f"""s_cmp_lg_u32 s60, 1
s_cbranch_scc1 {nl}
v_mov_b32 v6, s6
s_lshl_b32 s60, s2, 5
s_add_u32 s60, s60, {WS_KVTF}
v_mov_b32 v3, 0
s_mov_b64 exec, 1
buffer_store_dword v6, v3, s[36:39], s60 offen sc1
s_mov_b64 exec, -1
{nl}:""")
e("s_cmp_lt_u32 s7, 2\ns_cbranch_scc1 L_h_kv")
if P1C == 2: e("s_cmp_eq_u32 s7, 3\ns_cbranch_scc1 L_h_w3\ns_waitcnt vmcnt(26)\ns_branch L_h_w4\nL_h_w3:\ns_waitcnt vmcnt(47)\nL_h_w4:")
else: e("s_waitcnt vmcnt(0)")
lds_add(C_W, also=C_A)
if P1C == 2: e("s_cmp_eq_u32 s7, 3\ns_cbranch_scc1 L_h_w5\ns_waitcnt vmcnt(21)\ns_branch L_h_w6\nL_h_w5:\ns_waitcnt vmcnt(42)\nL_h_w6:")
else: e("s_waitcnt vmcnt(0)")
get_tag()
publish_kv()
stamp(1)
e("s_cmp_eq_u32 s7, 3\ns_cbranch_scc1 L_h_p1")
srd(40, P_WQ, 663552)
for n in range(NDEF, 81): wslice_off(120 + n - NDEF, f"v_add_u32 v5, {64*n}, v1")
e("s_mul_i32 s63, s5, 144")
lds_spin(C_R, 2)
e("s_setprio 0")
for n in range(NDEF, 81):
    e(f"s_mov_b32 m0, {LW + 1024*n}\nbuffer_load_dwordx4 v{120 + n - NDEF}, s[40:43], s63 offen lds")
e("s_setprio 2")
if P1C == 2:
    e("s_waitcnt vmcnt(28)")
    p1_compute()
    e("s_waitcnt vmcnt(4)")
    lds_add(C_B)
    e("s_branch L_h_p1b")
else:
    e("s_waitcnt vmcnt(0)")
    lds_add(C_B)
e("L_h_p1:")
if P1C != 2:
    if P1C == 5:
        srd(44, P_BK, 2359296)
        srd(52, P_BV, 2359296)
        e(f"""v_lshlrev_b32 v8, 7, v1
s_lshl_b32 s63, s4, 3
s_add_u32 s63, s63, s5
s_mul_i32 s63, s63, 9216
s_add_u32 s61, s63, 8192
s_cmp_lg_u32 s7, 3
s_cbranch_scc1 L_h_nokp""")
        lds_spin(C_A, 12, sleep=1)
        e(f"""buffer_load_dword v9, v8, s[44:47], s63 offen
buffer_load_dword v10, v8, s[52:55], s63 offen
s_mov_b64 exec, 0xff
buffer_load_dword v11, v8, s[44:47], s61 offen
buffer_load_dword v12, v8, s[52:55], s61 offen
s_mov_b64 exec, -1
s_waitcnt vmcnt(0)
L_h_nokp:""")
        lds_spin(C_F, 1, sleep=2); e(f"s_sleep {opt('p1d', 0)}")
    elif P1C == 4:
        lds_spin(C_F, 1, sleep=2); lds_spin(C_Q1, 8, sleep=2); e(f"s_sleep {opt('p1d', 4)}")
    elif P1C == 3: lds_spin(C_G, 2, sleep=2)
    else: lds_spin(C_B if P1C else C_A, 9 if P1C else 12, sleep=2)
    stamp(2)
    p1_issue()
e("s_waitcnt vmcnt(0)")
stamp(10)
p1_compute()
e("s_cmp_lg_u32 s7, 3\ns_cbranch_scc1 L_h_p1b\ns_mov_b64 exec, 0xffff")
p1_compute(1)
e("s_mov_b64 exec, -1\nL_h_p1b:\ns_waitcnt vmcnt(0)")
stamp(11)
publish_u()
e(f"""s_cmp_lg_u32 s7, 3
s_cbranch_scc1 L_h_epi""")
lds_spin(C_T, 1, sleep=8)
stamp(3)
poll_all(WS_KVTF, 8)
lds_add(C_U)
stamp(6)
srd(40, P_WO, 663552)
for n in range(9): wslice_off(16 + n, f"v_add_u32 v5, {64*n}, v1")
lds_spin(C_P, 8, sleep=16)
e(f"""s_mul_i32 s63, s5, 144
s_mov_b32 s60, 0
L_wo:""")
for n in range(9):
    e(f"s_add_u32 m0, s60, {1024*n}\ns_sleep {opt('wosleep', 0)}\nbuffer_load_dwordx4 v{16+n}, s[40:43], s63 offen lds")
e(f"""s_add_u32 s60, s60, 9216
s_add_u32 s63, s63, {64*1152}
s_cmp_lt_u32 s60, 82944
s_cbranch_scc1 L_wo
s_waitcnt vmcnt(0)""")
lds_add(C_WO)
stamp(7)
poll_all(WS_MF, 8)
lds_add(C_M)
e("s_branch L_h_epi")

e("L_h_kv:")
XAD, WAD = 8, 14
e(f"""v_lshrrev_b32 v6, 2, v4
v_lshl_add_u32 v6, v5, 3, v6
v_mul_u32_u24 v6, 48, v6
v_and_b32 v7, 3, v4
v_lshlrev_b32 v7, 3, v7
s_cmp_eq_u32 s7, 1
s_cselect_b64 s[64:65], -1, 0
v_cndmask_b32 v7, v7, 32, s[64:65]
v_add_u32 v{WAD}, v6, v7
v_add_u32 v{WAD}, {LWKV}, v{WAD}
s_and_b32 s60, s5, 3
s_lshl_b32 s60, s60, 4
v_add_u32 v6, s60, v4
v_bfe_u32 v7, v6, 1, 3
v_mul_u32_u24 v3, 640, v6""")
for j in range(2):
    e(f"v_add_u32 v15, {4*j}, v5\nv_xor_b32 v15, v15, v7\nv_lshl_add_u32 v{XAD+j}, v15, 4, v3")
e("v_lshlrev_b32 v3, 9, v6")
for j in range(4):
    e(f"v_add_u32 v15, {4*j}, v5\nv_xor_b32 v15, v15, v4\nv_lshl_add_u32 v{XAD+2+j}, v15, 4, v3")
e(f"""s_lshl_b32 s60, s4, 1
s_bfe_u32 s61, s5, 0x10001
s_add_u32 s60, s60, s61
s_mul_i32 s60, s60, {TS}
s_add_u32 s66, s60, {WS_KV}
s_and_b32 s61, s5, 1
s_cmp_ge_u32 s5, 4
s_cbranch_scc1 L_h_av
s_lshl_b32 s60, s61, 4
v_add_u32 v6, s60, v4
v_lshlrev_b32 v7, 4, v6
v_lshl_add_u32 v16, v5, 3, v7
v_add_u32 v17, 4, v16
v_lshlrev_b32 v3, 2, v6
v_add_u32 v3, 1024, v3
v_add_u32 v15, 512, v7
v_cmp_eq_u32 vcc, 2, v5
v_cndmask_b32 v16, v16, v3, vcc
v_cndmask_b32 v17, v17, v15, vcc
v_add_u32 v3, 4, v15
v_add_u32 v6, 8, v15
v_cmp_eq_u32 vcc, 3, v5
v_cndmask_b32 v16, v16, v3, vcc
v_cndmask_b32 v17, v17, v6, vcc
v_add_u32 v15, 12, v15
v_cndmask_b32 v16, v16, v15, s[64:65]
s_branch L_h_adone
L_h_av:
s_mul_i32 s61, s61, 576
s_lshl_b32 s60, s7, 8
s_add_u32 s61, s61, s60
v_lshrrev_b32 v6, 1, v5
v_and_b32 v7, 1, v5
v_mul_u32_u24 v7, 288, v7
v_lshl_add_u32 v7, v6, 3, v7
v_lshl_add_u32 v7, v4, 4, v7
v_add_u32 v16, s61, v7
v_add_u32 v16, 1152, v16
v_lshlrev_b32 v6, 3, v6
v_add_u32 v17, 2304, v6
L_h_adone:
s_waitcnt vmcnt(0)""")
get_tag()
lds_add(C_W, also=C_A)
lds_spin(C_W, 4, sleep=0)
stamp(10)
WR, XF, DK, KD = 64, 96, 92, 5
def kvread(s):
    r = WR + 4*(s % KD); x = XF + 4*(s % KD)
    e(f"ds_read_b64_tr_b16 v[{r}:{r+1}], v{WAD} offset:{1536*s}\nds_read_b64_tr_b16 v[{r+2}:{r+3}], v{WAD} offset:{1536*s + 192}")
    if s < 10: e(f"ds_read_b128 v[{x}:{x+3}], v{XAD + (s & 1)} offset:{LXA + 128*(s >> 1)}")
    else: e(f"ds_read_b128 v[{x}:{x+3}], v{XAD + 2 + ((s-10) & 3)} offset:{LXB + 256*((s-10) >> 2)}")
def kvproj(kside):
    for s in range(KD): kvread(s)
    for s in range(18):
        left = min(KD - 1, 17 - s)
        f = WR + 4*(s % KD); x = XF + 4*(s % KD)
        e(f"s_waitcnt lgkmcnt({3*left})")
        a, b = (f, x) if kside else (x, f)
        e(f"v_mfma_f32_16x16x32_bf16 v[{DK}:{DK+3}], v[{a}:{a+3}], v[{b}:{b+3}], {'0' if s == 0 else f'v[{DK}:{DK+3}]'}")
        if s + KD < 18: kvread(s + KD)
e("s_cmp_ge_u32 s5, 4\ns_cbranch_scc1 L_h_vproj")
kvproj(True)
e(f"""v_cvt_pk_bf16_f32 v64, v{DK}, v{DK+1}
v_cvt_pk_bf16_f32 v65, v{DK+2}, v{DK+3}
v_mul_f32 v66, v{DK}, v{DK}
v_fmac_f32 v66, v{DK+1}, v{DK+1}
s_cmp_eq_u32 s7, 1
s_cbranch_scc1 L_h_stk2
buffer_store_dword v64, v16, s[36:39], s66 offen sc1
buffer_store_dword v65, v17, s[36:39], s66 offen sc1
v_fmac_f32 v66, v{DK+2}, v{DK+2}
v_fmac_f32 v66, v{DK+3}, v{DK+3}
v_mov_b32 v67, v66
v_permlane32_swap_b32 v66, v67
v_add_f32 v66, v66, v67
v_mov_b32 v67, v66
v_permlane16_swap_b32 v66, v67
v_add_f32 v66, v66, v67
v_mov_b32 v3, {L_MAXLO}
s_branch L_h_stmax
L_h_stk2:
s_mov_b64 exec, 0xffff
buffer_store_dword v64, v16, s[36:39], s66 offen sc1
s_mov_b64 exec, -1
v_mov_b32 v3, {L_MAXHI}
L_h_stmax:""")
for k in (8, 4, 2, 1): e(f"v_max_f32_dpp v66, v66, v66 row_ror:{k} row_mask:0xf bank_mask:0xf")
e("ds_write_b32 v3, v66\ns_branch L_h_std\nL_h_vproj:")
kvproj(False)
e(f"""v_cvt_pk_bf16_f32 v64, v{DK}, v{DK+1}
v_cvt_pk_bf16_f32 v65, v{DK+2}, v{DK+3}
s_cmp_eq_u32 s7, 0
s_cbranch_scc1 L_h_stv
v_mov_b32 v3, 0x3f803f80
v_cmp_eq_u32 vcc, 2, v4
v_cndmask_b32 v16, v16, v17, vcc
v_cndmask_b32 v64, v64, v3, vcc
v_cndmask_b32 v65, v65, v3, vcc
v_cmp_gt_u32 vcc, 3, v4
s_mov_b64 exec, vcc
L_h_stv:
buffer_store_dwordx2 v[64:65], v16, s[36:39], s66 offen sc1
s_mov_b64 exec, -1
L_h_std:""")
stamp(11)
lds_add(C_R)
e("s_waitcnt vmcnt(0)")
publish_kv()
stamp(12)
e("s_cmp_lg_u32 s7, 0\ns_cbranch_scc1 L_h_wait")
lds_spin(C_B if opt("pollc", 0) else C_A, 9 if opt("pollc", 0) else 12, sleep=2)
stamp(2)
poll_all(WS_KVF, opt("pollsleep", 6))
lds_add(C_F)
e("s_branch L_h_go\nL_h_wait:")
lds_spin(C_F, 1, sleep=2)
e("L_h_go:")
stamp(3)
NC0 = 20
e(f"""s_cmp_lg_u32 s7, 0
s_cbranch_scc1 L_h_nokc
v_max_f32 v9, v9, v11
v_max3_f32 v9, v9, v13, v15""")
for k in (8, 4, 2, 1):
    e(f"v_max_f32_dpp v9, v9, v9 row_ror:{k} row_mask:0xf bank_mask:0xf")
for sw in ("v_permlane16_swap_b32", "v_permlane32_swap_b32"):
    e(f"v_mov_b32 v13, v9\n{sw} v9, v13\nv_max_f32 v9, v9, v13")
e(f"""v_sqrt_f32 v9, v9
v_mov_b32 v10, 1.0
v_mov_b32 v3, {L_KC}
v_mul_f32 v9, {f32(1.02)}, v9
v_cvt_pk_bf16_f32 v10, v9, v10
v_mov_b32 v11, s6
ds_write_b64 v3, v[10:11]
s_cmp_lg_u32 s2, 0
s_cbranch_scc1 L_h_nokc
v_mov_b32 v3, 0
v_mov_b32 v6, s6
s_mov_b64 exec, 1
buffer_store_dword v6, v3, s[36:39], 0 offen sc1
s_mov_b64 exec, -1
L_h_nokc:""")
def kv_dma(lo, hi):
    l = L("kvdma")
    e(f"""s_lshl_b32 s60, s7, 10
s_add_u32 s60, s60, {lo}
{l}:
s_mov_b32 m0, s60
s_add_u32 s61, s60, {WS_KV}
s_add_u32 s60, s60, 2048
buffer_load_dwordx4 v4, s[36:39], s61 offen sc1 lds
s_cmp_lt_u32 s60, {hi}
s_cbranch_scc1 {l}""")
e("v_lshlrev_b32 v4, 4, v1")
lds_spin(C_Q1, 8, sleep=0)
stamp(4)
kv_dma(0, 2048*NC0)
lds_add(C_G)
e("s_waitcnt vmcnt(0)")
lds_add(C_K0)
stamp(5)
lds_spin(C_Q, 8, sleep=1)
kv_dma(2048*NC0, 64*TS)
e("s_waitcnt vmcnt(0)")
lds_add(C_K)
stamp(6)
e(f"""v_and_b32 v4, 15, v1
v_lshrrev_b32 v5, 4, v1
s_lshl_b32 s60, s4, 2
s_lshl_b32 s61, s7, 1
s_add_u32 s60, s60, s61
s_mul_i32 s60, s60, 18432
s_lshl_b32 s61, s5, 11
s_add_u32 s60, s60, s61
s_add_u32 s60, s60, {WS_O}
v_lshlrev_b32 v6, 4, v1
v_mov_b32 v8, -1
v_mov_b32 v9, -1
v_mov_b32 v10, -1
v_mov_b32 v11, -1
buffer_store_dwordx4 v[8:11], v6, s[36:39], s60 offen sc1
buffer_store_dwordx4 v[8:11], v6, s[36:39], s60 offen offset:1024 sc1
s_add_u32 s60, s60, 18432
buffer_store_dwordx4 v[8:11], v6, s[36:39], s60 offen sc1
buffer_store_dwordx4 v[8:11], v6, s[36:39], s60 offen offset:1024 sc1
s_mul_i32 s60, s4, {4*18432}
s_lshl_b32 s61, s5, 8
s_add_u32 s60, s60, s61
s_add_u32 s60, s60, {WS_O + 16*1024}
v_mul_u32_u24 v6, 18432, v5
v_lshl_add_u32 v6, v4, 4, v6
buffer_store_dwordx4 v[8:11], v6, s[36:39], s60 offen sc1""")
e(f"""v_lshlrev_b32 v6, 4, v1
s_and_b32 s60, s7, 1
s_lshl_b32 s60, s60, 10
v_add_u32 v6, s60, v6
v_mov_b32 v60, -1
v_mov_b32 v61, -1
v_mov_b32 v62, -1
v_mov_b32 v63, -1
s_mov_b32 s63, s2
L_h_ym:
s_cmp_ge_u32 s63, 576
s_cselect_b32 s61, {WS_Y2 + 2048 - 576*4096}, {0}
s_cmp_ge_u32 s63, 1152
s_cselect_b32 s61, {WS_Y + 2048 - 1152*4096}, s61
s_cmp_lt_u32 s63, 576
s_cselect_b32 s61, {WS_Y}, s61
s_lshl_b32 s60, s63, 12
s_add_u32 s60, s60, s61
s_add_u32 s63, s63, 256
buffer_store_dwordx4 v[60:63], v6, s[36:39], s60 offen sc1
s_cmp_lt_u32 s63, 1728
s_cbranch_scc1 L_h_ym""")
e("s_waitcnt vmcnt(0)")
lds_add(C_MK, rtn=60)
e(f"""s_cmp_lg_u32 s60, 1
s_cbranch_scc1 L_h_nmk
v_mov_b32 v6, s6
s_lshl_b32 s60, s2, 5
s_add_u32 s60, s60, {WS_MF}
v_mov_b32 v3, 0
s_mov_b64 exec, 1
buffer_store_dword v6, v3, s[36:39], s60 offen sc1
s_mov_b64 exec, -1
L_h_nmk:""")
e("s_cmp_lg_u32 s7, 0\ns_cbranch_scc1 L_h_epi")
srd(40, P_WO, 663552)
e(f"""v_lshlrev_b32 v4, 7, v1
s_lshr_b32 s60, s2, 3
s_mul_i32 s60, s60, {162*128}
buffer_load_dword v8, v4, s[40:43], s60 offen
s_add_u32 s60, s60, 8192
buffer_load_dword v9, v4, s[40:43], s60 offen
s_add_u32 s60, s60, 8192
s_mov_b32 exec_hi, 3
buffer_load_dword v10, v4, s[40:43], s60 offen
s_branch L_h_end""")
e("L_h_epi:\ns_sub_u32 s70, 3, s7\ns_lshl_b32 s70, s70, 6")
srd(40, P_BQ, 2359296)
srd(48, P_OUT, 4718592)
srd(52, P_WS, WS_SIZE)
e("s_cmp_ge_u32 s4, 16\ns_cselect_b32 s54, s54, 0")
lds_spin(C_U, 1, sleep=16)
e(f"""v_add_u32 v6, s70, v1
v_and_b32 v7, 7, v6
s_lshl_b32 s60, s4, 6
v_lshl_add_u32 v56, v7, 3, s60
v_lshrrev_b32 v6, 3, v6
s_mul_i32 s60, s5, 72
v_lshl_add_u32 v57, v6, 2, s60""")
EU, EY, EZ, EQ, ED = 64, 80, 96, 112, 24
e(f"""s_cmp_eq_u32 s7, 1
s_cselect_b64 s[66:67], 0xffff, -1
s_mov_b64 exec, s[66:67]
v_lshlrev_b32 v7, 1, v57
v_mul_u32_u24 v6, 1152, v56
v_add_u32 v6, v6, v7""")
for i in range(8):
    e(f"s_mov_b32 s60, {1152*i}\nbuffer_load_dwordx2 v[{EQ+2*i}:{EQ+2*i+1}], v6, s[40:43], s60 offen")
e(f"v_mul_u32_u24 v59, 2304, v56\nv_add_u32 v59, v59, v7")
e(f"""v_lshlrev_b32 v60, 1, v56
v_lshl_add_u32 v60, v57, 12, v60
s_mov_b64 exec, -1
""")
lds_spin(C_S, opt("sn", 4), sleep=8)
lds_spin(C_M, 1, sleep=4)
e(f"s_mov_b64 exec, s[66:67]\ns_mov_b32 s62, {SPIN}\nL_e_poll:")
for c in range(4):
    e(f"s_mov_b32 s60, {WS_Y + 4096*c}\nbuffer_load_dwordx4 v[{EY+4*c}:{EY+4*c+3}], v60, s[36:39], s60 offen sc1")
    e(f"s_mov_b32 s60, {WS_Y2 + 4096*c}\nbuffer_load_dwordx4 v[{EZ+4*c}:{EZ+4*c+3}], v60, s[52:55], s60 offen sc1")
e(f"s_waitcnt vmcnt(0)\nv_max_u32 v3, v{EY}, v{EY+1}")
for r in range(EY + 2, EY + 32, 2): e(f"v_max3_u32 v3, v3, v{r}, v{r+1}")
e(f"""v_cmp_eq_u32 vcc, -1, v3
s_sub_u32 s62, s62, 1
s_cbranch_scc1 L_e_go
s_cbranch_vccz L_e_go
s_sleep 16
s_branch L_e_poll
L_e_go:
s_setprio {opt("eprio", 0)}""")
stamp(8)
def gate(two):
    for i in range(8):
        for ee in range(2):
            half(38, EY + 8*ee + (i >> 1), i & 1); half(39, EY + 8*ee + 4 + (i >> 1), i & 1)
            if two:
                half(36, EZ + 8*ee + (i >> 1), i & 1); half(37, EZ + 8*ee + 4 + (i >> 1), i & 1)
                e("v_pk_add_f32 v[38:39], v[38:39], v[36:37]")
            half(36, EQ + 2*i + ee, 0); half(37, EQ + 2*i + ee, 1)
            e("v_pk_mul_f32 v[38:39], v[38:39], v[36:37]")
            e(f"v_cvt_pk_bf16_f32 v{40+2*i+ee}, v38, v39")
        e(f"s_mov_b32 s60, {2304*i + 1152}\nbuffer_store_dwordx2 v[{40+2*i}:{41+2*i}], v59, s[48:51], s60 offen {'sc1' if opt('bsc1', 0) else ''}")
e("s_cmp_lt_u32 s4, 16\ns_cbranch_scc1 L_e_one")
gate(True)
e("s_branch L_h_end\nL_e_one:")
gate(False)
e("L_h_end:")
stamp(9)
stamp_flush()
e("s_endpgm")

S0, S1, PP, OO, K1, K2, V0, V1, Q1, Q2 = 8, 24, 40, 48, 64, 68, 72, 76, 80, 84
AK1, AK2, AV0, AV1, QN = 86, 87, 88, 89, 90
FD = 8
YA, CA, CF, HS, SO, SH, SL, AH, AFV, YAD = 96, 112, 120, 152, 157, 158, 159, 160, 161, 162
e("L_att:")
e(f"""s_lshr_b32 s66, s3, 1
s_and_b32 s67, s5, 3
v_lshlrev_b32 v4, 7, v1
s_waitcnt lgkmcnt(0)""")
stamp(0)
srd(44, P_WQ, 663552)
e("s_barrier")
stamp(1)
e(f"""s_mov_b32 s70, 1
s_cmp_eq_u32 s66, s67
s_cbranch_scc1 L_pf3
s_sub_u32 s92, s3, 2
s_cmp_gt_u32 s66, s67
s_cselect_b32 s92, s92, s3
s_lshl_b32 s93, s4, 3
s_add_u32 s93, s93, s5
s_mul_i32 s93, s93, 9216
s_cmp_ge_u32 s92, 3
s_cselect_b32 s91, 3, 0
s_sub_u32 s91, s92, s91
s_cmp_eq_u32 s91, 0
s_cselect_b32 s48, s{P_X}, s{P_BK}
s_cselect_b32 s49, s{P_X+1}, s{P_BK+1}
s_cmp_eq_u32 s91, 2
s_cselect_b32 s48, s{P_BV}, s48
s_cselect_b32 s49, s{P_BV+1}, s49
s_mov_b32 s50, 2359296
s_mov_b32 s51, 0x00020000
s_cmp_ge_u32 s92, 3
s_cbranch_scc1 L_pf2
s_lshr_b32 s90, s2, 3
s_mul_i32 s90, s90, {162*128}
s_lshl_b32 s91, s92, 13
s_add_u32 s90, s90, s91
s_cmp_eq_u32 s92, 2
s_cselect_b32 exec_hi, 3, -1
buffer_load_dword v164, v4, s[44:47], s90 offen
s_mov_b64 exec, 0xff
s_add_u32 s93, s93, 8192
L_pf2:
{"" if opt("kvpf", 0) else "s_cmp_eq_u32 s48, s8"}
{"" if opt("kvpf", 0) else "s_cbranch_scc0 L_pf4"}
buffer_load_dword v165, v4, s[48:51], s93 offen
L_pf4:
s_mov_b64 exec, -1
""")
e(f"""s_branch L_nopf
L_pf3:
s_getpc_b64 s[90:91]
L_pc:
s_sub_u32 s90, s90, L_pc-{NAME}_kernel
s_subb_u32 s91, s91, 0
s_mov_b32 s70, 0
s_bitcmp1_b32 s3, 0
s_cbranch_scc1 L_nopf
s_lshr_b32 s92, s2, 3
s_mul_i32 s92, s92, 1536
v_add_u32 v4, s92, v4
v_min_u32 v5, L_end-{NAME}_kernel, v4
s_mov_b64 exec, 0xfff
global_load_dword v164, v5, s[90:91]
s_mov_b64 exec, -1""")
e("L_nopf:")
DA = 120
M40 = magic(40, 320)
e("s_lshl_b32 s62, s3, 2\ns_lshl_b32 s64, s3, 3")
for n in range(5):
    e(f"""v_add_u32 v5, {64*n}, v1
v_mul_u32_u24 v6, {M40}, v5
v_lshrrev_b32 v6, 16, v6
v_mul_u32_u24 v7, 40, v6
v_sub_u32 v5, v5, v7
v_lshrrev_b32 v7, 1, v6
v_add_u32 v7, s62, v7
v_and_b32 v7, 7, v7
v_xor_b32 v5, v5, v7
v_mul_u32_u24 v6, 1152, v6
v_lshl_add_u32 v{DA+n}, v5, 4, v6""")
for m in range(6): wslice_off(DA + 9 + m, f"v_add_u32 v5, {512*m}, v0")
e(f"""s_lshl_b32 s60, s4, 6
s_add_u32 s60, s60, s64
s_mul_i32 s60, s60, 1152
s_add_u32 s65, s60, 640
s_mul_i32 s61, s3, 5120
s_lshl_b32 s62, s3, 10
s_mul_i32 s63, s5, 144
""")
srd(36, P_WS, WS_SIZE)
srd(40, P_X, 2359296)
def xa_dma(n): e(f"s_add_u32 m0, s61, {LXA + 1024*n}\nbuffer_load_dwordx4 v{DA+n}, s[40:43], s60 offen lds")
def xb_dma(n): e(f"s_add_u32 m0, s64, {LXB + 1024*n}\nbuffer_load_dwordx4 v{DA+5+n}, s[40:43], s65 offen lds")
def wa_dma(m): e(f"s_add_u32 m0, s62, {LW + 8192*m}\nbuffer_load_dwordx4 v{DA+9+m}, s[44:47], s63 offen lds")
e("s_cmp_eq_u32 s70, 0\ns_cbranch_scc1 L_a_wq")
for n in range(5): xa_dma(n)
e("L_a_wq:")
for m in range(5): wa_dma(m)
e("s_cmp_ge_u32 s3, 5\ns_cbranch_scc1 L_a_s5")
wa_dma(5)
e("L_a_s5:")
wslice_off(DA + 15, f"v_add_u32 v5, {45*64}, v0")
e(f"""s_add_u32 m0, s62, {LW + 45*1024}
s_lshl_b32 s92, s3, 3
buffer_load_dwordx4 v{DA+15}, s[44:47], s63 offen lds
s_cmp_eq_u32 s70, 0
s_cbranch_scc1 L_a_noxb
s_lshl_b32 s64, s3, 12""")
for n in range(4):
    e(f"""v_lshrrev_b32 v6, 5, v1
v_add_u32 v6, {2*n}, v6
v_add_u32 v7, s92, v6
v_and_b32 v7, 15, v7
v_and_b32 v5, 31, v1
v_xor_b32 v5, v5, v7
v_mul_u32_u24 v6, 1152, v6
v_lshl_add_u32 v{DA+5+n}, v5, 4, v6""")
    xb_dma(n)
if opt("kvpf2", 0):
    e(f"""s_sub_u32 s92, s3, 2
s_cmp_gt_u32 s66, s67
s_cselect_b32 s92, s92, s3
s_cmp_ge_u32 s92, 4
s_cbranch_scc1 L_a_noxb
s_bitcmp1_b32 s92, 0
s_cselect_b32 s48, s{P_BV}, s{P_BK}
s_cselect_b32 s49, s{P_BV+1}, s{P_BK+1}
s_lshl_b32 s93, s4, 3
s_add_u32 s93, s93, s5
s_mul_i32 s93, s93, 9216
s_cmp_ge_u32 s92, 2
s_cselect_b32 s91, 8192, 0
s_cselect_b64 exec, 0xff, -1
s_add_u32 s93, s93, s91
s_mov_b32 s70, 2
buffer_load_dword v164, v4, s[48:51], s93 offen
s_mov_b64 exec, -1""")
e("L_a_noxb:")
if opt("spf", 0):
    e(f"""s_lshl_b32 s60, s4, 6
s_add_u32 s60, s60, s3
s_mul_i32 s60, s60, 1152
s_mul_i32 s61, s5, 144
s_add_u32 s60, s60, s61""")
    for r in range(8):
        e(f"""s_load_dword s97, s[{P_BK}:{P_BK+1}], s60
s_load_dword s97, s[{P_BV}:{P_BV+1}], s60
s_add_u32 s61, s60, 128
s_load_dword s97, s[{P_BK}:{P_BK+1}], s61
s_load_dword s97, s[{P_BV}:{P_BV+1}], s61
s_add_u32 s60, s60, 9216""")
AW0, AW1, AXA, AXB = 64, 65, 66, 70
e(f"""v_lshrrev_b32 v4, 5, v1
v_bfe_u32 v5, v1, 2, 2
v_lshl_add_u32 v5, v4, 3, v5
v_mul_u32_u24 v5, 144, v5
v_and_b32 v6, 1, v1
v_bfe_u32 v7, v1, 1, 1
v_bfe_u32 v3, v1, 4, 1
v_lshl_add_u32 v7, v3, 1, v7
s_lshr_b32 s60, s3, 1
s_and_b32 s61, s60, 1
s_mul_i32 s62, s60, 36
s_lshl_b32 s64, s61, 2
s_sub_u32 s62, s62, s64
s_add_u32 s62, s62, {LW}
s_lshl_b32 s64, s61, 3
s_add_u32 s64, s64, 16
v_mul_u32_u24 v6, s64, v6
v_lshl_add_u32 v6, v7, 3, v6
v_add3_u32 v{AW0}, v5, v6, s62
v_add_u32 v{AW1}, {18*2304}, v{AW0}
s_and_b32 s62, s3, 1
s_lshl_b32 s62, s62, 5
v_and_b32 v5, 31, v1
v_add_u32 v5, s62, v5
v_bfe_u32 v6, v5, 1, 3
v_mul_u32_u24 v3, 640, v5""")
for j in range(4):
    e(f"v_add_u32 v7, {2*j}, v4\nv_xor_b32 v7, v7, v6\nv_lshl_add_u32 v{AXA+j}, v7, 4, v3")
e("v_and_b32 v6, 15, v5\nv_lshlrev_b32 v3, 9, v5")
for j in range(8):
    e(f"v_add_u32 v7, {2*j}, v4\nv_xor_b32 v7, v7, v6\nv_lshl_add_u32 v{AXB+j}, v7, 4, v3")
e(f"""s_mov_b32 s64, 0
s_mov_b32 s65, -1
s_cmp_eq_u32 s61, 0
s_cselect_b32 s66, 0, -1
s_cselect_b32 s67, -1, 0
v_lshlrev_b32 v{AK1}, 4, v1
v_and_b32 v5, 31, v1
v_lshlrev_b32 v{AK2}, 2, v5
v_add_u32 v{AK2}, 1024, v{AK2}
v_mul_u32_u24 v6, 288, v4
v_lshl_add_u32 v6, v5, 4, v6
v_add_u32 v6, 1152, v6
v_add_u32 v7, 576, v6
v_and_b32 v3, 27, v5
v_cmp_eq_u32 vcc, 18, v3
v_mov_b32 v3, {LFAR}
v_mov_b32 v8, 2304
v_cndmask_b32 v3, v3, v8, vcc
v_cmp_gt_u32 vcc, 18, v5
v_cndmask_b32 v{AV0}, v3, v6, vcc
v_cndmask_b32 v{AV1}, v3, v7, vcc
v_mov_b32 v92, 1""")
for r in range(16): e(f"v_mov_b32 v{OO+r}, 0")
for r in range(16): e(f"v_mov_b32 v{YA+r}, 0")
e(f"""s_lshl_b32 s90, s3, 8
s_add_u32 s90, s90, s2
s_cmp_ge_u32 s90, 576
s_cselect_b32 s91, 1, 0
s_cmp_ge_u32 s90, 1152
s_cselect_b32 s91, 2, s91
s_mul_i32 s60, s91, 576
s_sub_u32 s92, s90, s60
s_min_u32 s92, s92, 575
s_cmp_lt_u32 s90, 1728
s_cselect_b32 s95, s3, 0
s_cselect_b32 s96, 0, s3
s_lshl_b32 s60, s92, 12""")
srd_off(40, P_H, "s60", 4096)
e(f"s_add_u32 s61, s60, {WS_U}")
srd_off(44, P_WS, "s61", 2048)
e(f"s_add_u32 s61, s61, 2048")
srd_off(52, P_WS, "s61", 2048)
e(f"""s_cmp_eq_u32 s91, 1
s_cselect_b32 s61, {WS_Y2-WS_Y}, 0
s_cselect_b32 s62, 2048, 0
s_sub_u32 s62, s62, 64
s_add_u32 s93, s60, s61
s_add_u32 s93, s93, {WS_Y}
s_cmp_eq_u32 s91, 0
s_cselect_b32 s61, 0, 2048
s_add_u32 s93, s93, s61
s_cmp_eq_u32 s91, 2
s_cselect_b32 s94, 0, 1024
s_mul_i32 s60, s3, 1088
s_add_u32 s60, s60, {LCONV}
v_lshlrev_b32 v{SO}, 4, v5
v_add_u32 v{SO}, s62, v{SO}
v_mov_b32 v3, 0x05040302
v_mov_b32 v6, 0x07060504
v_cndmask_b32 v{SH}, v3, v6, s[64:65]
v_lshlrev_b32 v3, 4, v5
v_mul_u32_u24 v6, 576, v4
v_add3_u32 v{SL}, v3, v6, s60
v_lshrrev_b32 v3, 1, v5
v_lshlrev_b32 v3, 2, v3
v_lshl_add_u32 v3, v4, 4, v3
v_and_b32 v6, 1, v5
v_mul_u32_u24 v6, 576, v6
v_add3_u32 v{AH}, v3, v6, s60
v_sub_u32 v3, 31, v5
v_lshlrev_b32 v3, 5, v3
v_lshl_add_u32 v{AFV}, v4, 4, v3
v_lshlrev_b32 v3, 6, v5
v_lshl_add_u32 v{YAD}, v4, 4, v3
s_lshl_b32 s60, s92, 1
v_mov_b32 v95, s60""")
srd(56, P_D, 1152)
e(f"""s_lshl_b32 s60, s4, 2
s_and_b32 s61, s3, 1
s_lshl_b32 s61, s61, 1
s_add_u32 s60, s60, s61
s_mul_i32 s60, s60, 18432
s_add_u32 s60, s60, {WS_O}
s_lshr_b32 s61, s3, 1
s_lshl_b32 s68, s5, 2
s_add_u32 s61, s61, s68
s_lshl_b32 s68, s61, 9
s_add_u32 s68, s68, s60
s_lshl_b32 s69, s5, 8
s_add_u32 s69, s69, s60
s_lshr_b32 s61, s3, 1
s_lshl_b32 s61, s61, 2
s_add_u32 s69, s69, s61
s_add_u32 s69, s69, 16384
v_bfe_u32 v5, v1, 4, 1
v_mul_u32_u24 v7, 18432, v5
v_and_b32 v5, 15, v1
v_lshl_add_u32 v167, v5, 4, v7
v_lshrrev_b32 v6, 5, v1
v_lshl_add_u32 v166, v6, 8, v167
""")
def hload():
    e(f"""v_add_u32 v163, 16, v{SO}
buffer_load_dwordx4 v[{HS}:{HS+3}], v{SO}, s[40:43], 0 offen
buffer_load_dword v{HS+4}, v163, s[40:43], 0 offen
v_add_u32 v{SO}, 448, v{SO}""")
def hperm():
    for i in range(4): e(f"v_perm_b32 v{HS+i}, v{HS+i+1}, v{HS+i}, v{SH}")
def hwrite(): e(f"ds_write_b128 v{SL}, v[{HS}:{HS+3}]")
def fload(s):
    if "--nof" in sys.argv: return
    r = CF + 4*(s % FD); sr = (44, 52)[s & 1]
    e(f"buffer_load_dwordx4 v[{r}:{r+3}], v{AFV}, s[{sr}:{sr+3}], s94 offen offset:{32*(s >> 1)} {'' if '--fplain' in sys.argv else 'sc1'}")
def aload(s):
    if "--noa" in sys.argv: return
    r = CA + 4*(s % 2); o = 8*(s % 14)
    e(f"ds_read2_b32 v[{r}:{r+1}], v{AH} offset0:{o} offset1:{o+1}")
    e(f"ds_read2_b32 v[{r+2}:{r+3}], v{AH} offset0:{o+2} offset1:{o+3}")
FA, FB = 24, 36
def qread(s):
    a = FA + 4*(s % 3); b = FB + 4*(s % 3)
    base = AW0 if s < 18 else AW1
    off = 2304 * (s % 18)
    e(f"ds_read_b64_tr_b16 v[{a}:{a+1}], v{base} offset:{off}\nds_read_b64_tr_b16 v[{a+2}:{a+3}], v{base} offset:{off+576}")
    if s < 20: e(f"ds_read_b128 v[{b}:{b+3}], v{AXA + (s & 3)} offset:{LXA + 128*(s >> 2)}")
    else: e(f"ds_read_b128 v[{b}:{b+3}], v{AXB + ((s-20) & 7)} offset:{LXB + 256*((s-20) >> 3)}")
def qsteps(lo, hi):
    qread(lo); qread(lo + 1)
    for s in range(lo, hi):
        if s + 2 < hi: qread(s + 2)
        left = min(2, hi - 1 - s)
        a = FA + 4*(s % 3); b = FB + 4*(s % 3)
        e(f"s_waitcnt lgkmcnt({3*left})")
        e(f"v_mfma_f32_32x32x16_bf16 v[{S0}:{S0+15}], v[{a}:{a+3}], v[{b}:{b+3}], {'0' if s == 0 else f'v[{S0}:{S0+15}]'}")
e("s_cmp_eq_u32 s70, 0\ns_cbranch_scc1 L_a_wa1\ns_cmp_eq_u32 s70, 2\ns_cbranch_scc1 L_a_wa3\ns_waitcnt vmcnt(5)\ns_branch L_a_wa2\nL_a_wa3:\ns_waitcnt vmcnt(6)\ns_branch L_a_wa2\nL_a_wa1:\ns_waitcnt vmcnt(1)\nL_a_wa2:")
lds_add(C_A)
lds_spin(C_A, 12)
stamp(2)
e("s_setprio 3")
qsteps(0, 20)
lds_add(C_Q1)
e("s_cmp_eq_u32 s70, 2\ns_cbranch_scc1 L_a_wb1\ns_waitcnt vmcnt(0)\nL_a_wb1:\ns_waitcnt vmcnt(1)")
lds_add(C_B)
lds_spin(C_B, 9)
stamp(13)
hload()
e("buffer_load_ushort v94, v95, s[56:59], 0 offen")
qsteps(20, 36)
lds_add(C_Q)
CQ = 18 ** -0.5 * math.log2(math.e)
e(f"s_mov_b32 s60, {f32(CQ)}")
for r in range(4): e(f"v_mov_b32 v{PP+4+r}, 0")
for r in range(12): e(f"v_mul_f32 v{S0+r}, s60, v{S0+r}")
for i in range(6):
    e(f"v_cvt_pk_bf16_f32 v{24+i}, v{S0+2*i}, v{S0+2*i+1}")
    e(f"v_mul_f32 v{32+i}, v{S0+2*i}, v{S0+2*i}")
    e(f"v_fmac_f32 v{32+i}, v{S0+2*i+1}, v{S0+2*i+1}")
for i in range(4): e(f"v_cndmask_b32 v{Q1+i}, v{24+i}, v{25+i}, s[66:67]")
e(f"""v_cndmask_b32 v{Q2}, v28, v29, s[66:67]
v_cndmask_b32 v{Q2}, v{Q2}, 0, s[64:65]
v_cndmask_b32 v40, v32, v36, s[66:67]
v_cndmask_b32 v41, v36, v37, s[66:67]
v_cndmask_b32 v41, v41, 0, s[64:65]
v_add_f32 v40, v40, v41
v_add_f32 v40, v40, v33
v_add_f32 v40, v40, v34
v_add_f32 v40, v40, v35
v_mov_b32 v41, v40
v_permlane32_swap_b32 v40, v41
v_add_f32 v40, v40, v41
v_sqrt_f32 v{QN}, v40
v_mov_b32 v41, {f32(SHIFT)}
v_mov_b32 v7, {L_KC}
v_cvt_pk_bf16_f32 v{Q2+1}, -v{QN}, v41
v_cndmask_b32 v{Q2+1}, v{Q2+1}, 0, s[64:65]
v_mov_b32 v4, {f32(THR)}""")
stamp(3)
lds_spin(C_K0, 2, sleep=0)
stamp(5)
cstamp(14)
def mm_qk1(sn): e(f"v_mfma_f32_32x32x16_bf16 v[{sn}:{sn+15}], v[{K1}:{K1+3}], v[{Q1}:{Q1+3}], 0")
def mm_qk2(sn): e(f"v_mfma_f32_32x32x8_bf16 v[{sn}:{sn+15}], v[{K2}:{K2+1}], v[{Q2}:{Q2+1}], v[{sn}:{sn+15}]")
def mm_pv(v, p): e(f"v_mfma_f32_32x32x16_bf16 v[{OO}:{OO+15}], v[{v}:{v+3}], v[{p}:{p+3}], v[{OO}:{OO+15}]")
def rd_k1(t): e(f"ds_read_b128 v[{K1}:{K1+3}], v{AK1} offset:{TS*t}")
def rd_k2(t): e(f"ds_read_b32 v{K2}, v{AK2} offset:{TS*t}")
def rd_v0(t): e(f"ds_read_b128 v[{V0}:{V0+3}], v{AV0} offset:{TS*t}")
def rd_v1(t): e(f"ds_read_b128 v[{V1}:{V1+3}], v{AV1} offset:{TS*t}")
e(f"ds_read_b32 v{K2+1}, v7\nds_read_b32 v6, v7 offset:4")
rd_k1(0); rd_k2(0); rd_v1(0)
e(f"""s_waitcnt lgkmcnt(3)
v_readfirstlane_b32 s6, v6
v_lshlrev_b32 v5, 16, v{K2+1}
v_mul_f32 v5, v5, v{QN}
v_cmp_nle_f32 vcc, v5, v4
s_cbranch_vccnz L_truemax
L_pass:
s_waitcnt lgkmcnt(0)""")
mm_qk1(S0); mm_qk2(S0)
rd_k1(1); rd_v1(0); rd_k2(1); rd_v0(0)
e("s_mov_b32 s60, 0\ns_mov_b32 s71, 0\ns_setprio 0\ns_nop 7")
def prio(p):
    if "--noprio" in sys.argv: return
    l = L("pr")
    e(f"s_bitcmp1_b32 s95, 2\ns_cbranch_scc0 {l}\ns_setprio {p}\n{l}:")
def bump(n):
    for a in (AK1, AK2, AV0, AV1): e(f"v_add_u32 v{a}, {TS*n}, v{a}")
e(".p2align 6")
e("L_loop:")
for t in range(8):
    s = (S0, S1)[t & 1]; sn = (S0, S1)[(t + 1) & 1]
    ex = lambda i: e(f"v_exp_f32 v{s+i}, v{s+i}")
    cv = lambda i: e(f"v_cvt_pk_bf16_f32 v{PP+i}, v{s+2*i}, v{s+2*i+1}")
    if t == 0: e("s_bitcmp1_b32 s3, 2\ns_cbranch_scc0 L_pr0\ns_setprio 1\nL_pr0:")
    if t == opt("plu", 5): e("s_bitcmp1_b32 s96, 2\ns_cbranch_scc0 L_pr1\ns_setprio 0\nL_pr1:")
    if t == PLO: prio(0)
    e("s_waitcnt lgkmcnt(2)")
    mm_qk1(sn); rd_k1(t + 2)
    ex(0); ex(1); ex(2); ex(3); cv(0)
    mm_pv(V1, PP + 4); rd_v1(t)
    ex(4); ex(5); cv(1); ex(6); ex(7); cv(2)
    e("s_waitcnt lgkmcnt(2)")
    mm_qk2(sn); rd_k2(t + 2)
    ex(8); cv(3); ex(9); ex(10); ex(11); cv(4)
    mm_pv(V0, PP); rd_v0(t + 1)
    ex(12); ex(13); cv(5); ex(14); ex(15); cv(6); cv(7)
bump(8)
e(f"""s_add_u32 s60, s60, 1
s_cmp_eq_u32 s60, 1
s_cbranch_scc1 L_loop
s_cmp_lg_u32 s60, 8
s_cbranch_scc1 L_edge
L_fini:
s_waitcnt lgkmcnt(0)""")
mm_pv(V1, PP + 4)
e("s_setprio 0")
stamp(6)
cstamp(15)
lds_spin(C_M, 1, va=91, vb=93, sleep=1)
e(f"v_rcp_f32 v4, v{OO+10}")
for r in range(10): e(f"v_mul_f32 v{OO+r}, v{OO+r}, v4")
for i in range(5): e(f"v_cvt_pk_bf16_f32 v{8+i}, v{OO+2*i}, v{OO+2*i+1}")
for i in range(5): e(f"v_min_u32 v{8+i}, -2, v{8+i}")
e(f"""buffer_store_dwordx4 v[8:11], v166, s[36:39], s68 offen sc1
s_mov_b32 exec_hi, 0
buffer_store_dword v12, v167, s[36:39], s69 offen sc1
s_mov_b32 exec_hi, -1""")
OA, TA, TB = 28, 30, 31
e(f"""s_and_b32 s60, s3, 3
s_lshr_b32 s61, s3, 2
s_lshl_b32 s62, s4, 2
s_add_u32 s62, s62, s60
s_mul_i32 s62, s62, 18432
s_mul_i32 s64, s61, 9216
s_add_u32 s62, s62, s64
s_add_u32 s64, s62, {WS_O}
s_add_u32 s65, s64, 4096
s_add_u32 s70, s64, 8192
v_lshlrev_b32 v{OA}, 4, v1
v_and_b32 v4, 15, v1
v_lshrrev_b32 v5, 4, v1
s_cmp_eq_u32 s61, 0
s_cselect_b64 s[66:67], 0, -1""")
OF, DD, WF = 40, 76, 96
def oload(i):
    r = OF + 4*i
    e(f"buffer_load_dwordx4 v[{r}:{r+3}], v{OA}, s[36:39], s{(64, 65, 70)[i >> 2]} offen offset:{1024*(i & 3)} sc1")
if opt("oearly", 0):
    for i in range(9): oload(i)
lds_add(C_L, va=13, vb=14)
e(f"""s_lshl_b32 s60, s60, 4
v_add_u32 v36, s60, v4
v_mul_u32_u24 v36, 336, v36
v_lshl_add_u32 v36, v5, 4, v36
s_mul_i32 s60, s61, {64*336}
s_add_u32 s60, s60, {LEX}
v_add_u32 v36, s60, v36
v_lshrrev_b32 v6, 2, v4
v_and_b32 v4, 3, v4
v_lshrrev_b32 v7, 1, v5
v_mul_u32_u24 v7, 18, v7
v_and_b32 v3, 1, v5
v_lshl_add_u32 v7, v3, 2, v7
v_add_u32 v7, v7, v6
v_mul_u32_u24 v7, 144, v7
v_lshl_add_u32 v7, v4, 3, v7
s_mul_i32 s60, s61, {9*5184}
v_add_u32 v{TA}, s60, v7
v_lshrrev_b32 v3, 1, v6
v_lshl_add_u32 v3, v5, 2, v3
v_mul_u32_u24 v3, 18, v3
v_and_b32 v6, 1, v6
v_add3_u32 v3, v3, v6, 16
v_mul_u32_u24 v3, 144, v3
v_lshl_add_u32 v3, v4, 3, v3""")
for j, (d0, d1) in enumerate([(7*5184, 0), (7*5184+1152, 5184), (8*5184, 41472), (8*5184+1152, 41472+5184)]):
    e(f"v_add_u32 v6, {d0}, v{TA}\nv_add_u32 v7, {d1}, v3\nv_cndmask_b32 v{TB+j}, v6, v7, s[66:67]")
NW = 18
def wread(u):
    i, ct = divmod(u, 5)
    r = WF + 4*(u % NW)
    if i < 7:
        e(f"ds_read_b64_tr_b16 v[{r}:{r+1}], v{TA} offset:{5184*i + 32*ct}")
        e(f"ds_read_b64_tr_b16 v[{r+2}:{r+3}], v{TA} offset:{5184*i + 32*ct + 1152}")
    else:
        e(f"ds_read_b64_tr_b16 v[{r}:{r+1}], v{TB + 2*(i-7)} offset:{32*ct}")
        e(f"ds_read_b64_tr_b16 v[{r+2}:{r+3}], v{TB + 2*(i-7) + 1} offset:{32*ct}")
AHEAD = 15
for u in range(AHEAD): wread(u)
srd(48, P_OUT, 4718592)
def fin_addr(cexpr, vl, vg):
    e(f"""{cexpr}
v_mul_u32_u24 v6, {M9}, v5
v_lshrrev_b32 v6, 16, v6
v_mul_u32_u24 v7, 9, v6
v_sub_u32 v5, v5, v7
v_mul_u32_u24 v7, 336, v6
v_lshl_add_u32 v{vl}, v5, 5, v7
v_add_u32 v{vl}, {LEX}, v{vl}
v_mul_u32_u24 v7, 2304, v6
v_lshl_add_u32 v{vg}, v5, 4, v7""")
fin_addr("v_mov_b32 v5, v0", 37, 38)
fin_addr("v_add_u32 v5, 512, v0", 35, 39)
e(f"""s_mul_i32 s63, s5, 144
s_mul_i32 s60, s4, {64*2304}
s_add_u32 s63, s63, s60""")
if not opt("oearly", 0):
    lds_spin(C_L, 8, sleep=1)
    for i in range(9): oload(i)
e(f"s_mov_b32 s62, {SPIN}")
stamp(7)
def stale(k, lab, br):
    o = OF + 4*k
    e(f"""v_max3_u32 v3, v{o}, v{o+1}, v{o+2}
v_max_u32 v3, v3, v{o+3}
v_cmp_eq_u32 vcc, -1, v3
{br} {lab}""")
retry = []
for i in range(9):
    o = OF + 4*i
    lo, rt = L("ochk"), L("ort")
    e(f"s_waitcnt vmcnt({8-i})\n{lo}:")
    stale(i, rt, "s_cbranch_vccnz")
    retry.append((i, lo, rt))
    nxt = [u for u in range(5*i + AHEAD, 5*i + AHEAD + 5) if u < 45]
    e(f"s_waitcnt lgkmcnt({min(15, 2*min(10, 45 - 5*i - 5))})")
    for ct in range(5):
        u = 5*i + ct
        r = WF + 4*(u % NW); d = DD + 4*ct
        e(f"v_mfma_f32_16x16x32_bf16 v[{d}:{d+3}], v[{r}:{r+3}], v[{o}:{o+3}], {'0' if i == 0 else f'v[{d}:{d+3}]'}")
        if ct < len(nxt): wread(nxt[ct])
stamp(8)
lds_spin(C_L, 8, sleep=0)
for ct in range(5):
    e(f"ds_write_b128 v36, v[{DD+4*ct}:{DD+4*ct+3}] offset:{64*ct}")
lds_add(C_X)
lds_spin(C_X, 8, sleep=0)
def fin(vl, vg):
    e(f"""ds_read_b128 v[8:11], v{vl}
ds_read_b128 v[16:19], v{vl} offset:{64*336}
ds_read_b128 v[12:15], v{vl} offset:16
ds_read_b128 v[20:23], v{vl} offset:{64*336+16}
s_waitcnt lgkmcnt(2)
v_pk_add_f32 v[8:9], v[8:9], v[16:17]
v_pk_add_f32 v[10:11], v[10:11], v[18:19]
s_waitcnt lgkmcnt(0)
v_pk_add_f32 v[12:13], v[12:13], v[20:21]
v_pk_add_f32 v[14:15], v[14:15], v[22:23]
v_cvt_pk_bf16_f32 v24, v8, v9
v_cvt_pk_bf16_f32 v25, v10, v11
v_cvt_pk_bf16_f32 v26, v12, v13
v_cvt_pk_bf16_f32 v27, v14, v15
buffer_store_dwordx4 v[24:27], v{vg}, s[48:51], s63 offen {"sc1" if opt("asc1", 1) else ""}""")
fin(37, 38)
e("s_cmp_lg_u32 s3, 0\ns_cbranch_scc1 L_t_fin\ns_nop 1")
fin(35, 39)
e("L_t_fin:")
stamp(9)
stamp_flush()
e("s_endpgm")
for i, lo, rt in retry:
    e(f"{rt}:\ns_waitcnt vmcnt(0)\ns_sleep {opt('osleep', 2)}")
    oload(i)
    for k in range(i + 1, 9):
        sk = L("osk")
        stale(k, sk, "s_cbranch_vccz")
        oload(k)
        e(f"{sk}:")
    e("s_sub_u32 s62, s62, 1\ns_waitcnt vmcnt(0)")
    e(f"s_cbranch_scc0 {lo}\ns_endpgm")

def release():
    e(f"v_mov_b32 v91, {C_P}\ns_mov_b64 exec, 1\nds_add_u32 v91, v92\ns_mov_b64 exec, -1")
e(f"""L_edge:
s_cmp_eq_u32 s60, 2
s_cbranch_scc1 L_chk
s_cmp_eq_u32 s60, 5
s_cbranch_scc0 L_loop""")
release()
e("s_waitcnt lgkmcnt(0)\ns_branch L_loop\nL_chk:")
cstamp(4)
lds_spin(C_K, 2, va=91, vb=93)
cstamp(10)
e("s_cmp_lt_u32 s90, 1728\ns_cbranch_scc0 L_loop")
class Ctr:
    def __init__(self, init): self.q = list(init)
    def issue(self, tag, n=1): self.q += [tag] * n
    def need(self, *tags):
        last = max((i for i, t in enumerate(self.q) if t in tags), default=-1)
        n = len(self.q) - 1 - last
        self.q = self.q[last + 1:]
        return n if last >= 0 else None
lg = Ctr(["k1_1", "v1_-1", "k2_1", "v0_0"])
vm = Ctr([f"f{k}" for k in range(FD)] + ["h1", "h1"])
def wait(ltags=(), vtags=()):
    a = lg.need(*ltags) if ltags else None
    b = vm.need(*vtags) if vtags else None
    t = []
    if b is not None: t.append(f"vmcnt({min(b, 63)})")
    if a is not None: t.append(f"lgkmcnt({min(a, 15)})")
    if t: e("s_waitcnt " + " ".join(t))
e("L_conv:")
def plain_tile(t, tl):
    s = (S0, S1)[t & 1]; sn = (S0, S1)[(t + 1) & 1]
    ex = lambda i: e(f"v_exp_f32 v{s+i}, v{s+i}")
    cv = lambda i: e(f"v_cvt_pk_bf16_f32 v{PP+i}, v{s+2*i}, v{s+2*i+1}")
    wait([f"k1_{t+1}", f"v1_{t-1}"])
    mm_qk1(sn); rd_k1(tl + 2); lg.issue(f"k1_{t+2}")
    ex(0); ex(1); ex(2); ex(3); cv(0)
    mm_pv(V1, PP + 4); rd_v1(tl); lg.issue(f"v1_{t}")
    ex(4); ex(5); cv(1); ex(6); ex(7); cv(2)
    wait([f"k2_{t+1}", f"v0_{t}"])
    mm_qk2(sn); rd_k2(tl + 2); lg.issue(f"k2_{t+2}")
    ex(8); cv(3); ex(9); ex(10); ex(11); cv(4)
    mm_pv(V0, PP); rd_v0(tl + 1); lg.issue(f"v0_{t+1}")
    ex(12); ex(13); cv(5); ex(14); ex(15); cv(6); cv(7)
def conv_tile(t, tl, k0):
    s = (S0, S1)[t & 1]; sn = (S0, S1)[(t + 1) & 1]
    ex = lambda i: e(f"v_exp_f32 v{s+i}, v{s+i}")
    cv = lambda i: e(f"v_cvt_pk_bf16_f32 v{PP+i}, v{s+2*i}, v{s+2*i+1}")
    def cstep(k):
        a = CA + 4*(k % 2); f = CF + 4*(k % FD)
        newwin = (k + 2) % 14 == 0 and k + 2 < 64
        wait([f"a{k}"], [f"f{k}"] + ([f"h{(k+2)//14}"] if newwin else []))
        e(f"v_mfma_f32_32x32x16_bf16 v[{YA}:{YA+15}], v[{a}:{a+3}], v[{f}:{f+3}], v[{YA}:{YA+15}]")
        if newwin:
            hperm(); hwrite(); lg.issue("w")
        if k + 2 < 64: aload(k + 2); lg.issue(f"a{k+2}", 2)
        if k + FD < 64: fload(k + FD); vm.issue(f"f{k+FD}")
        if newwin and k + 16 < 64: hload(); vm.issue(f"h{(k+2)//14+1}", 2)
    wait([f"k1_{t+1}", f"v1_{t-1}"])
    mm_qk1(sn); rd_k1(tl + 2); lg.issue(f"k1_{t+2}")
    ex(0); ex(1); ex(2)
    mm_pv(V1, PP + 4); rd_v1(tl); lg.issue(f"v1_{t}")
    ex(3); cv(0); ex(4); cv(1); ex(5)
    cstep(k0)
    ex(6); ex(7); cv(2); ex(8)
    wait([f"k2_{t+1}", f"v0_{t}"])
    mm_qk2(sn); rd_k2(tl + 2); lg.issue(f"k2_{t+2}")
    cv(3); ex(9); ex(10); ex(11)
    mm_pv(V0, PP); rd_v0(tl + 1); lg.issue(f"v0_{t+1}")
    cv(4); ex(12); ex(13); cv(5)
    cstep(k0 + 1)
    ex(14); ex(15); cv(6); cv(7)
for t in range(48):
    if t in (16, 32): bump(16)
    if t == 24:
        release(); lg.issue("rel")
    if t == opt("tt", 0):
        e(f"v_mov_b32 v91, {C_T}\ns_mov_b64 exec, 1\nds_add_u32 v91, v92\ns_mov_b64 exec, -1"); lg.issue("ct")
    if t == opt("st", 44):
        e(f"v_mov_b32 v91, {C_S}\ns_mov_b64 exec, 1\nds_add_u32 v91, v92\ns_mov_b64 exec, -1"); lg.issue("sig")
    tl = t % 16
    isconv = CS <= t < CS + 32
    if t % 8 == 0: prio(1)
    if t % 8 == ((PLC - (t // 8) % 2) if isconv else PLO): prio(0)
    if t == max(CS - 3, 0):
        lds_spin(C_U, 1, va=91, vb=93); lg.q = []
        cstamp(12)
        e("s_waitcnt vmcnt(0)")
        e(f"""v_lshlrev_b32 v94, 16, v94
v_lshlrev_b32 v91, 16, v{HS+4}
v_add_f32 v91, v91, v94
s_mov_b32 s61, 0xffff
v_cvt_pk_bf16_f32 v91, v91, v91
s_cmp_eq_u32 s91, 1
s_cselect_b32 exec_lo, 0, 8
s_cselect_b32 exec_hi, 0, 8
v_bfi_b32 v{HS+4}, s61, v91, v{HS+4}
s_mov_b64 exec, -1""")
        hperm()
        hwrite(); aload(0); aload(1); lg.issue("w"); lg.issue("a0", 2); lg.issue("a1", 2)
        for k in range(FD): fload(k)
        hload()
    if isconv: conv_tile(t, tl, 2*(t - CS))
    else: plain_tile(t, tl)
    if t == CS + 32:
        lds_spin(C_MK, 2, va=91, vb=93); lg.q = []
        for k in range(2):
            r = CF + 4*k
            for j in range(4): e(f"v_cvt_pk_bf16_f32 v{r+j}, v{YA+8*k+2*j}, v{YA+8*k+2*j+1}")
            for j in range(4): e(f"v_min_u32 v{r+j}, -2, v{r+j}")
            e(f"v_permlane32_swap_b32 v{r}, v{r+2}\nv_permlane32_swap_b32 v{r+1}, v{r+3}")
            e(f"buffer_store_dwordx4 v[{r}:{r+3}], v{YAD}, s[36:39], s93 offen offset:{32*k} sc1")
        cstamp(11)
e("s_branch L_fini")
e("L_truemax:")
lds_spin(C_K, 2)
e(f"""v_mov_b32 v{Q2+1}, 0
v_mov_b32 v5, 0xff800000
s_mov_b32 s60, 64
L_fb:""")
rd_k1(0); rd_k2(0)
e("s_waitcnt lgkmcnt(0)")
mm_qk1(S0); mm_qk2(S0)
e(f"v_add_u32 v{AK1}, {TS}, v{AK1}\nv_add_u32 v{AK2}, {TS}, v{AK2}")
for i in range(8): e(f"v_max3_f32 v5, v5, v{S0+2*i}, v{S0+2*i+1}")
e(f"""s_sub_u32 s60, s60, 1
s_cmp_lg_u32 s60, 0
s_cbranch_scc1 L_fb
v_subrev_u32 v{AK1}, {TS*64}, v{AK1}
v_subrev_u32 v{AK2}, {TS*64}, v{AK2}
v_mov_b32 v6, v5
v_permlane32_swap_b32 v5, v6
v_max_f32 v5, v5, v6
v_sub_f32 v5, 0, v5
v_cvt_pk_bf16_f32 v6, v5, v5
v_and_b32 v7, 0xffff0000, v6
v_sub_f32 v5, v5, v7
v_cvt_pk_bf16_f32 v7, v5, v5
v_and_b32 v3, 0xffff0000, v7
v_sub_f32 v5, v5, v3
v_cvt_pk_bf16_f32 v5, v5, 0
v_and_b32 v6, 0xffff, v6
v_or_b32 v6, v6, v3
v_cndmask_b32 v{Q2+1}, v6, v5, s[64:65]
v_mov_b32 v{K2+1}, 0x3f803f80""")
rd_k1(0); rd_k2(0)
e("s_branch L_pass\nL_end:\ns_endpgm")

ref = open(f"cdna_kernels/{NAME}.s.ref").read().split("\n")
head = [l for l in ref if l.startswith(";") and "@launch" not in l and not l.startswith("; Override") and not l.startswith("; grid=")]
txt = "\n".join(head) + f"""
; @launch grid=(256,1,1) block=(768,1,1) lds={LDS_BYTES}
.amdgcn_target "amdgcn-amd-amdhsa--gfx950"
.text
.globl {NAME}_kernel
.p2align 8
.type {NAME}_kernel,@function
{NAME}_kernel:
""" + e.text() + f""".section .rodata,"a"
.p2align 6
.amdhsa_kernel {NAME}_kernel
  .amdhsa_next_free_vgpr 168
  .amdhsa_next_free_sgpr 102
  .amdhsa_accum_offset 168
  .amdhsa_group_segment_fixed_size 0
  .amdhsa_kernarg_size 112
  .amdhsa_user_sgpr_count 2
  .amdhsa_user_sgpr_kernarg_segment_ptr 1
  .amdhsa_system_sgpr_workgroup_id_x 1
.end_amdhsa_kernel
"""
open(OUT, "w").write(txt)
print("wrote", OUT, len(txt), "bytes;", e.nops, "nops inserted")
```

```python
import sys, struct, math
sys.path.insert(0, "gen")
from emit import Emitter

NAME = "concat_heads__grouped_kv_mqa__ssm_conv_h3__prompt"
STAMPS = "--stamps" in sys.argv
def opt(name, default):
    for a in sys.argv:
        if a.startswith(f"--{name}="): return int(a.split("=")[1])
    return default
OUT = [a for a in sys.argv[1:] if not a.startswith("--")]
OUT = OUT[0] if OUT else f"cdna_kernels/{NAME}.s"
PSW = opt("psw", 44)
P1C = opt("p1c", 0)
PLC = opt("plc", 5)
CS = opt("cs", 6)
PLO = opt("plo", 6)

def f32(x): return struct.unpack("<I", struct.pack("<f", x))[0]
def magic(d, n):
    m = -(-65536 // d)
    assert all((c * m) >> 16 == c // d for c in range(n)), (d, n)
    return m

WS_G, WS_KVF, WS_KVTF, WS_MF = 0, 0x40000, 0x50000, 0x60000
WS_KV, WS_U, WS_Y, WS_O, WS_ST, WS_Y2 = 0x10000, 0x100000, 0x400000, 0x700000, 0xA00000, 0xB00000
WS_SIZE = 0x1000000
TAGC = 0x9E3779B9
TS = 2320
LXA, LXB, LW = 0, 40960, 73728
NDEF = 53
LWKV = LW + NDEF * 1024
LCONV = 64 * TS
LMISC = LCONV + 8 * 1088
(C_W, C_R, C_KV, C_KVT, C_A, C_B, C_K, C_P, L_MAXLO, L_MAXHI, L_KC, L_TAG, C_F, C_Y, C_YW, C_Q,
 C_K0, C_U, C_WO, C_L, C_X, C_T, C_Q1, C_G, C_S, C_MK, C_M) = [LMISC + 4 * i for i in range(27)]
LDS_BYTES = 163840
LFAR = 0x40000
LEX = 90112
SPIN = opt("spin", 0x200000)
SHIFT, THR = 60.0, 45.0

e = Emitter()
uid = [0]
def L(p):
    uid[0] += 1
    return f"L_{p}{uid[0]}"
def stamp(i):
    if STAMPS: e(f"s_memrealtime s[98:99]\ns_waitcnt lgkmcnt(0)\ns_mov_b32 s{72+i}, s98")
def cstamp(i):
    if STAMPS: e(f"s_memtime s[98:99]\ns_waitcnt lgkmcnt(0)\ns_mov_b32 s{72+i}, s98")
def stamp_flush():
    if not STAMPS: return
    e(f"""s_mul_i32 s60, s2, 12
s_add_u32 s60, s60, s3
s_lshl_b32 s60, s60, 6
s_add_u32 s60, s60, {WS_ST}
s_mov_b64 exec, -1
v_mov_b32 v3, 0""")
    for i in range(16):
        e(f"v_mov_b32 v4, s{72+i}\nbuffer_store_dword v4, v3, s[36:39], s60 offen offset:{4*i}")
def srd(n, plo, nbytes):
    e(f"s_mov_b32 s{n}, s{plo}\ns_mov_b32 s{n+1}, s{plo+1}\ns_mov_b32 s{n+2}, {nbytes}\ns_mov_b32 s{n+3}, 0x00020000")
def srd_off(n, plo, soff, nbytes):
    e(f"s_add_u32 s{n}, s{plo}, {soff}\ns_addc_u32 s{n+1}, s{plo+1}, 0\ns_mov_b32 s{n+2}, {nbytes}\ns_mov_b32 s{n+3}, 0x00020000")
def lds_add(addr, va=3, vb=6, rtn=None, also=None):
    e(f"v_mov_b32 v{va}, {addr}\nv_mov_b32 v{vb}, 1\ns_mov_b64 exec, 1")
    if also is not None: e(f"ds_add_u32 v{va}, v{vb} offset:{also - addr}")
    if rtn is None:
        e(f"ds_add_u32 v{va}, v{vb}\ns_mov_b64 exec, -1")
    else:
        e(f"ds_add_rtn_u32 v{vb}, v{va}, v{vb}\ns_waitcnt lgkmcnt(0)\nv_readfirstlane_b32 s{rtn}, v{vb}\ns_mov_b64 exec, -1")
TMO = "--tmo" in sys.argv
def tmo_mark(what):
    if not TMO: return
    print("timeout id", uid[0], what)
    e(f"""s_mov_b64 s[100:101], exec
s_mov_b64 exec, 1
v_mov_b32 v2, {uid[0]}
s_mul_i32 s88, s2, 12
s_add_u32 s88, s88, s3
s_lshl_b32 s88, s88, 2
s_add_u32 s88, s88, {WS_ST + 0x80000}
v_mov_b32 v0, 0
buffer_store_dword v2, v0, s[36:39], s88 offen
s_mov_b64 exec, s[100:101]""")
def lds_spin(addr, n, va=3, vb=6, sleep=1):
    l = L("spin"); d = L("spun")
    e(f"""v_mov_b32 v{va}, {addr}
s_mov_b32 s89, {SPIN}
{l}:
ds_read_b32 v{vb}, v{va}
s_waitcnt lgkmcnt(0)
v_readfirstlane_b32 s88, v{vb}
s_cmp_ge_u32 s88, {n}
s_cbranch_scc1 {d}
s_sleep {sleep}
s_sub_u32 s89, s89, 1
s_cbranch_scc0 {l}""")
    tmo_mark(f"lds {(addr - LMISC) // 4} >= {n}")
    e(f"{d}:")
def poll_all(base, sleep):
    l, d = L("poll"), L("polled")
    e(f"v_lshlrev_b32 v3, 5, v1\ns_mov_b32 s60, {base}\ns_mov_b32 s61, {base + 4096}\ns_mov_b32 s62, {SPIN}\n{l}:")
    for i in range(4):
        e(f"buffer_load_dwordx2 v[{8+2*i}:{9+2*i}], v3, s[36:39], s{60 + (i >> 1)} offen offset:{2048*(i & 1)} sc1")
    e(f"""s_waitcnt vmcnt(0)
v_cmp_ne_u32 vcc, s6, v8
v_cmp_ne_u32 s[64:65], s6, v10
s_or_b64 vcc, vcc, s[64:65]
v_cmp_ne_u32 s[64:65], s6, v12
s_or_b64 vcc, vcc, s[64:65]
v_cmp_ne_u32 s[64:65], s6, v14
s_or_b64 vcc, vcc, s[64:65]
s_sub_u32 s62, s62, 1
s_cbranch_scc1 {d}
s_cbranch_vccz {d}
s_sleep {sleep}
s_branch {l}
{d}:""")
P_X, P_WQ, P_WK, P_WV, P_WO, P_BQ, P_BK, P_BV, P_SK, P_H, P_D, P_OUT, P_DBG, P_WS = range(8, 36, 2)
M9 = magic(9, 5632)
def wslice_off(dst, cexpr):
    e(f"""{cexpr}
v_mul_u32_u24 v6, {M9}, v5
v_lshrrev_b32 v6, 16, v6
v_mul_u32_u24 v7, 1008, v6
v_lshl_add_u32 v{dst}, v5, 4, v7""")
def get_tag():
    e(f"v_readfirstlane_b32 s6, v2\ns_add_u32 s6, s6, {TAGC}")
def half(dst, src, hi):
    if hi: e(f"v_and_b32 v{dst}, 0xffff0000, v{src}")
    else: e(f"v_lshlrev_b32 v{dst}, 16, v{src}")

e(f"""s_cmp_ge_u32 s2, 256
s_cbranch_scc1 L_end
s_load_dwordx16 s[8:23], s[0:1], 0
s_load_dwordx8 s[24:31], s[0:1], 64
s_load_dwordx4 s[32:35], s[0:1], 96
v_and_b32 v1, 63, v0
v_lshrrev_b32 v2, 6, v0
v_mov_b32 v3, 0
v_readfirstlane_b32 s3, v2
s_and_b32 s4, s2, 31
s_lshr_b32 s5, s2, 5""")
if STAMPS:
    for i in range(16): e(f"s_mov_b32 s{72+i}, 0")
e("s_cmp_lt_u32 s3, 8\ns_cbranch_scc1 L_att")

M3 = magic(3, 1792)
e(f"""s_sub_u32 s7, s3, 8
s_setprio 2
v_subrev_u32 v5, 512, v0""")
for m in range(7):
    e(f"""v_mul_u32_u24 v6, {M3}, v5
v_lshrrev_b32 v6, 16, v6
v_mul_u32_u24 v6, 12, v6
v_lshlrev_b32 v7, 4, v5
v_sub_u32 v{16+m}, v7, v6""")
    if m < 6: e("v_add_u32 v5, 256, v5")
e(f"""v_lshlrev_b32 v4, 4, v1
s_and_b32 s61, s5, 3
s_lshl_b32 s61, s61, 2
s_add_u32 s61, s61, s7
s_lshl_b32 s61, s61, 2
s_lshl_b32 s60, s4, 6
s_add_u32 s60, s60, s61
s_mul_i32 s60, s60, 1152
s_lshl_b32 s62, s7, 5
v_xor_b32 v24, s62, v4
s_add_u32 s62, s62, 16
v_xor_b32 v25, s62, v4
v_lshrrev_b32 v6, 5, v1
s_lshl_b32 s62, s7, 2
v_add_u32 v7, s62, v6
v_and_b32 v5, 31, v1
v_xor_b32 v26, v5, v7
v_xor_b32 v27, 2, v26
v_mul_u32_u24 v6, 1152, v6
v_lshl_add_u32 v26, v26, 4, v6
v_lshl_add_u32 v27, v27, 4, v6
s_lshl_b32 s63, s7, 10
s_waitcnt lgkmcnt(0)""")
stamp(0)
e(f"""s_cmp_lt_u32 s5, 4
s_cselect_b32 s48, s{P_WK}, s{P_WV}
s_cselect_b32 s49, s{P_WK+1}, s{P_WV+1}
s_mov_b32 s50, 20736
s_mov_b32 s51, 0x00020000""")
srd(40, P_X, 2359296)
for m in range(7):
    e(f"s_add_u32 m0, s63, {LWKV + 4096*m}\nbuffer_load_dwordx4 v{16+m}, s[48:51], 0 offen lds")
e(f"s_mul_i32 s62, s61, 640\ns_mov_b32 exec_hi, 0xff")
for i in range(4):
    e(f"s_add_u32 m0, s62, {LXA + 640*i}\ns_add_u32 s64, s60, {1152*i}\nbuffer_load_dwordx4 v{24 + (i >> 1)}, s[40:43], s64 offen lds")
e(f"s_mov_b32 exec_hi, -1\ns_lshl_b32 s62, s61, 9")
for p in range(2):
    e(f"s_add_u32 m0, s62, {LXB + 1024*p}\ns_add_u32 s64, s60, {2304*p + 640}\nbuffer_load_dwordx4 v{26+p}, s[40:43], s64 offen lds")
srd(36, P_WS, WS_SIZE)
e(f"""buffer_load_dword v2, v3, s[36:39], 0 offen sc1
v_and_b32 v4, 15, v1
v_lshrrev_b32 v5, 4, v1
v_lshlrev_b32 v7, 2, v1
v_add_u32 v7, {LMISC}, v7
ds_write_b32 v7, v3
s_waitcnt lgkmcnt(0)""")
M18 = magic(18, 192)
def task_regs(stask, vt0, vd):
    e(f"""v_add_u32 v6, {stask}, v1
v_mul_u32_u24 v7, {M18}, v6
v_lshrrev_b32 v7, 16, v7
s_lshl_b32 s60, s4, 6
v_lshl_add_u32 v{vt0}, v7, 3, s60
v_mul_u32_u24 v7, 18, v7
v_sub_u32 v6, v6, v7
s_mul_i32 s60, s5, 72
v_lshl_add_u32 v{vd}, v6, 2, s60""")
def p1_regs(slot):
    return (8, 30, 48, 56, 57) if slot == 0 else (120, 142, 160, 58, 59)
def p1_loads(stask, slot=0):
    PK, PV_, PS, T0, DD_ = p1_regs(slot)
    task_regs(stask, T0, DD_)
    e(f"v_mul_u32_u24 v6, 1152, v{T0}\nv_lshl_add_u32 v6, v{DD_}, 1, v6")
    for i in range(3):
        e(f"v_subrev_u32 v7, {1152*(3-i)}, v6\nbuffer_load_dwordx2 v[{PK+2*i}:{PK+2*i+1}], v7, s[44:47], 0 offen")
    for i in range(8):
        e(f"s_mov_b32 s60, {1152*i}\nbuffer_load_dwordx2 v[{PK+6+2*i}:{PK+7+2*i}], v6, s[44:47], s60 offen\nbuffer_load_dwordx2 v[{PV_+2*i}:{PV_+2*i+1}], v6, s[52:55], s60 offen")
    e(f"v_lshlrev_b32 v7, 3, v{DD_}\nbuffer_load_dwordx4 v[{PS}:{PS+3}], v7, s[56:59], 0 offen\nbuffer_load_dwordx4 v[{PS+4}:{PS+7}], v7, s[56:59], 0 offen offset:16")
UK, UW, UA = 64, 88, 96
def u_addr(vt0, vd, dst):
    e(f"""v_sub_u32 v7, 2040, v{vt0}
v_lshrrev_b32 v{dst}, 5, v7
v_lshlrev_b32 v{dst}, 5, v{dst}
v_bfe_u32 v3, v7, 4, 1
v_lshl_add_u32 v{dst}, v3, 11, v{dst}
v_bfe_u32 v3, v7, 3, 1
v_lshl_add_u32 v{dst}, v3, 4, v{dst}
v_lshl_add_u32 v{dst}, v{vd}, 12, v{dst}""")
def p1_compute(slot=0):
    if "--nop1c" in sys.argv: return
    PK, PV_, PS, T0, DD_ = p1_regs(slot)
    u_addr(T0, DD_, 6)
    pr = lambda x: f"v[{x}:{x+1}]"
    for ee in range(2):
        for i in range(11):
            half(UK + 2*i, PK + 2*i + ee, 0); half(UK + 2*i + 1, PK + 2*i + ee, 1)
        for j in range(4):
            for c in range(2):
                half(UW + 2*j + c, PS + 4*ee + 2*c + (j >> 1), j & 1)
        for i in range(8):
            a = UA + 2*i
            e(f"v_pk_mul_f32 {pr(a)}, {pr(UK+2*i)}, {pr(UW+6)}")
            for j in (2, 1, 0):
                e(f"v_pk_fma_f32 {pr(a)}, {pr(UK+2*(i+3-j))}, {pr(UW+2*j)}, {pr(a)}")
            half(112, PV_ + 2*i + ee, 0); half(113, PV_ + 2*i + ee, 1)
            e(f"v_pk_mul_f32 {pr(a)}, {pr(a)}, v[112:113]")
        for c in range(2):
            r = (60, 116)[c]
            for m in range(4):
                e(f"v_cvt_pk_bf16_f32 v{r+m}, v{UA+2*(7-2*m)+c}, v{UA+2*(6-2*m)+c}")
            e(f"s_mov_b32 s60, {WS_U + 4096*(2*ee+c)}\nbuffer_store_dwordx4 v[{r}:{r+3}], v6, s[36:39], s60 offen sc1")
def p1_issue():
    srd(44, P_BK, 2359296)
    srd(52, P_BV, 2359296)
    srd(56, P_SK, 4608)
    l = L("p1a")
    e("s_sub_u32 s63, 3, s7\ns_lshl_b32 s63, s63, 6")
    p1_loads("s63")
    e(f"s_cmp_lg_u32 s7, 3\ns_cbranch_scc1 {l}\ns_mov_b64 exec, 0xffff")
    p1_loads("0x80", 1)
    e(f"s_mov_b64 exec, -1\n{l}:")
if P1C == 2: p1_issue()
e("L_h_b0:\ns_barrier")
def publish_kv():
    nl = L("nl")
    lds_add(C_KV, rtn=60)
    e(f"""s_cmp_lg_u32 s60, 3
s_cbranch_scc1 {nl}
v_mov_b32 v3, {L_MAXLO}
ds_read_b64 v[6:7], v3
s_lshl_b32 s60, s2, 5
s_add_u32 s60, s60, {WS_KVF}
v_mov_b32 v3, 0
s_waitcnt lgkmcnt(0)
v_add_f32 v7, v6, v7
v_mov_b32 v6, s6
s_mov_b64 exec, 1
buffer_store_dwordx2 v[6:7], v3, s[36:39], s60 offen sc1
s_mov_b64 exec, -1
{nl}:""")

def publish_u():
    nl = L("nl")
    lds_add(C_KVT, rtn=60)
    e(f"""s_cmp_lg_u32 s60, 1
s_cbranch_scc1 {nl}
v_mov_b32 v6, s6
s_lshl_b32 s60, s2, 5
s_add_u32 s60, s60, {WS_KVTF}
v_mov_b32 v3, 0
s_mov_b64 exec, 1
buffer_store_dword v6, v3, s[36:39], s60 offen sc1
s_mov_b64 exec, -1
{nl}:""")
e("s_cmp_lt_u32 s7, 2\ns_cbranch_scc1 L_h_kv")
if P1C == 2: e("s_cmp_eq_u32 s7, 3\ns_cbranch_scc1 L_h_w3\ns_waitcnt vmcnt(26)\ns_branch L_h_w4\nL_h_w3:\ns_waitcnt vmcnt(47)\nL_h_w4:")
else: e("s_waitcnt vmcnt(0)")
lds_add(C_W, also=C_A)
if P1C == 2: e("s_cmp_eq_u32 s7, 3\ns_cbranch_scc1 L_h_w5\ns_waitcnt vmcnt(21)\ns_branch L_h_w6\nL_h_w5:\ns_waitcnt vmcnt(42)\nL_h_w6:")
else: e("s_waitcnt vmcnt(0)")
get_tag()
publish_kv()
stamp(1)
e("s_cmp_eq_u32 s7, 3\ns_cbranch_scc1 L_h_p1")
srd(40, P_WQ, 663552)
for n in range(NDEF, 81): wslice_off(120 + n - NDEF, f"v_add_u32 v5, {64*n}, v1")
e("s_mul_i32 s63, s5, 144")
lds_spin(C_R, 2)
e("s_setprio 0")
for n in range(NDEF, 81):
    e(f"s_mov_b32 m0, {LW + 1024*n}\nbuffer_load_dwordx4 v{120 + n - NDEF}, s[40:43], s63 offen lds")
e("s_setprio 2")
if P1C == 2:
    e("s_waitcnt vmcnt(28)")
    p1_compute()
    e("s_waitcnt vmcnt(4)")
    lds_add(C_B)
    e("s_branch L_h_p1b")
else:
    e("s_waitcnt vmcnt(0)")
    lds_add(C_B)
e("L_h_p1:")
if P1C != 2:
    if P1C == 5:
        srd(44, P_BK, 2359296)
        srd(52, P_BV, 2359296)
        e(f"""v_lshlrev_b32 v8, 7, v1
s_lshl_b32 s63, s4, 3
s_add_u32 s63, s63, s5
s_mul_i32 s63, s63, 9216
s_add_u32 s61, s63, 8192
s_cmp_lg_u32 s7, 3
s_cbranch_scc1 L_h_nokp""")
        lds_spin(C_A, 12, sleep=1)
        e(f"""buffer_load_dword v9, v8, s[44:47], s63 offen
buffer_load_dword v10, v8, s[52:55], s63 offen
s_mov_b64 exec, 0xff
buffer_load_dword v11, v8, s[44:47], s61 offen
buffer_load_dword v12, v8, s[52:55], s61 offen
s_mov_b64 exec, -1
s_waitcnt vmcnt(0)
L_h_nokp:""")
        lds_spin(C_F, 1, sleep=2); e(f"s_sleep {opt('p1d', 0)}")
    elif P1C == 4:
        lds_spin(C_F, 1, sleep=2); lds_spin(C_Q1, 8, sleep=2); e(f"s_sleep {opt('p1d', 4)}")
    elif P1C == 3: lds_spin(C_G, 2, sleep=2)
    else: lds_spin(C_B if P1C else C_A, 9 if P1C else 12, sleep=2)
    stamp(2)
    p1_issue()
e("s_waitcnt vmcnt(0)")
stamp(10)
p1_compute()
e("s_cmp_lg_u32 s7, 3\ns_cbranch_scc1 L_h_p1b\ns_mov_b64 exec, 0xffff")
p1_compute(1)
e("s_mov_b64 exec, -1\nL_h_p1b:\ns_waitcnt vmcnt(0)")
stamp(11)
publish_u()
e(f"""s_cmp_lg_u32 s7, 3
s_cbranch_scc1 L_h_epi""")
lds_spin(C_T, 1, sleep=8)
stamp(3)
poll_all(WS_KVTF, 8)
lds_add(C_U)
stamp(6)
srd(40, P_WO, 663552)
for n in range(9): wslice_off(16 + n, f"v_add_u32 v5, {64*n}, v1")
lds_spin(C_P, 8, sleep=16)
e(f"""s_mul_i32 s63, s5, 144
s_mov_b32 s60, 0
L_wo:""")
for n in range(9):
    e(f"s_add_u32 m0, s60, {1024*n}\ns_sleep {opt('wosleep', 0)}\nbuffer_load_dwordx4 v{16+n}, s[40:43], s63 offen lds")
e(f"""s_add_u32 s60, s60, 9216
s_add_u32 s63, s63, {64*1152}
s_cmp_lt_u32 s60, 82944
s_cbranch_scc1 L_wo
s_waitcnt vmcnt(0)""")
lds_add(C_WO)
stamp(7)
poll_all(WS_MF, 8)
lds_add(C_M)
e("s_branch L_h_epi")

e("L_h_kv:")
XAD, WAD = 8, 14
e(f"""v_lshrrev_b32 v6, 2, v4
v_lshl_add_u32 v6, v5, 3, v6
v_mul_u32_u24 v6, 48, v6
v_and_b32 v7, 3, v4
v_lshlrev_b32 v7, 3, v7
s_cmp_eq_u32 s7, 1
s_cselect_b64 s[64:65], -1, 0
v_cndmask_b32 v7, v7, 32, s[64:65]
v_add_u32 v{WAD}, v6, v7
v_add_u32 v{WAD}, {LWKV}, v{WAD}
s_and_b32 s60, s5, 3
s_lshl_b32 s60, s60, 4
v_add_u32 v6, s60, v4
v_bfe_u32 v7, v6, 1, 3
v_mul_u32_u24 v3, 640, v6""")
for j in range(2):
    e(f"v_add_u32 v15, {4*j}, v5\nv_xor_b32 v15, v15, v7\nv_lshl_add_u32 v{XAD+j}, v15, 4, v3")
e("v_lshlrev_b32 v3, 9, v6")
for j in range(4):
    e(f"v_add_u32 v15, {4*j}, v5\nv_xor_b32 v15, v15, v4\nv_lshl_add_u32 v{XAD+2+j}, v15, 4, v3")
e(f"""s_lshl_b32 s60, s4, 1
s_bfe_u32 s61, s5, 0x10001
s_add_u32 s60, s60, s61
s_mul_i32 s60, s60, {TS}
s_add_u32 s66, s60, {WS_KV}
s_and_b32 s61, s5, 1
s_cmp_ge_u32 s5, 4
s_cbranch_scc1 L_h_av
s_lshl_b32 s60, s61, 4
v_add_u32 v6, s60, v4
v_lshlrev_b32 v7, 4, v6
v_lshl_add_u32 v16, v5, 3, v7
v_add_u32 v17, 4, v16
v_lshlrev_b32 v3, 2, v6
v_add_u32 v3, 1024, v3
v_add_u32 v15, 512, v7
v_cmp_eq_u32 vcc, 2, v5
v_cndmask_b32 v16, v16, v3, vcc
v_cndmask_b32 v17, v17, v15, vcc
v_add_u32 v3, 4, v15
v_add_u32 v6, 8, v15
v_cmp_eq_u32 vcc, 3, v5
v_cndmask_b32 v16, v16, v3, vcc
v_cndmask_b32 v17, v17, v6, vcc
v_add_u32 v15, 12, v15
v_cndmask_b32 v16, v16, v15, s[64:65]
s_branch L_h_adone
L_h_av:
s_mul_i32 s61, s61, 576
s_lshl_b32 s60, s7, 8
s_add_u32 s61, s61, s60
v_lshrrev_b32 v6, 1, v5
v_and_b32 v7, 1, v5
v_mul_u32_u24 v7, 288, v7
v_lshl_add_u32 v7, v6, 3, v7
v_lshl_add_u32 v7, v4, 4, v7
v_add_u32 v16, s61, v7
v_add_u32 v16, 1152, v16
v_lshlrev_b32 v6, 3, v6
v_add_u32 v17, 2304, v6
L_h_adone:
s_waitcnt vmcnt(0)""")
get_tag()
lds_add(C_W, also=C_A)
lds_spin(C_W, 4, sleep=0)
stamp(10)
WR, XF, DK, KD = 64, 96, 92, 5
def kvread(s):
    r = WR + 4*(s % KD); x = XF + 4*(s % KD)
    e(f"ds_read_b64_tr_b16 v[{r}:{r+1}], v{WAD} offset:{1536*s}\nds_read_b64_tr_b16 v[{r+2}:{r+3}], v{WAD} offset:{1536*s + 192}")
    if s < 10: e(f"ds_read_b128 v[{x}:{x+3}], v{XAD + (s & 1)} offset:{LXA + 128*(s >> 1)}")
    else: e(f"ds_read_b128 v[{x}:{x+3}], v{XAD + 2 + ((s-10) & 3)} offset:{LXB + 256*((s-10) >> 2)}")
def kvproj(kside):
    for s in range(KD): kvread(s)
    for s in range(18):
        left = min(KD - 1, 17 - s)
        f = WR + 4*(s % KD); x = XF + 4*(s % KD)
        e(f"s_waitcnt lgkmcnt({3*left})")
        a, b = (f, x) if kside else (x, f)
        e(f"v_mfma_f32_16x16x32_bf16 v[{DK}:{DK+3}], v[{a}:{a+3}], v[{b}:{b+3}], {'0' if s == 0 else f'v[{DK}:{DK+3}]'}")
        if s + KD < 18: kvread(s + KD)
e("s_cmp_ge_u32 s5, 4\ns_cbranch_scc1 L_h_vproj")
kvproj(True)
e(f"""v_cvt_pk_bf16_f32 v64, v{DK}, v{DK+1}
v_cvt_pk_bf16_f32 v65, v{DK+2}, v{DK+3}
v_mul_f32 v66, v{DK}, v{DK}
v_fmac_f32 v66, v{DK+1}, v{DK+1}
s_cmp_eq_u32 s7, 1
s_cbranch_scc1 L_h_stk2
buffer_store_dword v64, v16, s[36:39], s66 offen sc1
buffer_store_dword v65, v17, s[36:39], s66 offen sc1
v_fmac_f32 v66, v{DK+2}, v{DK+2}
v_fmac_f32 v66, v{DK+3}, v{DK+3}
v_mov_b32 v67, v66
v_permlane32_swap_b32 v66, v67
v_add_f32 v66, v66, v67
v_mov_b32 v67, v66
v_permlane16_swap_b32 v66, v67
v_add_f32 v66, v66, v67
v_mov_b32 v3, {L_MAXLO}
s_branch L_h_stmax
L_h_stk2:
s_mov_b64 exec, 0xffff
buffer_store_dword v64, v16, s[36:39], s66 offen sc1
s_mov_b64 exec, -1
v_mov_b32 v3, {L_MAXHI}
L_h_stmax:""")
for k in (8, 4, 2, 1): e(f"v_max_f32_dpp v66, v66, v66 row_ror:{k} row_mask:0xf bank_mask:0xf")
e("ds_write_b32 v3, v66\ns_branch L_h_std\nL_h_vproj:")
kvproj(False)
e(f"""v_cvt_pk_bf16_f32 v64, v{DK}, v{DK+1}
v_cvt_pk_bf16_f32 v65, v{DK+2}, v{DK+3}
s_cmp_eq_u32 s7, 0
s_cbranch_scc1 L_h_stv
v_mov_b32 v3, 0x3f803f80
v_cmp_eq_u32 vcc, 2, v4
v_cndmask_b32 v16, v16, v17, vcc
v_cndmask_b32 v64, v64, v3, vcc
v_cndmask_b32 v65, v65, v3, vcc
v_cmp_gt_u32 vcc, 3, v4
s_mov_b64 exec, vcc
L_h_stv:
buffer_store_dwordx2 v[64:65], v16, s[36:39], s66 offen sc1
s_mov_b64 exec, -1
L_h_std:""")
stamp(11)
lds_add(C_R)
e("s_waitcnt vmcnt(0)")
publish_kv()
stamp(12)
e("s_cmp_lg_u32 s7, 0\ns_cbranch_scc1 L_h_wait")
lds_spin(C_B if opt("pollc", 0) else C_A, 9 if opt("pollc", 0) else 12, sleep=2)
stamp(2)
poll_all(WS_KVF, opt("pollsleep", 6))
lds_add(C_F)
e("s_branch L_h_go\nL_h_wait:")
lds_spin(C_F, 1, sleep=2)
e("L_h_go:")
stamp(3)
NC0 = 20
e(f"""s_cmp_lg_u32 s7, 0
s_cbranch_scc1 L_h_nokc
v_max_f32 v9, v9, v11
v_max3_f32 v9, v9, v13, v15""")
for k in (8, 4, 2, 1):
    e(f"v_max_f32_dpp v9, v9, v9 row_ror:{k} row_mask:0xf bank_mask:0xf")
for sw in ("v_permlane16_swap_b32", "v_permlane32_swap_b32"):
    e(f"v_mov_b32 v13, v9\n{sw} v9, v13\nv_max_f32 v9, v9, v13")
e(f"""v_sqrt_f32 v9, v9
v_mov_b32 v10, 1.0
v_mov_b32 v3, {L_KC}
v_mul_f32 v9, {f32(1.02)}, v9
v_cvt_pk_bf16_f32 v10, v9, v10
v_mov_b32 v11, s6
ds_write_b64 v3, v[10:11]
s_cmp_lg_u32 s2, 0
s_cbranch_scc1 L_h_nokc
v_mov_b32 v3, 0
v_mov_b32 v6, s6
s_mov_b64 exec, 1
buffer_store_dword v6, v3, s[36:39], 0 offen sc1
s_mov_b64 exec, -1
L_h_nokc:""")
def kv_dma(lo, hi):
    l = L("kvdma")
    e(f"""s_lshl_b32 s60, s7, 10
s_add_u32 s60, s60, {lo}
{l}:
s_mov_b32 m0, s60
s_add_u32 s61, s60, {WS_KV}
s_add_u32 s60, s60, 2048
buffer_load_dwordx4 v4, s[36:39], s61 offen sc1 lds
s_cmp_lt_u32 s60, {hi}
s_cbranch_scc1 {l}""")
e("v_lshlrev_b32 v4, 4, v1")
lds_spin(C_Q1, 8, sleep=0)
stamp(4)
kv_dma(0, 2048*NC0)
lds_add(C_G)
e("s_waitcnt vmcnt(0)")
lds_add(C_K0)
stamp(5)
lds_spin(C_Q, 8, sleep=1)
kv_dma(2048*NC0, 64*TS)
e("s_waitcnt vmcnt(0)")
lds_add(C_K)
stamp(6)
e(f"""v_and_b32 v4, 15, v1
v_lshrrev_b32 v5, 4, v1
s_lshl_b32 s60, s4, 2
s_lshl_b32 s61, s7, 1
s_add_u32 s60, s60, s61
s_mul_i32 s60, s60, 18432
s_lshl_b32 s61, s5, 11
s_add_u32 s60, s60, s61
s_add_u32 s60, s60, {WS_O}
v_lshlrev_b32 v6, 4, v1
v_mov_b32 v8, -1
v_mov_b32 v9, -1
v_mov_b32 v10, -1
v_mov_b32 v11, -1
buffer_store_dwordx4 v[8:11], v6, s[36:39], s60 offen sc1
buffer_store_dwordx4 v[8:11], v6, s[36:39], s60 offen offset:1024 sc1
s_add_u32 s60, s60, 18432
buffer_store_dwordx4 v[8:11], v6, s[36:39], s60 offen sc1
buffer_store_dwordx4 v[8:11], v6, s[36:39], s60 offen offset:1024 sc1
s_mul_i32 s60, s4, {4*18432}
s_lshl_b32 s61, s5, 8
s_add_u32 s60, s60, s61
s_add_u32 s60, s60, {WS_O + 16*1024}
v_mul_u32_u24 v6, 18432, v5
v_lshl_add_u32 v6, v4, 4, v6
buffer_store_dwordx4 v[8:11], v6, s[36:39], s60 offen sc1""")
e(f"""v_lshlrev_b32 v6, 4, v1
s_and_b32 s60, s7, 1
s_lshl_b32 s60, s60, 10
v_add_u32 v6, s60, v6
v_mov_b32 v60, -1
v_mov_b32 v61, -1
v_mov_b32 v62, -1
v_mov_b32 v63, -1
s_mov_b32 s63, s2
L_h_ym:
s_cmp_ge_u32 s63, 576
s_cselect_b32 s61, {WS_Y2 + 2048 - 576*4096}, {0}
s_cmp_ge_u32 s63, 1152
s_cselect_b32 s61, {WS_Y + 2048 - 1152*4096}, s61
s_cmp_lt_u32 s63, 576
s_cselect_b32 s61, {WS_Y}, s61
s_lshl_b32 s60, s63, 12
s_add_u32 s60, s60, s61
s_add_u32 s63, s63, 256
buffer_store_dwordx4 v[60:63], v6, s[36:39], s60 offen sc1
s_cmp_lt_u32 s63, 1728
s_cbranch_scc1 L_h_ym""")
e("s_waitcnt vmcnt(0)")
lds_add(C_MK, rtn=60)
e(f"""s_cmp_lg_u32 s60, 1
s_cbranch_scc1 L_h_nmk
v_mov_b32 v6, s6
s_lshl_b32 s60, s2, 5
s_add_u32 s60, s60, {WS_MF}
v_mov_b32 v3, 0
s_mov_b64 exec, 1
buffer_store_dword v6, v3, s[36:39], s60 offen sc1
s_mov_b64 exec, -1
L_h_nmk:""")
e("s_cmp_lg_u32 s7, 0\ns_cbranch_scc1 L_h_epi")
srd(40, P_WO, 663552)
e(f"""v_lshlrev_b32 v4, 7, v1
s_lshr_b32 s60, s2, 3
s_mul_i32 s60, s60, {162*128}
buffer_load_dword v8, v4, s[40:43], s60 offen
s_add_u32 s60, s60, 8192
buffer_load_dword v9, v4, s[40:43], s60 offen
s_add_u32 s60, s60, 8192
s_mov_b32 exec_hi, 3
buffer_load_dword v10, v4, s[40:43], s60 offen
s_branch L_h_end""")
e("L_h_epi:\ns_sub_u32 s70, 3, s7\ns_lshl_b32 s70, s70, 6")
srd(40, P_BQ, 2359296)
srd(48, P_OUT, 4718592)
srd(52, P_WS, WS_SIZE)
e("s_cmp_ge_u32 s4, 16\ns_cselect_b32 s54, s54, 0")
lds_spin(C_U, 1, sleep=16)
e(f"""v_add_u32 v6, s70, v1
v_and_b32 v7, 7, v6
s_lshl_b32 s60, s4, 6
v_lshl_add_u32 v56, v7, 3, s60
v_lshrrev_b32 v6, 3, v6
s_mul_i32 s60, s5, 72
v_lshl_add_u32 v57, v6, 2, s60""")
EU, EY, EZ, EQ, ED = 64, 80, 96, 112, 24
e(f"""s_cmp_eq_u32 s7, 1
s_cselect_b64 s[66:67], 0xffff, -1
s_mov_b64 exec, s[66:67]
v_lshlrev_b32 v7, 1, v57
v_mul_u32_u24 v6, 1152, v56
v_add_u32 v6, v6, v7""")
for i in range(8):
    e(f"s_mov_b32 s60, {1152*i}\nbuffer_load_dwordx2 v[{EQ+2*i}:{EQ+2*i+1}], v6, s[40:43], s60 offen")
e(f"""s_cmp_eq_u32 s7, 2
s_cselect_b32 s60, {LMISC + 256 - LCONV}, 0
s_cmp_eq_u32 s7, 1
s_cselect_b32 s60, 4352, s60
s_add_u32 s60, s60, {LCONV}
v_and_b32 v59, 7, v1
v_mul_u32_u24 v59, 528, v59
v_lshrrev_b32 v58, 3, v1
v_lshl_add_u32 v59, v58, 3, v59
v_add_u32 v59, s60, v59
s_mov_b64 exec, -1
s_cmp_eq_u32 s7, 1
s_cselect_b32 s61, 0, 2
v_lshrrev_b32 v58, s61, v1
v_lshrrev_b32 v61, 3, v58
v_lshlrev_b32 v61, 4, v61
v_lshl_add_u32 v61, v58, 6, v61
s_cselect_b32 s61, 0, 3
v_and_b32 v62, s61, v1
v_lshl_add_u32 v61, v62, 4, v61
v_add_u32 v61, s60, v61
v_mul_u32_u24 v58, 2304, v58
v_lshl_add_u32 v58, v62, 4, v58
s_mul_i32 s71, s4, {64*2304}
s_mul_i32 s60, s5, 144
s_add_u32 s71, s71, s60
s_add_u32 s71, s71, s70
s_add_u32 s71, s71, 1152
s_mov_b64 exec, s[66:67]""")
e(f"""v_lshlrev_b32 v60, 1, v56
v_lshl_add_u32 v60, v57, 12, v60
s_mov_b64 exec, -1
""")
e("s_cmp_lt_u32 s2, 192\ns_cselect_b32 s63, 7, 6")
lds_spin(C_S, "s63", sleep=8)
lds_spin(C_M, 1, sleep=4)
e(f"s_mov_b64 exec, s[66:67]\ns_mov_b32 s62, {SPIN}\nL_e_poll:")
for c in range(4):
    e(f"s_mov_b32 s60, {WS_Y + 4096*c}\nbuffer_load_dwordx4 v[{EY+4*c}:{EY+4*c+3}], v60, s[36:39], s60 offen sc1")
    e(f"s_mov_b32 s60, {WS_Y2 + 4096*c}\nbuffer_load_dwordx4 v[{EZ+4*c}:{EZ+4*c+3}], v60, s[52:55], s60 offen sc1")
e(f"s_waitcnt vmcnt(0)\nv_max_u32 v3, v{EY}, v{EY+1}")
for r in range(EY + 2, EY + 32, 2): e(f"v_max3_u32 v3, v3, v{r}, v{r+1}")
e(f"""v_cmp_eq_u32 vcc, -1, v3
s_sub_u32 s62, s62, 1
s_cbranch_scc1 L_e_go
s_cbranch_vccz L_e_go
s_sleep 16
s_branch L_e_poll
L_e_go:
s_setprio {opt("eprio", 0)}""")
stamp(8)
def gate(two):
    for i in range(8):
        for ee in range(2):
            half(38, EY + 8*ee + (i >> 1), i & 1); half(39, EY + 8*ee + 4 + (i >> 1), i & 1)
            if two:
                half(36, EZ + 8*ee + (i >> 1), i & 1); half(37, EZ + 8*ee + 4 + (i >> 1), i & 1)
                e("v_pk_add_f32 v[38:39], v[38:39], v[36:37]")
            half(36, EQ + 2*i + ee, 0); half(37, EQ + 2*i + ee, 1)
            e("v_pk_mul_f32 v[38:39], v[38:39], v[36:37]")
            e(f"v_cvt_pk_bf16_f32 v{40+2*i+ee}, v38, v39")
        e(f"ds_write_b64 v59, v[{40+2*i}:{41+2*i}] offset:{64*i}")
e("s_cmp_lt_u32 s4, 16\ns_cbranch_scc1 L_e_one")
gate(True)
e("s_branch L_e_st\nL_e_one:")
gate(False)
e("L_e_st:\ns_mov_b64 exec, -1\ns_waitcnt lgkmcnt(0)")
for m in range(4): e(f"ds_read_b128 v[{64+4*m}:{67+4*m}], v61 offset:{1056*m}")
for m in range(4):
    e(f"s_waitcnt lgkmcnt({3-m})\nbuffer_store_dwordx4 v[{64+4*m}:{67+4*m}], v58, s[48:51], s71 offen {'sc1' if opt('bsc1', 0) else ''}\ns_add_u32 s71, s71, {16*2304}")
    if m == 0: e("s_cmp_eq_u32 s7, 1\ns_cbranch_scc1 L_h_end")
e("L_h_end:")
stamp(9)
stamp_flush()
e("s_endpgm")

S0, S1, PP, OO, K1, K2, V0, V1, Q1, Q2 = 8, 24, 40, 48, 64, 68, 72, 76, 80, 84
AK1, AK2, AV0, AV1, QN = 86, 87, 88, 89, 90
FD = 8
YA, CA, CF, HS, SO, SH, SL, AH, AFV, YAD = 96, 112, 120, 152, 157, 158, 159, 160, 161, 162
e("L_att:")
e(f"""s_lshr_b32 s66, s3, 1
s_and_b32 s67, s5, 3
v_lshlrev_b32 v4, 7, v1
s_waitcnt lgkmcnt(0)""")
stamp(0)
srd(44, P_WQ, 663552)
e("s_barrier")
stamp(1)
e(f"""s_mov_b32 s70, 1
s_cmp_eq_u32 s66, s67
s_cbranch_scc1 L_pf3
s_sub_u32 s92, s3, 2
s_cmp_gt_u32 s66, s67
s_cselect_b32 s92, s92, s3
s_lshl_b32 s93, s4, 3
s_add_u32 s93, s93, s5
s_mul_i32 s93, s93, 9216
s_cmp_ge_u32 s92, 3
s_cselect_b32 s91, 3, 0
s_sub_u32 s91, s92, s91
s_cmp_eq_u32 s91, 0
s_cselect_b32 s48, s{P_X}, s{P_BK}
s_cselect_b32 s49, s{P_X+1}, s{P_BK+1}
s_cmp_eq_u32 s91, 2
s_cselect_b32 s48, s{P_BV}, s48
s_cselect_b32 s49, s{P_BV+1}, s49
s_mov_b32 s50, 2359296
s_mov_b32 s51, 0x00020000
s_cmp_ge_u32 s92, 3
s_cbranch_scc1 L_pf2
s_lshr_b32 s90, s2, 3
s_mul_i32 s90, s90, {162*128}
s_lshl_b32 s91, s92, 13
s_add_u32 s90, s90, s91
s_cmp_eq_u32 s92, 2
s_cselect_b32 exec_hi, 3, -1
buffer_load_dword v164, v4, s[44:47], s90 offen
s_mov_b64 exec, 0xff
s_add_u32 s93, s93, 8192
L_pf2:
{"" if opt("kvpf", 0) else "s_cmp_eq_u32 s48, s8"}
{"" if opt("kvpf", 0) else "s_cbranch_scc0 L_pf4"}
buffer_load_dword v165, v4, s[48:51], s93 offen
L_pf4:
s_mov_b64 exec, -1
""")
e(f"""s_branch L_nopf
L_pf3:
s_getpc_b64 s[90:91]
L_pc:
s_sub_u32 s90, s90, L_pc-{NAME}_kernel
s_subb_u32 s91, s91, 0
s_mov_b32 s70, 0
s_bitcmp1_b32 s3, 0
s_cbranch_scc1 L_nopf
s_lshr_b32 s92, s2, 3
s_mul_i32 s92, s92, 1536
v_add_u32 v4, s92, v4
v_min_u32 v5, L_end-{NAME}_kernel, v4
s_mov_b64 exec, 0xfff
global_load_dword v164, v5, s[90:91]
s_mov_b64 exec, -1""")
e("L_nopf:")
DA = 120
M40 = magic(40, 320)
e("s_lshl_b32 s62, s3, 2\ns_lshl_b32 s64, s3, 3")
for n in range(5):
    e(f"""v_add_u32 v5, {64*n}, v1
v_mul_u32_u24 v6, {M40}, v5
v_lshrrev_b32 v6, 16, v6
v_mul_u32_u24 v7, 40, v6
v_sub_u32 v5, v5, v7
v_lshrrev_b32 v7, 1, v6
v_add_u32 v7, s62, v7
v_and_b32 v7, 7, v7
v_xor_b32 v5, v5, v7
v_mul_u32_u24 v6, 1152, v6
v_lshl_add_u32 v{DA+n}, v5, 4, v6""")
for m in range(6): wslice_off(DA + 9 + m, f"v_add_u32 v5, {512*m}, v0")
e(f"""s_lshl_b32 s60, s4, 6
s_add_u32 s60, s60, s64
s_mul_i32 s60, s60, 1152
s_add_u32 s65, s60, 640
s_mul_i32 s61, s3, 5120
s_lshl_b32 s62, s3, 10
s_mul_i32 s63, s5, 144
""")
srd(36, P_WS, WS_SIZE)
srd(40, P_X, 2359296)
def xa_dma(n): e(f"s_add_u32 m0, s61, {LXA + 1024*n}\nbuffer_load_dwordx4 v{DA+n}, s[40:43], s60 offen lds")
def xb_dma(n): e(f"s_add_u32 m0, s64, {LXB + 1024*n}\nbuffer_load_dwordx4 v{DA+5+n}, s[40:43], s65 offen lds")
def wa_dma(m): e(f"s_add_u32 m0, s62, {LW + 8192*m}\nbuffer_load_dwordx4 v{DA+9+m}, s[44:47], s63 offen lds")
e("s_cmp_eq_u32 s70, 0\ns_cbranch_scc1 L_a_wq")
for n in range(5): xa_dma(n)
e("L_a_wq:")
for m in range(5): wa_dma(m)
e("s_cmp_ge_u32 s3, 5\ns_cbranch_scc1 L_a_s5")
wa_dma(5)
e("L_a_s5:")
wslice_off(DA + 15, f"v_add_u32 v5, {45*64}, v0")
e(f"""s_add_u32 m0, s62, {LW + 45*1024}
s_lshl_b32 s92, s3, 3
buffer_load_dwordx4 v{DA+15}, s[44:47], s63 offen lds
s_cmp_eq_u32 s70, 0
s_cbranch_scc1 L_a_noxb
s_lshl_b32 s64, s3, 12""")
for n in range(4):
    e(f"""v_lshrrev_b32 v6, 5, v1
v_add_u32 v6, {2*n}, v6
v_add_u32 v7, s92, v6
v_and_b32 v7, 15, v7
v_and_b32 v5, 31, v1
v_xor_b32 v5, v5, v7
v_mul_u32_u24 v6, 1152, v6
v_lshl_add_u32 v{DA+5+n}, v5, 4, v6""")
    xb_dma(n)
if opt("kvpf2", 0):
    e(f"""s_sub_u32 s92, s3, 2
s_cmp_gt_u32 s66, s67
s_cselect_b32 s92, s92, s3
s_cmp_ge_u32 s92, 4
s_cbranch_scc1 L_a_noxb
s_bitcmp1_b32 s92, 0
s_cselect_b32 s48, s{P_BV}, s{P_BK}
s_cselect_b32 s49, s{P_BV+1}, s{P_BK+1}
s_lshl_b32 s93, s4, 3
s_add_u32 s93, s93, s5
s_mul_i32 s93, s93, 9216
s_cmp_ge_u32 s92, 2
s_cselect_b32 s91, 8192, 0
s_cselect_b64 exec, 0xff, -1
s_add_u32 s93, s93, s91
s_mov_b32 s70, 2
buffer_load_dword v164, v4, s[48:51], s93 offen
s_mov_b64 exec, -1""")
e("L_a_noxb:")
if opt("spf", 0):
    e(f"""s_lshl_b32 s60, s4, 6
s_add_u32 s60, s60, s3
s_mul_i32 s60, s60, 1152
s_mul_i32 s61, s5, 144
s_add_u32 s60, s60, s61""")
    for r in range(8):
        e(f"""s_load_dword s97, s[{P_BK}:{P_BK+1}], s60
s_load_dword s97, s[{P_BV}:{P_BV+1}], s60
s_add_u32 s61, s60, 128
s_load_dword s97, s[{P_BK}:{P_BK+1}], s61
s_load_dword s97, s[{P_BV}:{P_BV+1}], s61
s_add_u32 s60, s60, 9216""")
AW0, AW1, AXA, AXB = 64, 65, 66, 70
e(f"""v_lshrrev_b32 v4, 5, v1
v_bfe_u32 v5, v1, 2, 2
v_lshl_add_u32 v5, v4, 3, v5
v_mul_u32_u24 v5, 144, v5
v_and_b32 v6, 1, v1
v_bfe_u32 v7, v1, 1, 1
v_bfe_u32 v3, v1, 4, 1
v_lshl_add_u32 v7, v3, 1, v7
s_lshr_b32 s60, s3, 1
s_and_b32 s61, s60, 1
s_mul_i32 s62, s60, 36
s_lshl_b32 s64, s61, 2
s_sub_u32 s62, s62, s64
s_add_u32 s62, s62, {LW}
s_lshl_b32 s64, s61, 3
s_add_u32 s64, s64, 16
v_mul_u32_u24 v6, s64, v6
v_lshl_add_u32 v6, v7, 3, v6
v_add3_u32 v{AW0}, v5, v6, s62
v_add_u32 v{AW1}, {18*2304}, v{AW0}
s_and_b32 s62, s3, 1
s_lshl_b32 s62, s62, 5
v_and_b32 v5, 31, v1
v_add_u32 v5, s62, v5
v_bfe_u32 v6, v5, 1, 3
v_mul_u32_u24 v3, 640, v5""")
for j in range(4):
    e(f"v_add_u32 v7, {2*j}, v4\nv_xor_b32 v7, v7, v6\nv_lshl_add_u32 v{AXA+j}, v7, 4, v3")
e("v_and_b32 v6, 15, v5\nv_lshlrev_b32 v3, 9, v5")
for j in range(8):
    e(f"v_add_u32 v7, {2*j}, v4\nv_xor_b32 v7, v7, v6\nv_lshl_add_u32 v{AXB+j}, v7, 4, v3")
e(f"""s_mov_b32 s64, 0
s_mov_b32 s65, -1
s_cmp_eq_u32 s61, 0
s_cselect_b32 s66, 0, -1
s_cselect_b32 s67, -1, 0
v_lshlrev_b32 v{AK1}, 4, v1
v_and_b32 v5, 31, v1
v_lshlrev_b32 v{AK2}, 2, v5
v_add_u32 v{AK2}, 1024, v{AK2}
v_mul_u32_u24 v6, 288, v4
v_lshl_add_u32 v6, v5, 4, v6
v_add_u32 v6, 1152, v6
v_add_u32 v7, 576, v6
v_and_b32 v3, 27, v5
v_cmp_eq_u32 vcc, 18, v3
v_mov_b32 v3, {LFAR}
v_mov_b32 v8, 2304
v_cndmask_b32 v3, v3, v8, vcc
v_cmp_gt_u32 vcc, 18, v5
v_cndmask_b32 v{AV0}, v3, v6, vcc
v_cndmask_b32 v{AV1}, v3, v7, vcc
v_mov_b32 v92, 1""")
for r in range(16): e(f"v_mov_b32 v{OO+r}, 0")
for r in range(16): e(f"v_mov_b32 v{YA+r}, 0")
e(f"""s_lshl_b32 s90, s3, 8
s_add_u32 s90, s90, s2
s_cmp_ge_u32 s90, 576
s_cselect_b32 s91, 1, 0
s_cmp_ge_u32 s90, 1152
s_cselect_b32 s91, 2, s91
s_mul_i32 s60, s91, 576
s_sub_u32 s92, s90, s60
s_min_u32 s92, s92, 575
s_cmp_lt_u32 s90, 1728
s_cselect_b32 s95, s3, 0
s_cselect_b32 s96, 0, s3
s_lshl_b32 s60, s92, 12""")
srd_off(40, P_H, "s60", 4096)
e(f"s_add_u32 s61, s60, {WS_U}")
srd_off(44, P_WS, "s61", 2048)
e(f"s_add_u32 s61, s61, 2048")
srd_off(52, P_WS, "s61", 2048)
e(f"""s_cmp_eq_u32 s91, 1
s_cselect_b32 s61, {WS_Y2-WS_Y}, 0
s_cselect_b32 s62, 2048, 0
s_sub_u32 s62, s62, 64
s_add_u32 s93, s60, s61
s_add_u32 s93, s93, {WS_Y}
s_cmp_eq_u32 s91, 0
s_cselect_b32 s61, 0, 2048
s_add_u32 s93, s93, s61
s_cmp_eq_u32 s91, 2
s_cselect_b32 s94, 0, 1024
s_mul_i32 s60, s3, 1088
s_add_u32 s60, s60, {LCONV}
v_lshlrev_b32 v{SO}, 4, v5
v_add_u32 v{SO}, s62, v{SO}
v_mov_b32 v3, 0x05040302
v_mov_b32 v6, 0x07060504
v_cndmask_b32 v{SH}, v3, v6, s[64:65]
v_lshlrev_b32 v3, 4, v5
v_mul_u32_u24 v6, 576, v4
v_add3_u32 v{SL}, v3, v6, s60
v_lshrrev_b32 v3, 1, v5
v_lshlrev_b32 v3, 2, v3
v_lshl_add_u32 v3, v4, 4, v3
v_and_b32 v6, 1, v5
v_mul_u32_u24 v6, 576, v6
v_add3_u32 v{AH}, v3, v6, s60
v_sub_u32 v3, 31, v5
v_lshlrev_b32 v3, 5, v3
v_lshl_add_u32 v{AFV}, v4, 4, v3
v_lshlrev_b32 v3, 6, v5
v_lshl_add_u32 v{YAD}, v4, 4, v3
s_lshl_b32 s60, s92, 1
v_mov_b32 v95, s60""")
srd(56, P_D, 1152)
e(f"""s_lshl_b32 s60, s4, 2
s_and_b32 s61, s3, 1
s_lshl_b32 s61, s61, 1
s_add_u32 s60, s60, s61
s_mul_i32 s60, s60, 18432
s_add_u32 s60, s60, {WS_O}
s_lshr_b32 s61, s3, 1
s_lshl_b32 s68, s5, 2
s_add_u32 s61, s61, s68
s_lshl_b32 s68, s61, 9
s_add_u32 s68, s68, s60
s_lshl_b32 s69, s5, 8
s_add_u32 s69, s69, s60
s_lshr_b32 s61, s3, 1
s_lshl_b32 s61, s61, 2
s_add_u32 s69, s69, s61
s_add_u32 s69, s69, 16384
v_bfe_u32 v5, v1, 4, 1
v_mul_u32_u24 v7, 18432, v5
v_and_b32 v5, 15, v1
v_lshl_add_u32 v167, v5, 4, v7
v_lshrrev_b32 v6, 5, v1
v_lshl_add_u32 v166, v6, 8, v167
""")
def hload():
    e(f"""v_add_u32 v163, 16, v{SO}
buffer_load_dwordx4 v[{HS}:{HS+3}], v{SO}, s[40:43], 0 offen
buffer_load_dword v{HS+4}, v163, s[40:43], 0 offen
v_add_u32 v{SO}, 448, v{SO}""")
def hperm():
    for i in range(4): e(f"v_perm_b32 v{HS+i}, v{HS+i+1}, v{HS+i}, v{SH}")
def hwrite(): e(f"ds_write_b128 v{SL}, v[{HS}:{HS+3}]")
def fload(s):
    if "--nof" in sys.argv: return
    r = CF + 4*(s % FD); sr = (44, 52)[s & 1]
    e(f"buffer_load_dwordx4 v[{r}:{r+3}], v{AFV}, s[{sr}:{sr+3}], s94 offen offset:{32*(s >> 1)} {'' if '--fplain' in sys.argv else 'sc1'}")
def aload(s):
    if "--noa" in sys.argv: return
    r = CA + 4*(s % 2); o = 8*(s % 14)
    e(f"ds_read2_b32 v[{r}:{r+1}], v{AH} offset0:{o} offset1:{o+1}")
    e(f"ds_read2_b32 v[{r+2}:{r+3}], v{AH} offset0:{o+2} offset1:{o+3}")
FA, FB = 24, 36
def qread(s):
    a = FA + 4*(s % 3); b = FB + 4*(s % 3)
    base = AW0 if s < 18 else AW1
    off = 2304 * (s % 18)
    e(f"ds_read_b64_tr_b16 v[{a}:{a+1}], v{base} offset:{off}\nds_read_b64_tr_b16 v[{a+2}:{a+3}], v{base} offset:{off+576}")
    if s < 20: e(f"ds_read_b128 v[{b}:{b+3}], v{AXA + (s & 3)} offset:{LXA + 128*(s >> 2)}")
    else: e(f"ds_read_b128 v[{b}:{b+3}], v{AXB + ((s-20) & 7)} offset:{LXB + 256*((s-20) >> 3)}")
def qsteps(lo, hi):
    qread(lo); qread(lo + 1)
    for s in range(lo, hi):
        if s + 2 < hi: qread(s + 2)
        left = min(2, hi - 1 - s)
        a = FA + 4*(s % 3); b = FB + 4*(s % 3)
        e(f"s_waitcnt lgkmcnt({3*left})")
        e(f"v_mfma_f32_32x32x16_bf16 v[{S0}:{S0+15}], v[{a}:{a+3}], v[{b}:{b+3}], {'0' if s == 0 else f'v[{S0}:{S0+15}]'}")
e("s_cmp_eq_u32 s70, 0\ns_cbranch_scc1 L_a_wa1\ns_cmp_eq_u32 s70, 2\ns_cbranch_scc1 L_a_wa3\ns_waitcnt vmcnt(5)\ns_branch L_a_wa2\nL_a_wa3:\ns_waitcnt vmcnt(6)\ns_branch L_a_wa2\nL_a_wa1:\ns_waitcnt vmcnt(1)\nL_a_wa2:")
lds_add(C_A)
lds_spin(C_A, 12)
stamp(2)
e("s_setprio 3")
qsteps(0, 20)
lds_add(C_Q1)
e("s_cmp_eq_u32 s70, 2\ns_cbranch_scc1 L_a_wb1\ns_waitcnt vmcnt(0)\nL_a_wb1:\ns_waitcnt vmcnt(1)")
lds_add(C_B)
lds_spin(C_B, 9)
stamp(13)
hload()
e("buffer_load_ushort v94, v95, s[56:59], 0 offen")
qsteps(20, 36)
lds_add(C_Q)
CQ = 18 ** -0.5 * math.log2(math.e)
e(f"s_mov_b32 s60, {f32(CQ)}")
for r in range(4): e(f"v_mov_b32 v{PP+4+r}, 0")
for r in range(12): e(f"v_mul_f32 v{S0+r}, s60, v{S0+r}")
for i in range(6):
    e(f"v_cvt_pk_bf16_f32 v{24+i}, v{S0+2*i}, v{S0+2*i+1}")
    e(f"v_mul_f32 v{32+i}, v{S0+2*i}, v{S0+2*i}")
    e(f"v_fmac_f32 v{32+i}, v{S0+2*i+1}, v{S0+2*i+1}")
for i in range(4): e(f"v_cndmask_b32 v{Q1+i}, v{24+i}, v{25+i}, s[66:67]")
e(f"""v_cndmask_b32 v{Q2}, v28, v29, s[66:67]
v_cndmask_b32 v{Q2}, v{Q2}, 0, s[64:65]
v_cndmask_b32 v40, v32, v36, s[66:67]
v_cndmask_b32 v41, v36, v37, s[66:67]
v_cndmask_b32 v41, v41, 0, s[64:65]
v_add_f32 v40, v40, v41
v_add_f32 v40, v40, v33
v_add_f32 v40, v40, v34
v_add_f32 v40, v40, v35
v_mov_b32 v41, v40
v_permlane32_swap_b32 v40, v41
v_add_f32 v40, v40, v41
v_sqrt_f32 v{QN}, v40
v_mov_b32 v41, {f32(SHIFT)}
v_mov_b32 v7, {L_KC}
v_cvt_pk_bf16_f32 v{Q2+1}, -v{QN}, v41
v_cndmask_b32 v{Q2+1}, v{Q2+1}, 0, s[64:65]
v_mov_b32 v4, {f32(THR)}""")
stamp(3)
lds_spin(C_K0, 2, sleep=0)
stamp(5)
cstamp(14)
def mm_qk1(sn): e(f"v_mfma_f32_32x32x16_bf16 v[{sn}:{sn+15}], v[{K1}:{K1+3}], v[{Q1}:{Q1+3}], 0")
def mm_qk2(sn): e(f"v_mfma_f32_32x32x8_bf16 v[{sn}:{sn+15}], v[{K2}:{K2+1}], v[{Q2}:{Q2+1}], v[{sn}:{sn+15}]")
def mm_pv(v, p): e(f"v_mfma_f32_32x32x16_bf16 v[{OO}:{OO+15}], v[{v}:{v+3}], v[{p}:{p+3}], v[{OO}:{OO+15}]")
def rd_k1(t): e(f"ds_read_b128 v[{K1}:{K1+3}], v{AK1} offset:{TS*t}")
def rd_k2(t): e(f"ds_read_b32 v{K2}, v{AK2} offset:{TS*t}")
def rd_v0(t): e(f"ds_read_b128 v[{V0}:{V0+3}], v{AV0} offset:{TS*t}")
def rd_v1(t): e(f"ds_read_b128 v[{V1}:{V1+3}], v{AV1} offset:{TS*t}")
e(f"ds_read_b32 v{K2+1}, v7\nds_read_b32 v6, v7 offset:4")
rd_k1(0); rd_k2(0); rd_v1(0)
e(f"""s_waitcnt lgkmcnt(3)
v_readfirstlane_b32 s6, v6
v_lshlrev_b32 v5, 16, v{K2+1}
v_mul_f32 v5, v5, v{QN}
v_cmp_nle_f32 vcc, v5, v4
s_cbranch_vccnz L_truemax
L_pass:
s_waitcnt lgkmcnt(0)""")
mm_qk1(S0); mm_qk2(S0)
rd_k1(1); rd_v1(0); rd_k2(1); rd_v0(0)
e("s_mov_b32 s60, 0\ns_mov_b32 s71, 0\ns_setprio 0\ns_nop 7")
def prio(p):
    if "--noprio" in sys.argv: return
    l = L("pr")
    e(f"s_bitcmp1_b32 s95, 2\ns_cbranch_scc0 {l}\ns_setprio {p}\n{l}:")
def bump(n):
    for a in (AK1, AK2, AV0, AV1): e(f"v_add_u32 v{a}, {TS*n}, v{a}")
e(".p2align 6")
e("L_loop:")
for t in range(8):
    s = (S0, S1)[t & 1]; sn = (S0, S1)[(t + 1) & 1]
    ex = lambda i: e(f"v_exp_f32 v{s+i}, v{s+i}")
    cv = lambda i: e(f"v_cvt_pk_bf16_f32 v{PP+i}, v{s+2*i}, v{s+2*i+1}")
    if t == 0: e("s_bitcmp1_b32 s3, 2\ns_cbranch_scc0 L_pr0\ns_setprio 1\nL_pr0:")
    if t == opt("plu", 5): e("s_bitcmp1_b32 s96, 2\ns_cbranch_scc0 L_pr1\ns_setprio 0\nL_pr1:")
    if t == PLO: prio(0)
    e("s_waitcnt lgkmcnt(2)")
    mm_qk1(sn); rd_k1(t + 2)
    ex(0); ex(1); ex(2); ex(3); cv(0)
    mm_pv(V1, PP + 4); rd_v1(t)
    ex(4); ex(5); cv(1); ex(6); ex(7); cv(2)
    e("s_waitcnt lgkmcnt(2)")
    mm_qk2(sn); rd_k2(t + 2)
    ex(8); cv(3); ex(9); ex(10); ex(11); cv(4)
    mm_pv(V0, PP); rd_v0(t + 1)
    ex(12); ex(13); cv(5); ex(14); ex(15); cv(6); cv(7)
bump(8)
e(f"""s_add_u32 s60, s60, 1
s_cmp_eq_u32 s60, 1
s_cbranch_scc1 L_loop
s_cmp_lg_u32 s60, 8
s_cbranch_scc1 L_edge
L_fini:
s_waitcnt lgkmcnt(0)""")
mm_pv(V1, PP + 4)
e("s_setprio 0")
stamp(6)
cstamp(15)
lds_spin(C_M, 1, va=91, vb=93, sleep=1)
e(f"v_rcp_f32 v4, v{OO+10}")
for r in range(10): e(f"v_mul_f32 v{OO+r}, v{OO+r}, v4")
for i in range(5): e(f"v_cvt_pk_bf16_f32 v{8+i}, v{OO+2*i}, v{OO+2*i+1}")
for i in range(5): e(f"v_min_u32 v{8+i}, -2, v{8+i}")
e(f"""buffer_store_dwordx4 v[8:11], v166, s[36:39], s68 offen sc1
s_mov_b32 exec_hi, 0
buffer_store_dword v12, v167, s[36:39], s69 offen sc1
s_mov_b32 exec_hi, -1""")
OA, TA, TB = 28, 30, 31
e(f"""s_and_b32 s60, s3, 3
s_lshr_b32 s61, s3, 2
s_lshl_b32 s62, s4, 2
s_add_u32 s62, s62, s60
s_mul_i32 s62, s62, 18432
s_mul_i32 s64, s61, 9216
s_add_u32 s62, s62, s64
s_add_u32 s64, s62, {WS_O}
s_add_u32 s65, s64, 4096
s_add_u32 s70, s64, 8192
v_lshlrev_b32 v{OA}, 4, v1
v_and_b32 v4, 15, v1
v_lshrrev_b32 v5, 4, v1
s_cmp_eq_u32 s61, 0
s_cselect_b64 s[66:67], 0, -1""")
OF, DD, WF = 40, 76, 96
def oload(i):
    r = OF + 4*i
    e(f"buffer_load_dwordx4 v[{r}:{r+3}], v{OA}, s[36:39], s{(64, 65, 70)[i >> 2]} offen offset:{1024*(i & 3)} sc1")
if opt("oearly", 0):
    for i in range(9): oload(i)
lds_add(C_L, va=13, vb=14)
e(f"""s_lshl_b32 s60, s60, 4
v_add_u32 v36, s60, v4
v_mul_u32_u24 v36, 336, v36
v_lshl_add_u32 v36, v5, 4, v36
s_mul_i32 s60, s61, {64*336}
s_add_u32 s60, s60, {LEX}
v_add_u32 v36, s60, v36
v_lshrrev_b32 v6, 2, v4
v_and_b32 v4, 3, v4
v_lshrrev_b32 v7, 1, v5
v_mul_u32_u24 v7, 18, v7
v_and_b32 v3, 1, v5
v_lshl_add_u32 v7, v3, 2, v7
v_add_u32 v7, v7, v6
v_mul_u32_u24 v7, 144, v7
v_lshl_add_u32 v7, v4, 3, v7
s_mul_i32 s60, s61, {9*5184}
v_add_u32 v{TA}, s60, v7
v_lshrrev_b32 v3, 1, v6
v_lshl_add_u32 v3, v5, 2, v3
v_mul_u32_u24 v3, 18, v3
v_and_b32 v6, 1, v6
v_add3_u32 v3, v3, v6, 16
v_mul_u32_u24 v3, 144, v3
v_lshl_add_u32 v3, v4, 3, v3""")
for j, (d0, d1) in enumerate([(7*5184, 0), (7*5184+1152, 5184), (8*5184, 41472), (8*5184+1152, 41472+5184)]):
    e(f"v_add_u32 v6, {d0}, v{TA}\nv_add_u32 v7, {d1}, v3\nv_cndmask_b32 v{TB+j}, v6, v7, s[66:67]")
NW = 18
def wread(u):
    i, ct = divmod(u, 5)
    r = WF + 4*(u % NW)
    if i < 7:
        e(f"ds_read_b64_tr_b16 v[{r}:{r+1}], v{TA} offset:{5184*i + 32*ct}")
        e(f"ds_read_b64_tr_b16 v[{r+2}:{r+3}], v{TA} offset:{5184*i + 32*ct + 1152}")
    else:
        e(f"ds_read_b64_tr_b16 v[{r}:{r+1}], v{TB + 2*(i-7)} offset:{32*ct}")
        e(f"ds_read_b64_tr_b16 v[{r+2}:{r+3}], v{TB + 2*(i-7) + 1} offset:{32*ct}")
AHEAD = 15
OD = opt("od", 4)
for u in range(AHEAD): wread(u)
srd(48, P_OUT, 4718592)
def fin_addr(cexpr, vl, vg):
    e(f"""{cexpr}
v_mul_u32_u24 v6, {M9}, v5
v_lshrrev_b32 v6, 16, v6
v_mul_u32_u24 v7, 9, v6
v_sub_u32 v5, v5, v7
v_mul_u32_u24 v7, 336, v6
v_lshl_add_u32 v{vl}, v5, 5, v7
v_add_u32 v{vl}, {LEX}, v{vl}
v_mul_u32_u24 v7, 2304, v6
v_lshl_add_u32 v{vg}, v5, 4, v7""")
fin_addr("v_mov_b32 v5, v0", 37, 38)
fin_addr("v_add_u32 v5, 512, v0", 35, 39)
e(f"""s_mul_i32 s63, s5, 144
s_mul_i32 s60, s4, {64*2304}
s_add_u32 s63, s63, s60""")
if not opt("oearly", 0):
    lds_spin(C_L, 8, sleep=1)
    if opt("odelay", 0): e(f"s_sleep {opt('odelay', 0)}")
    for i in range(OD): oload(i)
e(f"s_mov_b32 s62, {SPIN}")
stamp(7)
def stale(k, lab, br):
    o = OF + 4*k
    e(f"""v_max3_u32 v3, v{o}, v{o+1}, v{o+2}
v_max_u32 v3, v3, v{o+3}
v_cmp_eq_u32 vcc, -1, v3
{br} {lab}""")
retry = []
for i in range(9):
    o = OF + 4*i
    lo, rt = L("ochk"), L("ort")
    e(f"s_waitcnt vmcnt({min(OD, 9-i) - 1})\n{lo}:")
    stale(i, rt, "s_cbranch_vccnz")
    if i + OD < 9: oload(i + OD)
    retry.append((i, lo, rt))
    nxt = [u for u in range(5*i + AHEAD, 5*i + AHEAD + 5) if u < 45]
    e(f"s_waitcnt lgkmcnt({min(15, 2*min(10, 45 - 5*i - 5))})")
    for ct in range(5):
        u = 5*i + ct
        r = WF + 4*(u % NW); d = DD + 4*ct
        e(f"v_mfma_f32_16x16x32_bf16 v[{d}:{d+3}], v[{r}:{r+3}], v[{o}:{o+3}], {'0' if i == 0 else f'v[{d}:{d+3}]'}")
        if ct < len(nxt): wread(nxt[ct])
stamp(8)
lds_spin(C_L, 8, sleep=0)
for ct in range(5):
    e(f"ds_write_b128 v36, v[{DD+4*ct}:{DD+4*ct+3}] offset:{64*ct}")
lds_add(C_X)
lds_spin(C_X, 8, sleep=0)
def fin(vl, vg):
    e(f"""ds_read_b128 v[8:11], v{vl}
ds_read_b128 v[16:19], v{vl} offset:{64*336}
ds_read_b128 v[12:15], v{vl} offset:16
ds_read_b128 v[20:23], v{vl} offset:{64*336+16}
s_waitcnt lgkmcnt(2)
v_pk_add_f32 v[8:9], v[8:9], v[16:17]
v_pk_add_f32 v[10:11], v[10:11], v[18:19]
s_waitcnt lgkmcnt(0)
v_pk_add_f32 v[12:13], v[12:13], v[20:21]
v_pk_add_f32 v[14:15], v[14:15], v[22:23]
v_cvt_pk_bf16_f32 v24, v8, v9
v_cvt_pk_bf16_f32 v25, v10, v11
v_cvt_pk_bf16_f32 v26, v12, v13
v_cvt_pk_bf16_f32 v27, v14, v15
buffer_store_dwordx4 v[24:27], v{vg}, s[48:51], s63 offen {"sc1" if opt("asc1", 1) else ""}""")
fin(37, 38)
e("s_cmp_lg_u32 s3, 0\ns_cbranch_scc1 L_t_fin\ns_nop 1")
fin(35, 39)
e("L_t_fin:")
stamp(9)
stamp_flush()
e("s_endpgm")
for i, lo, rt in retry:
    e(f"{rt}:\ns_waitcnt vmcnt(0)\ns_sleep {opt('osleep', 2)}")
    oload(i)
    for k in range(i + 1, min(9, i + OD)):
        sk = L("osk")
        stale(k, sk, "s_cbranch_vccz")
        oload(k)
        e(f"{sk}:")
    e("s_sub_u32 s62, s62, 1\ns_waitcnt vmcnt(0)")
    e(f"s_cbranch_scc0 {lo}\ns_endpgm")

def release():
    e(f"v_mov_b32 v91, {C_P}\ns_mov_b64 exec, 1\nds_add_u32 v91, v92\ns_mov_b64 exec, -1")
e(f"""L_edge:
s_cmp_eq_u32 s60, 2
s_cbranch_scc1 L_chk
s_cmp_eq_u32 s60, 5
s_cbranch_scc0 L_loop""")
release()
e("s_waitcnt lgkmcnt(0)\ns_branch L_loop\nL_chk:")
cstamp(4)
lds_spin(C_K, 2, va=91, vb=93)
cstamp(10)
e("s_cmp_lt_u32 s90, 1728\ns_cbranch_scc0 L_loop")
class Ctr:
    def __init__(self, init): self.q = list(init)
    def issue(self, tag, n=1): self.q += [tag] * n
    def need(self, *tags):
        last = max((i for i, t in enumerate(self.q) if t in tags), default=-1)
        n = len(self.q) - 1 - last
        self.q = self.q[last + 1:]
        return n if last >= 0 else None
lg = Ctr(["k1_1", "v1_-1", "k2_1", "v0_0"])
vm = Ctr([f"f{k}" for k in range(FD)] + ["h1", "h1"])
def wait(ltags=(), vtags=()):
    a = lg.need(*ltags) if ltags else None
    b = vm.need(*vtags) if vtags else None
    t = []
    if b is not None: t.append(f"vmcnt({min(b, 63)})")
    if a is not None: t.append(f"lgkmcnt({min(a, 15)})")
    if t: e("s_waitcnt " + " ".join(t))
e("L_conv:")
def plain_tile(t, tl):
    s = (S0, S1)[t & 1]; sn = (S0, S1)[(t + 1) & 1]
    ex = lambda i: e(f"v_exp_f32 v{s+i}, v{s+i}")
    cv = lambda i: e(f"v_cvt_pk_bf16_f32 v{PP+i}, v{s+2*i}, v{s+2*i+1}")
    wait([f"k1_{t+1}", f"v1_{t-1}"])
    mm_qk1(sn); rd_k1(tl + 2); lg.issue(f"k1_{t+2}")
    ex(0); ex(1); ex(2); ex(3); cv(0)
    mm_pv(V1, PP + 4); rd_v1(tl); lg.issue(f"v1_{t}")
    ex(4); ex(5); cv(1); ex(6); ex(7); cv(2)
    wait([f"k2_{t+1}", f"v0_{t}"])
    mm_qk2(sn); rd_k2(tl + 2); lg.issue(f"k2_{t+2}")
    ex(8); cv(3); ex(9); ex(10); ex(11); cv(4)
    mm_pv(V0, PP); rd_v0(tl + 1); lg.issue(f"v0_{t+1}")
    ex(12); ex(13); cv(5); ex(14); ex(15); cv(6); cv(7)
def conv_tile(t, tl, k0):
    s = (S0, S1)[t & 1]; sn = (S0, S1)[(t + 1) & 1]
    ex = lambda i: e(f"v_exp_f32 v{s+i}, v{s+i}")
    cv = lambda i: e(f"v_cvt_pk_bf16_f32 v{PP+i}, v{s+2*i}, v{s+2*i+1}")
    def cstep(k):
        a = CA + 4*(k % 2); f = CF + 4*(k % FD)
        newwin = (k + 2) % 14 == 0 and k + 2 < 64
        wait([f"a{k}"], [f"f{k}"] + ([f"h{(k+2)//14}"] if newwin else []))
        e(f"v_mfma_f32_32x32x16_bf16 v[{YA}:{YA+15}], v[{a}:{a+3}], v[{f}:{f+3}], v[{YA}:{YA+15}]")
        if newwin:
            hperm(); hwrite(); lg.issue("w")
        if k + 2 < 64: aload(k + 2); lg.issue(f"a{k+2}", 2)
        if k + FD < 64: fload(k + FD); vm.issue(f"f{k+FD}")
        if newwin and k + 16 < 64: hload(); vm.issue(f"h{(k+2)//14+1}", 2)
    wait([f"k1_{t+1}", f"v1_{t-1}"])
    mm_qk1(sn); rd_k1(tl + 2); lg.issue(f"k1_{t+2}")
    ex(0); ex(1); ex(2)
    mm_pv(V1, PP + 4); rd_v1(tl); lg.issue(f"v1_{t}")
    ex(3); cv(0); ex(4); cv(1); ex(5)
    cstep(k0)
    ex(6); ex(7); cv(2); ex(8)
    wait([f"k2_{t+1}", f"v0_{t}"])
    mm_qk2(sn); rd_k2(tl + 2); lg.issue(f"k2_{t+2}")
    cv(3); ex(9); ex(10); ex(11)
    mm_pv(V0, PP); rd_v0(tl + 1); lg.issue(f"v0_{t+1}")
    cv(4); ex(12); ex(13); cv(5)
    cstep(k0 + 1)
    ex(14); ex(15); cv(6); cv(7)
for t in range(48):
    if t in (16, 32): bump(16)
    if t == 24:
        release(); lg.issue("rel")
    if t == opt("tt", 0):
        e(f"v_mov_b32 v91, {C_T}\ns_mov_b64 exec, 1\nds_add_u32 v91, v92\ns_mov_b64 exec, -1"); lg.issue("ct")
    if t == opt("st", 44):
        e(f"v_mov_b32 v91, {C_S}\ns_mov_b64 exec, 1\nds_add_u32 v91, v92\ns_mov_b64 exec, -1"); lg.issue("sig")
    tl = t % 16
    isconv = CS <= t < CS + 32
    if t % 8 == 0: prio(1)
    if t % 8 == ((PLC - (t // 8) % 2) if isconv else PLO): prio(0)
    if t == max(CS - 3, 0):
        lds_spin(C_U, 1, va=91, vb=93); lg.q = []
        cstamp(12)
        e("s_waitcnt vmcnt(0)")
        e(f"""v_lshlrev_b32 v94, 16, v94
v_lshlrev_b32 v91, 16, v{HS+4}
v_add_f32 v91, v91, v94
s_mov_b32 s61, 0xffff
v_cvt_pk_bf16_f32 v91, v91, v91
s_cmp_eq_u32 s91, 1
s_cselect_b32 exec_lo, 0, 8
s_cselect_b32 exec_hi, 0, 8
v_bfi_b32 v{HS+4}, s61, v91, v{HS+4}
s_mov_b64 exec, -1""")
        hperm()
        hwrite(); aload(0); aload(1); lg.issue("w"); lg.issue("a0", 2); lg.issue("a1", 2)
        for k in range(FD): fload(k)
        hload()
    if isconv: conv_tile(t, tl, 2*(t - CS))
    else: plain_tile(t, tl)
    if t == CS + 32:
        lds_spin(C_MK, 2, va=91, vb=93); lg.q = []
        for k in range(2):
            r = CF + 4*k
            for j in range(4): e(f"v_cvt_pk_bf16_f32 v{r+j}, v{YA+8*k+2*j}, v{YA+8*k+2*j+1}")
            for j in range(4): e(f"v_min_u32 v{r+j}, -2, v{r+j}")
            e(f"v_permlane32_swap_b32 v{r}, v{r+2}\nv_permlane32_swap_b32 v{r+1}, v{r+3}")
            e(f"buffer_store_dwordx4 v[{r}:{r+3}], v{YAD}, s[36:39], s93 offen offset:{32*k} sc1")
        cstamp(11)
e("s_branch L_fini")
e("L_truemax:")
lds_spin(C_K, 2)
e(f"""v_mov_b32 v{Q2+1}, 0
v_mov_b32 v5, 0xff800000
s_mov_b32 s60, 64
L_fb:""")
rd_k1(0); rd_k2(0)
e("s_waitcnt lgkmcnt(0)")
mm_qk1(S0); mm_qk2(S0)
e(f"v_add_u32 v{AK1}, {TS}, v{AK1}\nv_add_u32 v{AK2}, {TS}, v{AK2}")
for i in range(8): e(f"v_max3_f32 v5, v5, v{S0+2*i}, v{S0+2*i+1}")
e(f"""s_sub_u32 s60, s60, 1
s_cmp_lg_u32 s60, 0
s_cbranch_scc1 L_fb
v_subrev_u32 v{AK1}, {TS*64}, v{AK1}
v_subrev_u32 v{AK2}, {TS*64}, v{AK2}
v_mov_b32 v6, v5
v_permlane32_swap_b32 v5, v6
v_max_f32 v5, v5, v6
v_sub_f32 v5, 0, v5
v_cvt_pk_bf16_f32 v6, v5, v5
v_and_b32 v7, 0xffff0000, v6
v_sub_f32 v5, v5, v7
v_cvt_pk_bf16_f32 v7, v5, v5
v_and_b32 v3, 0xffff0000, v7
v_sub_f32 v5, v5, v3
v_cvt_pk_bf16_f32 v5, v5, 0
v_and_b32 v6, 0xffff, v6
v_or_b32 v6, v6, v3
v_cndmask_b32 v{Q2+1}, v6, v5, s[64:65]
v_mov_b32 v{K2+1}, 0x3f803f80""")
rd_k1(0); rd_k2(0)
e("s_branch L_pass\nL_end:\ns_endpgm")

ref = open(f"cdna_kernels/{NAME}.s.ref").read().split("\n")
head = [l for l in ref if l.startswith(";") and "@launch" not in l and not l.startswith("; Override") and not l.startswith("; grid=")]
txt = "\n".join(head) + f"""
; @launch grid=(256,1,1) block=(768,1,1) lds={LDS_BYTES}
.amdgcn_target "amdgcn-amd-amdhsa--gfx950"
.text
.globl {NAME}_kernel
.p2align 8
.type {NAME}_kernel,@function
{NAME}_kernel:
""" + e.text() + f""".section .rodata,"a"
.p2align 6
.amdhsa_kernel {NAME}_kernel
  .amdhsa_next_free_vgpr 168
  .amdhsa_next_free_sgpr 102
  .amdhsa_accum_offset 168
  .amdhsa_group_segment_fixed_size 0
  .amdhsa_kernarg_size 112
  .amdhsa_user_sgpr_count 2
  .amdhsa_user_sgpr_kernarg_segment_ptr 1
  .amdhsa_system_sgpr_workgroup_id_x 1
.end_amdhsa_kernel
"""
open(OUT, "w").write(txt)
print("wrote", OUT, len(txt), "bytes;", e.nops, "nops inserted")
```

```python
import sys, struct, math
sys.path.insert(0, "gen")
from emit import Emitter

NAME = "concat_heads__grouped_kv_mqa__ssm_conv_h3__prompt"
STAMPS = "--stamps" in sys.argv
def opt(name, default):
    for a in sys.argv:
        if a.startswith(f"--{name}="): return int(a.split("=")[1])
    return default
OUT = [a for a in sys.argv[1:] if not a.startswith("--")]
OUT = OUT[0] if OUT else f"cdna_kernels/{NAME}.s"
PSW = opt("psw", 44)
P1C = opt("p1c", 0)
PLC = opt("plc", 5)
CS = opt("cs", 4)
PLO = opt("plo", 6)

def f32(x): return struct.unpack("<I", struct.pack("<f", x))[0]
def magic(d, n):
    m = -(-65536 // d)
    assert all((c * m) >> 16 == c // d for c in range(n)), (d, n)
    return m

WS_G, WS_KVF, WS_KVTF, WS_MF = 0, 0x40000, 0x50000, 0x60000
WS_KV, WS_U, WS_Y, WS_O, WS_ST, WS_Y2 = 0x10000, 0x100000, 0x400000, 0x700000, 0xA00000, 0xB00000
WS_SIZE = 0x1000000
TAGC = 0x9E3779B9
TS = 2320
LXA, LXB, LW = 0, 40960, 73728
NDEF = 53
LWKV = LW + NDEF * 1024
LCONV = 64 * TS
LMISC = LCONV + 8 * 1088
(C_W, C_R, C_KV, C_KVT, C_A, C_B, C_K, C_P, L_MAXLO, L_MAXHI, L_KC, L_TAG, C_F, C_Y, C_YW, C_Q,
 C_K0, C_U, C_WO, C_L, C_X, C_T, C_Q1, C_G, C_S, C_MK, C_M, C_D, C_P2) = [LMISC + 4 * i for i in range(29)]
LDS_BYTES = 163840
LFAR = 0x40000
LWO = 14 * TS + 32
LEX, LEX2 = 0, 115584
assert LWO % 16 == 0 and LWO + 82944 + 64 <= LEX2 and LEX2 + 64*336 <= LCONV
SPIN = opt("spin", 0x200000)
SHIFT, THR = 60.0, 45.0

e = Emitter()
uid = [0]
def L(p):
    uid[0] += 1
    return f"L_{p}{uid[0]}"
def stamp(i):
    if STAMPS: e(f"s_memrealtime s[98:99]\ns_waitcnt lgkmcnt(0)\ns_mov_b32 s{72+i}, s98")
def cstamp(i):
    if STAMPS: e(f"s_memtime s[98:99]\ns_waitcnt lgkmcnt(0)\ns_mov_b32 s{72+i}, s98")
def stamp_flush():
    if not STAMPS: return
    e(f"""s_mul_i32 s60, s2, 12
s_add_u32 s60, s60, s3
s_lshl_b32 s60, s60, 6
s_add_u32 s60, s60, {WS_ST}
s_mov_b64 exec, -1
v_mov_b32 v3, 0""")
    for i in range(16):
        e(f"v_mov_b32 v4, s{72+i}\nbuffer_store_dword v4, v3, s[36:39], s60 offen offset:{4*i}")
def srd(n, plo, nbytes):
    e(f"s_mov_b32 s{n}, s{plo}\ns_mov_b32 s{n+1}, s{plo+1}\ns_mov_b32 s{n+2}, {nbytes}\ns_mov_b32 s{n+3}, 0x00020000")
def srd_off(n, plo, soff, nbytes):
    e(f"s_add_u32 s{n}, s{plo}, {soff}\ns_addc_u32 s{n+1}, s{plo+1}, 0\ns_mov_b32 s{n+2}, {nbytes}\ns_mov_b32 s{n+3}, 0x00020000")
def lds_add(addr, va=3, vb=6, rtn=None, also=None):
    e(f"v_mov_b32 v{va}, {addr}\nv_mov_b32 v{vb}, 1\ns_mov_b64 exec, 1")
    if also is not None: e(f"ds_add_u32 v{va}, v{vb} offset:{also - addr}")
    if rtn is None:
        e(f"ds_add_u32 v{va}, v{vb}\ns_mov_b64 exec, -1")
    else:
        e(f"ds_add_rtn_u32 v{vb}, v{va}, v{vb}\ns_waitcnt lgkmcnt(0)\nv_readfirstlane_b32 s{rtn}, v{vb}\ns_mov_b64 exec, -1")
TMO = "--tmo" in sys.argv
def tmo_mark(what):
    if not TMO: return
    print("timeout id", uid[0], what)
    e(f"""s_mov_b64 s[100:101], exec
s_mov_b64 exec, 1
v_mov_b32 v2, {uid[0]}
s_mul_i32 s88, s2, 12
s_add_u32 s88, s88, s3
s_lshl_b32 s88, s88, 2
s_add_u32 s88, s88, {WS_ST + 0x80000}
v_mov_b32 v0, 0
buffer_store_dword v2, v0, s[36:39], s88 offen
s_mov_b64 exec, s[100:101]""")
def lds_spin(addr, n, va=3, vb=6, sleep=1):
    l = L("spin"); d = L("spun")
    e(f"""v_mov_b32 v{va}, {addr}
s_mov_b32 s89, {SPIN}
{l}:
ds_read_b32 v{vb}, v{va}
s_waitcnt lgkmcnt(0)
v_readfirstlane_b32 s88, v{vb}
s_cmp_ge_u32 s88, {n}
s_cbranch_scc1 {d}
s_sleep {sleep}
s_sub_u32 s89, s89, 1
s_cbranch_scc0 {l}""")
    tmo_mark(f"lds {(addr - LMISC) // 4} >= {n}")
    e(f"{d}:")
def poll_all(base, sleep):
    l, d = L("poll"), L("polled")
    e(f"v_lshlrev_b32 v3, 5, v1\ns_mov_b32 s60, {base}\ns_mov_b32 s61, {base + 4096}\ns_mov_b32 s62, {SPIN}\n{l}:")
    for i in range(4):
        e(f"buffer_load_dwordx2 v[{8+2*i}:{9+2*i}], v3, s[36:39], s{60 + (i >> 1)} offen offset:{2048*(i & 1)} sc1")
    e(f"""s_waitcnt vmcnt(0)
v_cmp_ne_u32 vcc, s6, v8
v_cmp_ne_u32 s[64:65], s6, v10
s_or_b64 vcc, vcc, s[64:65]
v_cmp_ne_u32 s[64:65], s6, v12
s_or_b64 vcc, vcc, s[64:65]
v_cmp_ne_u32 s[64:65], s6, v14
s_or_b64 vcc, vcc, s[64:65]
s_sub_u32 s62, s62, 1
s_cbranch_scc1 {d}
s_cbranch_vccz {d}
s_sleep {sleep}
s_branch {l}
{d}:""")
P_X, P_WQ, P_WK, P_WV, P_WO, P_BQ, P_BK, P_BV, P_SK, P_H, P_D, P_OUT, P_DBG, P_WS = range(8, 36, 2)
M9 = magic(9, 5632)
def wslice_off(dst, cexpr):
    e(f"""{cexpr}
v_mul_u32_u24 v6, {M9}, v5
v_lshrrev_b32 v6, 16, v6
v_mul_u32_u24 v7, 1008, v6
v_lshl_add_u32 v{dst}, v5, 4, v7""")
def get_tag():
    e(f"v_readfirstlane_b32 s6, v2\ns_add_u32 s6, s6, {TAGC}")
def half(dst, src, hi):
    if hi: e(f"v_and_b32 v{dst}, 0xffff0000, v{src}")
    else: e(f"v_lshlrev_b32 v{dst}, 16, v{src}")

e(f"""s_cmp_ge_u32 s2, 256
s_cbranch_scc1 L_end
s_load_dwordx16 s[8:23], s[0:1], 0
s_load_dwordx8 s[24:31], s[0:1], 64
s_load_dwordx4 s[32:35], s[0:1], 96
v_and_b32 v1, 63, v0
v_lshrrev_b32 v2, 6, v0
v_mov_b32 v3, 0
v_readfirstlane_b32 s3, v2
s_and_b32 s4, s2, 31
s_lshr_b32 s5, s2, 5""")
if STAMPS:
    for i in range(16): e(f"s_mov_b32 s{72+i}, 0")
e("s_cmp_lt_u32 s3, 8\ns_cbranch_scc1 L_att")

M3 = magic(3, 1792)
e(f"""s_sub_u32 s7, s3, 8
s_setprio 2
v_subrev_u32 v5, 512, v0""")
for m in range(7):
    e(f"""v_mul_u32_u24 v6, {M3}, v5
v_lshrrev_b32 v6, 16, v6
v_mul_u32_u24 v6, 12, v6
v_lshlrev_b32 v7, 4, v5
v_sub_u32 v{16+m}, v7, v6""")
    if m < 6: e("v_add_u32 v5, 256, v5")
e(f"""v_lshlrev_b32 v4, 4, v1
s_and_b32 s61, s5, 3
s_lshl_b32 s61, s61, 2
s_add_u32 s61, s61, s7
s_lshl_b32 s61, s61, 2
s_lshl_b32 s60, s4, 6
s_add_u32 s60, s60, s61
s_mul_i32 s60, s60, 1152
s_lshl_b32 s62, s7, 5
v_xor_b32 v24, s62, v4
s_add_u32 s62, s62, 16
v_xor_b32 v25, s62, v4
v_lshrrev_b32 v6, 5, v1
s_lshl_b32 s62, s7, 2
v_add_u32 v7, s62, v6
v_and_b32 v5, 31, v1
v_xor_b32 v26, v5, v7
v_xor_b32 v27, 2, v26
v_mul_u32_u24 v6, 1152, v6
v_lshl_add_u32 v26, v26, 4, v6
v_lshl_add_u32 v27, v27, 4, v6
s_lshl_b32 s63, s7, 10
s_waitcnt lgkmcnt(0)""")
stamp(0)
e(f"""s_cmp_lt_u32 s5, 4
s_cselect_b32 s48, s{P_WK}, s{P_WV}
s_cselect_b32 s49, s{P_WK+1}, s{P_WV+1}
s_mov_b32 s50, 20736
s_mov_b32 s51, 0x00020000""")
srd(40, P_X, 2359296)
for m in range(7):
    e(f"s_add_u32 m0, s63, {LWKV + 4096*m}\nbuffer_load_dwordx4 v{16+m}, s[48:51], 0 offen lds")
e(f"s_mul_i32 s62, s61, 640\ns_mov_b32 exec_hi, 0xff")
for i in range(4):
    e(f"s_add_u32 m0, s62, {LXA + 640*i}\ns_add_u32 s64, s60, {1152*i}\nbuffer_load_dwordx4 v{24 + (i >> 1)}, s[40:43], s64 offen lds")
e(f"s_mov_b32 exec_hi, -1\ns_lshl_b32 s62, s61, 9")
for p in range(2):
    e(f"s_add_u32 m0, s62, {LXB + 1024*p}\ns_add_u32 s64, s60, {2304*p + 640}\nbuffer_load_dwordx4 v{26+p}, s[40:43], s64 offen lds")
srd(36, P_WS, WS_SIZE)
e(f"""buffer_load_dword v2, v3, s[36:39], 0 offen sc1
v_and_b32 v4, 15, v1
v_lshrrev_b32 v5, 4, v1
v_lshlrev_b32 v7, 2, v1
v_add_u32 v7, {LMISC}, v7
ds_write_b32 v7, v3
s_waitcnt lgkmcnt(0)""")
M18 = magic(18, 192)
def task_regs(stask, vt0, vd):
    e(f"""v_add_u32 v6, {stask}, v1
v_mul_u32_u24 v7, {M18}, v6
v_lshrrev_b32 v7, 16, v7
s_lshl_b32 s60, s4, 6
v_lshl_add_u32 v{vt0}, v7, 3, s60
v_mul_u32_u24 v7, 18, v7
v_sub_u32 v6, v6, v7
s_mul_i32 s60, s5, 72
v_lshl_add_u32 v{vd}, v6, 2, s60""")
def p1_regs(slot):
    return (8, 30, 48, 56, 57) if slot == 0 else (120, 142, 160, 58, 59)
def p1_loads(stask, slot=0):
    PK, PV_, PS, T0, DD_ = p1_regs(slot)
    task_regs(stask, T0, DD_)
    e(f"v_mul_u32_u24 v6, 1152, v{T0}\nv_lshl_add_u32 v6, v{DD_}, 1, v6")
    for i in range(3):
        e(f"v_subrev_u32 v7, {1152*(3-i)}, v6\nbuffer_load_dwordx2 v[{PK+2*i}:{PK+2*i+1}], v7, s[44:47], 0 offen")
    for i in range(8):
        e(f"s_mov_b32 s60, {1152*i}\nbuffer_load_dwordx2 v[{PK+6+2*i}:{PK+7+2*i}], v6, s[44:47], s60 offen\nbuffer_load_dwordx2 v[{PV_+2*i}:{PV_+2*i+1}], v6, s[52:55], s60 offen")
    e(f"v_lshlrev_b32 v7, 3, v{DD_}\nbuffer_load_dwordx4 v[{PS}:{PS+3}], v7, s[56:59], 0 offen\nbuffer_load_dwordx4 v[{PS+4}:{PS+7}], v7, s[56:59], 0 offen offset:16")
UK, UW, UA = 64, 88, 96
def u_addr(vt0, vd, dst):
    e(f"""v_sub_u32 v7, 2040, v{vt0}
v_lshrrev_b32 v{dst}, 5, v7
v_lshlrev_b32 v{dst}, 5, v{dst}
v_bfe_u32 v3, v7, 4, 1
v_lshl_add_u32 v{dst}, v3, 11, v{dst}
v_bfe_u32 v3, v7, 3, 1
v_lshl_add_u32 v{dst}, v3, 4, v{dst}
v_lshl_add_u32 v{dst}, v{vd}, 12, v{dst}""")
def p1_compute(slot=0):
    if "--nop1c" in sys.argv: return
    PK, PV_, PS, T0, DD_ = p1_regs(slot)
    u_addr(T0, DD_, 6)
    pr = lambda x: f"v[{x}:{x+1}]"
    for ee in range(2):
        for i in range(11):
            half(UK + 2*i, PK + 2*i + ee, 0); half(UK + 2*i + 1, PK + 2*i + ee, 1)
        for j in range(4):
            for c in range(2):
                half(UW + 2*j + c, PS + 4*ee + 2*c + (j >> 1), j & 1)
        for i in range(8):
            a = UA + 2*i
            e(f"v_pk_mul_f32 {pr(a)}, {pr(UK+2*i)}, {pr(UW+6)}")
            for j in (2, 1, 0):
                e(f"v_pk_fma_f32 {pr(a)}, {pr(UK+2*(i+3-j))}, {pr(UW+2*j)}, {pr(a)}")
            half(112, PV_ + 2*i + ee, 0); half(113, PV_ + 2*i + ee, 1)
            e(f"v_pk_mul_f32 {pr(a)}, {pr(a)}, v[112:113]")
        for c in range(2):
            r = (60, 116)[c]
            for m in range(4):
                e(f"v_cvt_pk_bf16_f32 v{r+m}, v{UA+2*(7-2*m)+c}, v{UA+2*(6-2*m)+c}")
            e(f"s_mov_b32 s60, {WS_U + 4096*(2*ee+c)}\nbuffer_store_dwordx4 v[{r}:{r+3}], v6, s[36:39], s60 offen sc1")
def p1_issue():
    srd(44, P_BK, 2359296)
    srd(52, P_BV, 2359296)
    srd(56, P_SK, 4608)
    l = L("p1a")
    e("s_sub_u32 s63, 3, s7\ns_lshl_b32 s63, s63, 6")
    p1_loads("s63")
    e(f"s_cmp_lg_u32 s7, 3\ns_cbranch_scc1 {l}\ns_mov_b64 exec, 0xffff")
    p1_loads("0x80", 1)
    e(f"s_mov_b64 exec, -1\n{l}:")
if P1C == 2: p1_issue()
e("L_h_b0:\ns_barrier")
def publish_kv():
    nl = L("nl")
    lds_add(C_KV, rtn=60)
    e(f"""s_cmp_lg_u32 s60, 3
s_cbranch_scc1 {nl}
v_mov_b32 v3, {L_MAXLO}
ds_read_b64 v[6:7], v3
s_lshl_b32 s60, s2, 5
s_add_u32 s60, s60, {WS_KVF}
v_mov_b32 v3, 0
s_waitcnt lgkmcnt(0)
v_add_f32 v7, v6, v7
v_mov_b32 v6, s6
s_mov_b64 exec, 1
buffer_store_dwordx2 v[6:7], v3, s[36:39], s60 offen sc1
s_mov_b64 exec, -1
{nl}:""")

def publish_u():
    nl = L("nl")
    lds_add(C_KVT, rtn=60)
    e(f"""s_cmp_lg_u32 s60, 1
s_cbranch_scc1 {nl}
v_mov_b32 v6, s6
s_lshl_b32 s60, s2, 5
s_add_u32 s60, s60, {WS_KVTF}
v_mov_b32 v3, 0
s_mov_b64 exec, 1
buffer_store_dword v6, v3, s[36:39], s60 offen sc1
s_mov_b64 exec, -1
{nl}:""")
e("s_cmp_lt_u32 s7, 2\ns_cbranch_scc1 L_h_kv")
if P1C == 2: e("s_cmp_eq_u32 s7, 3\ns_cbranch_scc1 L_h_w3\ns_waitcnt vmcnt(26)\ns_branch L_h_w4\nL_h_w3:\ns_waitcnt vmcnt(47)\nL_h_w4:")
else: e("s_waitcnt vmcnt(0)")
lds_add(C_W, also=C_A)
if P1C == 2: e("s_cmp_eq_u32 s7, 3\ns_cbranch_scc1 L_h_w5\ns_waitcnt vmcnt(21)\ns_branch L_h_w6\nL_h_w5:\ns_waitcnt vmcnt(42)\nL_h_w6:")
else: e("s_waitcnt vmcnt(0)")
get_tag()
publish_kv()
stamp(1)
e("s_cmp_eq_u32 s7, 3\ns_cbranch_scc1 L_h_p1")
srd(40, P_WQ, 663552)
for n in range(NDEF, 81): wslice_off(120 + n - NDEF, f"v_add_u32 v5, {64*n}, v1")
e("s_mul_i32 s63, s5, 144")
lds_spin(C_R, 2)
e("s_setprio 0")
for n in range(NDEF, 81):
    e(f"s_mov_b32 m0, {LW + 1024*n}\nbuffer_load_dwordx4 v{120 + n - NDEF}, s[40:43], s63 offen lds")
e("s_setprio 2")
if P1C == 2:
    e("s_waitcnt vmcnt(28)")
    p1_compute()
    e("s_waitcnt vmcnt(4)")
    lds_add(C_B)
    e("s_branch L_h_p1b")
else:
    e("s_waitcnt vmcnt(0)")
    lds_add(C_B)
e("L_h_p1:")
if P1C != 2:
    if P1C == 5:
        srd(44, P_BK, 2359296)
        srd(52, P_BV, 2359296)
        e(f"""v_lshlrev_b32 v8, 7, v1
s_lshl_b32 s63, s4, 3
s_add_u32 s63, s63, s5
s_mul_i32 s63, s63, 9216
s_add_u32 s61, s63, 8192
s_cmp_lg_u32 s7, 3
s_cbranch_scc1 L_h_nokp""")
        lds_spin(C_A, 12, sleep=1)
        e(f"""buffer_load_dword v9, v8, s[44:47], s63 offen
buffer_load_dword v10, v8, s[52:55], s63 offen
s_mov_b64 exec, 0xff
buffer_load_dword v11, v8, s[44:47], s61 offen
buffer_load_dword v12, v8, s[52:55], s61 offen
s_mov_b64 exec, -1
s_waitcnt vmcnt(0)
L_h_nokp:""")
        lds_spin(C_F, 1, sleep=2); e(f"s_sleep {opt('p1d', 0)}")
    elif P1C == 4:
        lds_spin(C_F, 1, sleep=2); lds_spin(C_Q1, 8, sleep=2); e(f"s_sleep {opt('p1d', 4)}")
    elif P1C == 3: lds_spin(C_G, 2, sleep=2)
    else: lds_spin(C_B if P1C else C_A, 9 if P1C else 12, sleep=2)
    stamp(2)
    p1_issue()
e("s_waitcnt vmcnt(0)")
stamp(10)
p1_compute()
e("s_cmp_lg_u32 s7, 3\ns_cbranch_scc1 L_h_p1b\ns_mov_b64 exec, 0xffff")
p1_compute(1)
e("s_mov_b64 exec, -1\nL_h_p1b:\ns_waitcnt vmcnt(0)")
stamp(11)
publish_u()
e("s_branch L_h_epi")

e("L_h_kv:")
XAD, WAD = 8, 14
e(f"""v_lshrrev_b32 v6, 2, v4
v_lshl_add_u32 v6, v5, 3, v6
v_mul_u32_u24 v6, 48, v6
v_and_b32 v7, 3, v4
v_lshlrev_b32 v7, 3, v7
s_cmp_eq_u32 s7, 1
s_cselect_b64 s[64:65], -1, 0
v_cndmask_b32 v7, v7, 32, s[64:65]
v_add_u32 v{WAD}, v6, v7
v_add_u32 v{WAD}, {LWKV}, v{WAD}
s_and_b32 s60, s5, 3
s_lshl_b32 s60, s60, 4
v_add_u32 v6, s60, v4
v_bfe_u32 v7, v6, 1, 3
v_mul_u32_u24 v3, 640, v6""")
for j in range(2):
    e(f"v_add_u32 v15, {4*j}, v5\nv_xor_b32 v15, v15, v7\nv_lshl_add_u32 v{XAD+j}, v15, 4, v3")
e("v_lshlrev_b32 v3, 9, v6")
for j in range(4):
    e(f"v_add_u32 v15, {4*j}, v5\nv_xor_b32 v15, v15, v4\nv_lshl_add_u32 v{XAD+2+j}, v15, 4, v3")
e(f"""s_lshl_b32 s60, s4, 1
s_bfe_u32 s61, s5, 0x10001
s_add_u32 s60, s60, s61
s_mul_i32 s60, s60, {TS}
s_add_u32 s66, s60, {WS_KV}
s_and_b32 s61, s5, 1
s_cmp_ge_u32 s5, 4
s_cbranch_scc1 L_h_av
s_lshl_b32 s60, s61, 4
v_add_u32 v6, s60, v4
v_lshlrev_b32 v7, 4, v6
v_lshl_add_u32 v16, v5, 3, v7
v_add_u32 v17, 4, v16
v_lshlrev_b32 v3, 2, v6
v_add_u32 v3, 1024, v3
v_add_u32 v15, 512, v7
v_cmp_eq_u32 vcc, 2, v5
v_cndmask_b32 v16, v16, v3, vcc
v_cndmask_b32 v17, v17, v15, vcc
v_add_u32 v3, 4, v15
v_add_u32 v6, 8, v15
v_cmp_eq_u32 vcc, 3, v5
v_cndmask_b32 v16, v16, v3, vcc
v_cndmask_b32 v17, v17, v6, vcc
v_add_u32 v15, 12, v15
v_cndmask_b32 v16, v16, v15, s[64:65]
s_branch L_h_adone
L_h_av:
s_mul_i32 s61, s61, 576
s_lshl_b32 s60, s7, 8
s_add_u32 s61, s61, s60
v_lshrrev_b32 v6, 1, v5
v_and_b32 v7, 1, v5
v_mul_u32_u24 v7, 288, v7
v_lshl_add_u32 v7, v6, 3, v7
v_lshl_add_u32 v7, v4, 4, v7
v_add_u32 v16, s61, v7
v_add_u32 v16, 1152, v16
v_lshlrev_b32 v6, 3, v6
v_add_u32 v17, 2304, v6
L_h_adone:
s_waitcnt vmcnt(0)""")
get_tag()
lds_add(C_W, also=C_A)
lds_spin(C_W, 4, sleep=0)
stamp(10)
WR, XF, DK, KD = 64, 96, 92, 5
def kvread(s):
    r = WR + 4*(s % KD); x = XF + 4*(s % KD)
    e(f"ds_read_b64_tr_b16 v[{r}:{r+1}], v{WAD} offset:{1536*s}\nds_read_b64_tr_b16 v[{r+2}:{r+3}], v{WAD} offset:{1536*s + 192}")
    if s < 10: e(f"ds_read_b128 v[{x}:{x+3}], v{XAD + (s & 1)} offset:{LXA + 128*(s >> 1)}")
    else: e(f"ds_read_b128 v[{x}:{x+3}], v{XAD + 2 + ((s-10) & 3)} offset:{LXB + 256*((s-10) >> 2)}")
def kvproj(kside):
    for s in range(KD): kvread(s)
    for s in range(18):
        left = min(KD - 1, 17 - s)
        f = WR + 4*(s % KD); x = XF + 4*(s % KD)
        e(f"s_waitcnt lgkmcnt({3*left})")
        a, b = (f, x) if kside else (x, f)
        e(f"v_mfma_f32_16x16x32_bf16 v[{DK}:{DK+3}], v[{a}:{a+3}], v[{b}:{b+3}], {'0' if s == 0 else f'v[{DK}:{DK+3}]'}")
        if s + KD < 18: kvread(s + KD)
e("s_cmp_ge_u32 s5, 4\ns_cbranch_scc1 L_h_vproj")
kvproj(True)
e(f"""v_cvt_pk_bf16_f32 v64, v{DK}, v{DK+1}
v_cvt_pk_bf16_f32 v65, v{DK+2}, v{DK+3}
v_mul_f32 v66, v{DK}, v{DK}
v_fmac_f32 v66, v{DK+1}, v{DK+1}
s_cmp_eq_u32 s7, 1
s_cbranch_scc1 L_h_stk2
buffer_store_dword v64, v16, s[36:39], s66 offen sc1
buffer_store_dword v65, v17, s[36:39], s66 offen sc1
v_fmac_f32 v66, v{DK+2}, v{DK+2}
v_fmac_f32 v66, v{DK+3}, v{DK+3}
v_mov_b32 v67, v66
v_permlane32_swap_b32 v66, v67
v_add_f32 v66, v66, v67
v_mov_b32 v67, v66
v_permlane16_swap_b32 v66, v67
v_add_f32 v66, v66, v67
v_mov_b32 v3, {L_MAXLO}
s_branch L_h_stmax
L_h_stk2:
s_mov_b64 exec, 0xffff
buffer_store_dword v64, v16, s[36:39], s66 offen sc1
s_mov_b64 exec, -1
v_mov_b32 v3, {L_MAXHI}
L_h_stmax:""")
for k in (8, 4, 2, 1): e(f"v_max_f32_dpp v66, v66, v66 row_ror:{k} row_mask:0xf bank_mask:0xf")
e("ds_write_b32 v3, v66\ns_branch L_h_std\nL_h_vproj:")
kvproj(False)
e(f"""v_cvt_pk_bf16_f32 v64, v{DK}, v{DK+1}
v_cvt_pk_bf16_f32 v65, v{DK+2}, v{DK+3}
s_cmp_eq_u32 s7, 0
s_cbranch_scc1 L_h_stv
v_mov_b32 v3, 0x3f803f80
v_cmp_eq_u32 vcc, 2, v4
v_cndmask_b32 v16, v16, v17, vcc
v_cndmask_b32 v64, v64, v3, vcc
v_cndmask_b32 v65, v65, v3, vcc
v_cmp_gt_u32 vcc, 3, v4
s_mov_b64 exec, vcc
L_h_stv:
buffer_store_dwordx2 v[64:65], v16, s[36:39], s66 offen sc1
s_mov_b64 exec, -1
L_h_std:""")
stamp(11)
lds_add(C_R)
e("s_waitcnt vmcnt(0)")
publish_kv()
stamp(12)
e("s_cmp_lg_u32 s7, 0\ns_cbranch_scc1 L_h_wait")
lds_spin(C_B if opt("pollc", 0) else C_A, 9 if opt("pollc", 0) else 12, sleep=2)
stamp(2)
poll_all(WS_KVF, opt("pollsleep", 6))
lds_add(C_F)
e("s_branch L_h_go\nL_h_wait:")
lds_spin(C_F, 1, sleep=2)
e("L_h_go:")
stamp(3)
NC0 = 20
e(f"""s_cmp_lg_u32 s7, 0
s_cbranch_scc1 L_h_nokc
v_max_f32 v9, v9, v11
v_max3_f32 v9, v9, v13, v15""")
for k in (8, 4, 2, 1):
    e(f"v_max_f32_dpp v9, v9, v9 row_ror:{k} row_mask:0xf bank_mask:0xf")
for sw in ("v_permlane16_swap_b32", "v_permlane32_swap_b32"):
    e(f"v_mov_b32 v13, v9\n{sw} v9, v13\nv_max_f32 v9, v9, v13")
e(f"""v_sqrt_f32 v9, v9
v_mov_b32 v10, 1.0
v_mov_b32 v3, {L_KC}
v_mul_f32 v9, {f32(1.02)}, v9
v_cvt_pk_bf16_f32 v10, v9, v10
v_mov_b32 v11, s6
ds_write_b64 v3, v[10:11]
s_cmp_lg_u32 s2, 0
s_cbranch_scc1 L_h_nokc
v_mov_b32 v3, 0
v_mov_b32 v6, s6
s_mov_b64 exec, 1
buffer_store_dword v6, v3, s[36:39], 0 offen sc1
s_mov_b64 exec, -1
L_h_nokc:""")
def kv_dma(lo, hi):
    l = L("kvdma")
    e(f"""s_lshl_b32 s60, s7, 10
s_add_u32 s60, s60, {lo}
{l}:
s_mov_b32 m0, s60
s_add_u32 s61, s60, {WS_KV}
s_add_u32 s60, s60, 2048
buffer_load_dwordx4 v4, s[36:39], s61 offen sc1 lds
s_cmp_lt_u32 s60, {hi}
s_cbranch_scc1 {l}""")
e("v_lshlrev_b32 v4, 4, v1")
lds_spin(C_Q1, 8, sleep=0)
stamp(4)
kv_dma(0, 2048*NC0)
lds_add(C_G)
e("s_waitcnt vmcnt(0)")
lds_add(C_K0)
stamp(5)
lds_spin(C_Q, 8, sleep=1)
kv_dma(2048*NC0, 64*TS)
e("s_waitcnt vmcnt(0)")
lds_add(C_K)
stamp(6)
e(f"""v_and_b32 v4, 15, v1
v_lshrrev_b32 v5, 4, v1
s_lshl_b32 s60, s4, 2
s_lshl_b32 s61, s7, 1
s_add_u32 s60, s60, s61
s_mul_i32 s60, s60, 18432
s_lshl_b32 s61, s5, 11
s_add_u32 s60, s60, s61
s_add_u32 s60, s60, {WS_O}
v_lshlrev_b32 v6, 4, v1
v_mov_b32 v8, -1
v_mov_b32 v9, -1
v_mov_b32 v10, -1
v_mov_b32 v11, -1
buffer_store_dwordx4 v[8:11], v6, s[36:39], s60 offen sc1
buffer_store_dwordx4 v[8:11], v6, s[36:39], s60 offen offset:1024 sc1
s_add_u32 s60, s60, 18432
buffer_store_dwordx4 v[8:11], v6, s[36:39], s60 offen sc1
buffer_store_dwordx4 v[8:11], v6, s[36:39], s60 offen offset:1024 sc1
s_mul_i32 s60, s4, {4*18432}
s_lshl_b32 s61, s5, 8
s_add_u32 s60, s60, s61
s_add_u32 s60, s60, {WS_O + 16*1024}
v_mul_u32_u24 v6, 18432, v5
v_lshl_add_u32 v6, v4, 4, v6
buffer_store_dwordx4 v[8:11], v6, s[36:39], s60 offen sc1""")
e(f"""v_lshlrev_b32 v6, 4, v1
s_and_b32 s60, s7, 1
s_lshl_b32 s60, s60, 10
v_add_u32 v6, s60, v6
v_mov_b32 v60, -1
v_mov_b32 v61, -1
v_mov_b32 v62, -1
v_mov_b32 v63, -1
s_mov_b32 s63, s2
L_h_ym:
s_cmp_ge_u32 s63, 576
s_cselect_b32 s61, {WS_Y2 + 2048 - 576*4096}, {0}
s_cmp_ge_u32 s63, 1152
s_cselect_b32 s61, {WS_Y + 2048 - 1152*4096}, s61
s_cmp_lt_u32 s63, 576
s_cselect_b32 s61, {WS_Y}, s61
s_lshl_b32 s60, s63, 12
s_add_u32 s60, s60, s61
s_add_u32 s63, s63, 256
buffer_store_dwordx4 v[60:63], v6, s[36:39], s60 offen sc1
s_cmp_lt_u32 s63, 1728
s_cbranch_scc1 L_h_ym""")
e("s_waitcnt vmcnt(0)")
lds_add(C_MK, rtn=60)
e(f"""s_cmp_lg_u32 s60, 1
s_cbranch_scc1 L_h_nmk
v_mov_b32 v6, s6
s_lshl_b32 s60, s2, 5
s_add_u32 s60, s60, {WS_MF}
v_mov_b32 v3, 0
s_mov_b64 exec, 1
buffer_store_dword v6, v3, s[36:39], s60 offen sc1
s_mov_b64 exec, -1
L_h_nmk:""")
e("s_cmp_lg_u32 s7, 0\ns_cbranch_scc1 L_h_epi")
srd(40, P_WO, 663552)
e(f"""v_lshlrev_b32 v4, 7, v1
s_lshr_b32 s60, s2, 3
s_mul_i32 s60, s60, {162*128}
buffer_load_dword v8, v4, s[40:43], s60 offen
s_add_u32 s60, s60, 8192
buffer_load_dword v9, v4, s[40:43], s60 offen
s_add_u32 s60, s60, 8192
s_mov_b32 exec_hi, 3
buffer_load_dword v10, v4, s[40:43], s60 offen
s_mov_b64 exec, -1""")
e("s_branch L_h_end")
e("L_h_epi:\ns_sub_u32 s70, 3, s7\ns_lshl_b32 s70, s70, 6")
srd(40, P_BQ, 2359296)
srd(48, P_OUT, 4718592)
srd(52, P_WS, WS_SIZE)
e("s_cmp_ge_u32 s4, 16\ns_cselect_b32 s54, s54, 0")
lds_spin(C_K, 2, sleep=8)
e(f"""v_add_u32 v6, s70, v1
v_and_b32 v7, 7, v6
s_lshl_b32 s60, s4, 6
v_lshl_add_u32 v56, v7, 3, s60
v_lshrrev_b32 v6, 3, v6
s_mul_i32 s60, s5, 72
v_lshl_add_u32 v57, v6, 2, s60""")
EU, EY, EZ, EQ, ED = 64, 80, 96, 112, 24
e(f"""s_cmp_eq_u32 s7, 1
s_cselect_b64 s[66:67], 0xffff, -1
s_mov_b64 exec, s[66:67]
v_lshlrev_b32 v7, 1, v57
v_mul_u32_u24 v6, 1152, v56
v_add_u32 v6, v6, v7""")
for i in range(8):
    e(f"s_mov_b32 s60, {1152*i}\nbuffer_load_dwordx2 v[{EQ+2*i}:{EQ+2*i+1}], v6, s[40:43], s60 offen")
e(f"""s_cmp_eq_u32 s7, 2
s_cselect_b32 s60, {LMISC + 256 - LCONV}, 0
s_cmp_eq_u32 s7, 1
s_cselect_b32 s60, 4352, s60
s_add_u32 s60, s60, {LCONV}
v_and_b32 v59, 7, v1
v_mul_u32_u24 v59, 528, v59
v_lshrrev_b32 v58, 3, v1
v_lshl_add_u32 v59, v58, 3, v59
v_add_u32 v59, s60, v59
s_mov_b64 exec, -1
s_cmp_eq_u32 s7, 1
s_cselect_b32 s61, 0, 2
v_lshrrev_b32 v58, s61, v1
v_lshrrev_b32 v61, 3, v58
v_lshlrev_b32 v61, 4, v61
v_lshl_add_u32 v61, v58, 6, v61
s_cselect_b32 s61, 0, 3
v_and_b32 v62, s61, v1
v_lshl_add_u32 v61, v62, 4, v61
v_add_u32 v61, s60, v61
v_mul_u32_u24 v58, 2304, v58
v_lshl_add_u32 v58, v62, 4, v58
s_mul_i32 s71, s4, {64*2304}
s_mul_i32 s60, s5, 144
s_add_u32 s71, s71, s60
s_add_u32 s71, s71, s70
s_add_u32 s71, s71, 1152
s_mov_b64 exec, s[66:67]""")
e(f"""v_lshlrev_b32 v60, 1, v56
v_lshl_add_u32 v60, v57, 12, v60
s_mov_b64 exec, -1
""")
e(f"""s_cmp_lg_u32 s7, 3
s_cbranch_scc1 L_e_n3""")
if opt("ct", 0): lds_spin(C_T, 1, sleep=8)
else: e(f"s_sleep {opt('ud', 16)}")
stamp(3)
poll_all(WS_KVTF, 8)
lds_add(C_U)
stamp(6)
lds_spin(C_MK, 2, sleep=16)
e("s_sleep 64")
poll_all(WS_MF, 8)
lds_add(C_M)
srd(40, P_WO, 663552)
for n in range(9): wslice_off(16 + n, f"v_add_u32 v5, {64*n}, v1")
e("s_mul_i32 s63, s5, 144\ns_mov_b32 s60, 0")
for part, (cnt, hi) in enumerate(((C_P, 6*9216), (C_P2, 82944))):
    lds_spin(cnt, 8, sleep=8)
    e(f"L_wo{part}:")
    for n in range(9):
        e(f"s_add_u32 m0, s60, {LWO + 1024*n}\ns_nop 0\nbuffer_load_dwordx4 v{16+n}, s[40:43], s63 offen lds")
    e(f"""s_add_u32 s60, s60, 9216
s_add_u32 s63, s63, {64*1152}
s_cmp_lt_u32 s60, {hi}
s_cbranch_scc1 L_wo{part}""")
assert LWO + 6*9216 <= 38*TS
e("s_waitcnt vmcnt(0)")
lds_add(C_WO)
stamp(7)
e("L_e_n3:")
e("s_cmp_lt_u32 s2, 192\ns_cselect_b32 s63, 7, 6")
lds_spin(C_S, "s63", sleep=8)
lds_spin(C_M, 1, sleep=4)
e(f"s_mov_b64 exec, s[66:67]\ns_mov_b32 s62, {SPIN}\nL_e_poll:")
for c in range(4):
    e(f"s_mov_b32 s60, {WS_Y + 4096*c}\nbuffer_load_dwordx4 v[{EY+4*c}:{EY+4*c+3}], v60, s[36:39], s60 offen sc1")
    e(f"s_mov_b32 s60, {WS_Y2 + 4096*c}\nbuffer_load_dwordx4 v[{EZ+4*c}:{EZ+4*c+3}], v60, s[52:55], s60 offen sc1")
e(f"s_waitcnt vmcnt(0)\nv_max_u32 v3, v{EY}, v{EY+1}")
for r in range(EY + 2, EY + 32, 2): e(f"v_max3_u32 v3, v3, v{r}, v{r+1}")
e(f"""v_cmp_eq_u32 vcc, -1, v3
s_sub_u32 s62, s62, 1
s_cbranch_scc1 L_e_go
s_cbranch_vccz L_e_go
s_sleep 16
s_branch L_e_poll
L_e_go:
s_setprio {opt("eprio", 0)}""")
stamp(8)
def gate(two):
    for i in range(8):
        for ee in range(2):
            half(38, EY + 8*ee + (i >> 1), i & 1); half(39, EY + 8*ee + 4 + (i >> 1), i & 1)
            if two:
                half(36, EZ + 8*ee + (i >> 1), i & 1); half(37, EZ + 8*ee + 4 + (i >> 1), i & 1)
                e("v_pk_add_f32 v[38:39], v[38:39], v[36:37]")
            half(36, EQ + 2*i + ee, 0); half(37, EQ + 2*i + ee, 1)
            e("v_pk_mul_f32 v[38:39], v[38:39], v[36:37]")
            e(f"v_cvt_pk_bf16_f32 v{40+2*i+ee}, v38, v39")
        e(f"ds_write_b64 v59, v[{40+2*i}:{41+2*i}] offset:{64*i}")
e("s_cmp_lt_u32 s4, 16\ns_cbranch_scc1 L_e_one")
gate(True)
e("s_branch L_e_st\nL_e_one:")
gate(False)
e("L_e_st:\ns_mov_b64 exec, -1\ns_waitcnt lgkmcnt(0)")
for m in range(4): e(f"ds_read_b128 v[{64+4*m}:{67+4*m}], v61 offset:{1056*m}")
for m in range(4):
    e(f"s_waitcnt lgkmcnt({3-m})\nbuffer_store_dwordx4 v[{64+4*m}:{67+4*m}], v58, s[48:51], s71 offen {'sc1' if opt('bsc1', 0) else ''}\ns_add_u32 s71, s71, {16*2304}")
    if m == 0: e("s_cmp_eq_u32 s7, 1\ns_cbranch_scc1 L_h_end")
e("L_h_end:")
stamp(9)
stamp_flush()
e("s_endpgm")

S0, S1, PP, OO, K1, K2, V0, V1, Q1, Q2 = 8, 24, 40, 48, 64, 68, 72, 76, 80, 84
AK1, AK2, AV0, AV1, QN = 86, 87, 88, 89, 90
FD = 2
YA, CA, CF, HS, SO, SH, SL, AH, AFV, YAD = 96, 112, 120, 152, 157, 158, 159, 160, 161, 162
e("L_att:")
e(f"""s_lshr_b32 s66, s3, 1
s_and_b32 s67, s5, 3
v_lshlrev_b32 v4, 7, v1
s_waitcnt lgkmcnt(0)""")
stamp(0)
srd(44, P_WQ, 663552)
e("s_barrier")
stamp(1)
e(f"""s_mov_b32 s70, 1
s_cmp_eq_u32 s66, s67
s_cbranch_scc1 L_pf3
s_sub_u32 s92, s3, 2
s_cmp_gt_u32 s66, s67
s_cselect_b32 s92, s92, s3
s_lshl_b32 s93, s4, 3
s_add_u32 s93, s93, s5
s_mul_i32 s93, s93, 9216
s_cmp_ge_u32 s92, 3
s_cselect_b32 s91, 3, 0
s_sub_u32 s91, s92, s91
s_cmp_eq_u32 s91, 0
s_cselect_b32 s48, s{P_X}, s{P_BK}
s_cselect_b32 s49, s{P_X+1}, s{P_BK+1}
s_cmp_eq_u32 s91, 2
s_cselect_b32 s48, s{P_BV}, s48
s_cselect_b32 s49, s{P_BV+1}, s49
s_mov_b32 s50, 2359296
s_mov_b32 s51, 0x00020000
s_cmp_ge_u32 s92, 3
s_cbranch_scc1 L_pf2
s_lshr_b32 s90, s2, 3
s_mul_i32 s90, s90, {162*128}
s_lshl_b32 s91, s92, 13
s_add_u32 s90, s90, s91
s_cmp_eq_u32 s92, 2
s_cselect_b32 exec_hi, 3, -1
buffer_load_dword v164, v4, s[44:47], s90 offen
s_mov_b64 exec, 0xff
s_add_u32 s93, s93, 8192
L_pf2:
{"" if opt("kvpf", 0) else "s_cmp_eq_u32 s48, s8"}
{"" if opt("kvpf", 0) else "s_cbranch_scc0 L_pf4"}
buffer_load_dword v165, v4, s[48:51], s93 offen
L_pf4:
s_mov_b64 exec, -1
""")
e(f"""s_branch L_nopf
L_pf3:
s_getpc_b64 s[90:91]
L_pc:
s_sub_u32 s90, s90, L_pc-{NAME}_kernel
s_subb_u32 s91, s91, 0
s_mov_b32 s70, 0
s_bitcmp1_b32 s3, 0
s_cbranch_scc1 L_nopf
s_lshr_b32 s92, s2, 3
s_mul_i32 s92, s92, 1536
v_add_u32 v4, s92, v4
v_min_u32 v5, L_end-{NAME}_kernel, v4
s_mov_b64 exec, 0xfff
global_load_dword v164, v5, s[90:91]
s_mov_b64 exec, -1""")
e("L_nopf:")
DA = 120
M40 = magic(40, 320)
e("s_lshl_b32 s62, s3, 2\ns_lshl_b32 s64, s3, 3")
for n in range(5):
    e(f"""v_add_u32 v5, {64*n}, v1
v_mul_u32_u24 v6, {M40}, v5
v_lshrrev_b32 v6, 16, v6
v_mul_u32_u24 v7, 40, v6
v_sub_u32 v5, v5, v7
v_lshrrev_b32 v7, 1, v6
v_add_u32 v7, s62, v7
v_and_b32 v7, 7, v7
v_xor_b32 v5, v5, v7
v_mul_u32_u24 v6, 1152, v6
v_lshl_add_u32 v{DA+n}, v5, 4, v6""")
for m in range(6): wslice_off(DA + 9 + m, f"v_add_u32 v5, {512*m}, v0")
e(f"""s_lshl_b32 s60, s4, 6
s_add_u32 s60, s60, s64
s_mul_i32 s60, s60, 1152
s_add_u32 s65, s60, 640
s_mul_i32 s61, s3, 5120
s_lshl_b32 s62, s3, 10
s_mul_i32 s63, s5, 144
""")
srd(36, P_WS, WS_SIZE)
srd(40, P_X, 2359296)
def xa_dma(n): e(f"s_add_u32 m0, s61, {LXA + 1024*n}\nbuffer_load_dwordx4 v{DA+n}, s[40:43], s60 offen lds")
def xb_dma(n): e(f"s_add_u32 m0, s64, {LXB + 1024*n}\nbuffer_load_dwordx4 v{DA+5+n}, s[40:43], s65 offen lds")
def wa_dma(m): e(f"s_add_u32 m0, s62, {LW + 8192*m}\nbuffer_load_dwordx4 v{DA+9+m}, s[44:47], s63 offen lds")
e("s_cmp_eq_u32 s70, 0\ns_cbranch_scc1 L_a_wq")
for n in range(5): xa_dma(n)
e("L_a_wq:")
for m in range(5): wa_dma(m)
e("s_cmp_ge_u32 s3, 5\ns_cbranch_scc1 L_a_s5")
wa_dma(5)
e("L_a_s5:")
wslice_off(DA + 15, f"v_add_u32 v5, {45*64}, v0")
e(f"""s_add_u32 m0, s62, {LW + 45*1024}
s_lshl_b32 s92, s3, 3
buffer_load_dwordx4 v{DA+15}, s[44:47], s63 offen lds
s_cmp_eq_u32 s70, 0
s_cbranch_scc1 L_a_noxb
s_lshl_b32 s64, s3, 12""")
for n in range(4):
    e(f"""v_lshrrev_b32 v6, 5, v1
v_add_u32 v6, {2*n}, v6
v_add_u32 v7, s92, v6
v_and_b32 v7, 15, v7
v_and_b32 v5, 31, v1
v_xor_b32 v5, v5, v7
v_mul_u32_u24 v6, 1152, v6
v_lshl_add_u32 v{DA+5+n}, v5, 4, v6""")
    xb_dma(n)
if opt("kvpf2", 0):
    e(f"""s_sub_u32 s92, s3, 2
s_cmp_gt_u32 s66, s67
s_cselect_b32 s92, s92, s3
s_cmp_ge_u32 s92, 4
s_cbranch_scc1 L_a_noxb
s_bitcmp1_b32 s92, 0
s_cselect_b32 s48, s{P_BV}, s{P_BK}
s_cselect_b32 s49, s{P_BV+1}, s{P_BK+1}
s_lshl_b32 s93, s4, 3
s_add_u32 s93, s93, s5
s_mul_i32 s93, s93, 9216
s_cmp_ge_u32 s92, 2
s_cselect_b32 s91, 8192, 0
s_cselect_b64 exec, 0xff, -1
s_add_u32 s93, s93, s91
s_mov_b32 s70, 2
buffer_load_dword v164, v4, s[48:51], s93 offen
s_mov_b64 exec, -1""")
e("L_a_noxb:")
if opt("spf", 0):
    e(f"""s_lshl_b32 s60, s4, 6
s_add_u32 s60, s60, s3
s_mul_i32 s60, s60, 1152
s_mul_i32 s61, s5, 144
s_add_u32 s60, s60, s61""")
    for r in range(8):
        e(f"""s_load_dword s97, s[{P_BK}:{P_BK+1}], s60
s_load_dword s97, s[{P_BV}:{P_BV+1}], s60
s_add_u32 s61, s60, 128
s_load_dword s97, s[{P_BK}:{P_BK+1}], s61
s_load_dword s97, s[{P_BV}:{P_BV+1}], s61
s_add_u32 s60, s60, 9216""")
AW0, AW1, AXA, AXB = 64, 65, 66, 70
e(f"""v_lshrrev_b32 v4, 5, v1
v_bfe_u32 v5, v1, 2, 2
v_lshl_add_u32 v5, v4, 3, v5
v_mul_u32_u24 v5, 144, v5
v_and_b32 v6, 1, v1
v_bfe_u32 v7, v1, 1, 1
v_bfe_u32 v3, v1, 4, 1
v_lshl_add_u32 v7, v3, 1, v7
s_lshr_b32 s60, s3, 1
s_and_b32 s61, s60, 1
s_mul_i32 s62, s60, 36
s_lshl_b32 s64, s61, 2
s_sub_u32 s62, s62, s64
s_add_u32 s62, s62, {LW}
s_lshl_b32 s64, s61, 3
s_add_u32 s64, s64, 16
v_mul_u32_u24 v6, s64, v6
v_lshl_add_u32 v6, v7, 3, v6
v_add3_u32 v{AW0}, v5, v6, s62
v_add_u32 v{AW1}, {18*2304}, v{AW0}
s_and_b32 s62, s3, 1
s_lshl_b32 s62, s62, 5
v_and_b32 v5, 31, v1
v_add_u32 v5, s62, v5
v_bfe_u32 v6, v5, 1, 3
v_mul_u32_u24 v3, 640, v5""")
for j in range(4):
    e(f"v_add_u32 v7, {2*j}, v4\nv_xor_b32 v7, v7, v6\nv_lshl_add_u32 v{AXA+j}, v7, 4, v3")
e("v_and_b32 v6, 15, v5\nv_lshlrev_b32 v3, 9, v5")
for j in range(8):
    e(f"v_add_u32 v7, {2*j}, v4\nv_xor_b32 v7, v7, v6\nv_lshl_add_u32 v{AXB+j}, v7, 4, v3")
e(f"""s_mov_b32 s64, 0
s_mov_b32 s65, -1
s_cmp_eq_u32 s61, 0
s_cselect_b32 s66, 0, -1
s_cselect_b32 s67, -1, 0
v_lshlrev_b32 v{AK1}, 4, v1
v_and_b32 v5, 31, v1
v_lshlrev_b32 v{AK2}, 2, v5
v_add_u32 v{AK2}, 1024, v{AK2}
v_mul_u32_u24 v6, 288, v4
v_lshl_add_u32 v6, v5, 4, v6
v_add_u32 v6, 1152, v6
v_add_u32 v7, 576, v6
v_and_b32 v3, 27, v5
v_cmp_eq_u32 vcc, 18, v3
v_mov_b32 v3, {LFAR}
v_mov_b32 v8, 2304
v_cndmask_b32 v3, v3, v8, vcc
v_cmp_gt_u32 vcc, 18, v5
v_cndmask_b32 v{AV0}, v3, v6, vcc
v_cndmask_b32 v{AV1}, v3, v7, vcc
v_mov_b32 v92, 1""")
for r in range(16): e(f"v_mov_b32 v{OO+r}, 0")
for r in range(16): e(f"v_mov_b32 v{YA+r}, 0")
e(f"""s_lshl_b32 s90, s3, 8
s_add_u32 s90, s90, s2
s_cmp_ge_u32 s90, 576
s_cselect_b32 s91, 1, 0
s_cmp_ge_u32 s90, 1152
s_cselect_b32 s91, 2, s91
s_mul_i32 s60, s91, 576
s_sub_u32 s92, s90, s60
s_min_u32 s92, s92, 575
s_cmp_lt_u32 s90, 1728
s_cselect_b32 s95, s3, 0
s_cselect_b32 s96, 0, s3
s_lshl_b32 s60, s92, 12""")
srd_off(40, P_H, "s60", 4096)
e(f"s_add_u32 s61, s60, {WS_U}")
srd_off(44, P_WS, "s61", 2048)
e(f"s_add_u32 s61, s61, 2048")
srd_off(52, P_WS, "s61", 2048)
e(f"""s_cmp_eq_u32 s91, 1
s_cselect_b32 s61, {WS_Y2-WS_Y}, 0
s_cselect_b32 s62, 2048, 0
s_sub_u32 s62, s62, 64
s_add_u32 s93, s60, s61
s_add_u32 s93, s93, {WS_Y}
s_cmp_eq_u32 s91, 0
s_cselect_b32 s61, 0, 2048
s_add_u32 s93, s93, s61
s_cmp_eq_u32 s91, 2
s_cselect_b32 s94, 0, 1024
s_mul_i32 s60, s3, 1088
s_add_u32 s60, s60, {LCONV}
v_lshlrev_b32 v{SO}, 4, v5
v_add_u32 v{SO}, s62, v{SO}
v_mov_b32 v3, 0x05040302
v_mov_b32 v6, 0x07060504
v_cndmask_b32 v{SH}, v3, v6, s[64:65]
v_lshlrev_b32 v3, 4, v5
v_mul_u32_u24 v6, 576, v4
v_add3_u32 v{SL}, v3, v6, s60
v_lshrrev_b32 v3, 1, v5
v_lshlrev_b32 v3, 2, v3
v_lshl_add_u32 v3, v4, 4, v3
v_and_b32 v6, 1, v5
v_mul_u32_u24 v6, 576, v6
v_add3_u32 v{AH}, v3, v6, s60
v_sub_u32 v3, 31, v5
v_lshlrev_b32 v3, 4, v3
v_lshl_add_u32 v{AFV}, v4, 10, v3
s_lshl_b32 s97, s3, 12
v_add_u32 v{AFV}, s97, v{AFV}
v_lshlrev_b32 v3, 6, v5
v_lshl_add_u32 v{YAD}, v4, 4, v3
s_lshl_b32 s60, s92, 1
v_mov_b32 v95, s60""")
srd(56, P_D, 1152)
e(f"""s_lshl_b32 s60, s4, 2
s_and_b32 s61, s3, 1
s_lshl_b32 s61, s61, 1
s_add_u32 s60, s60, s61
s_mul_i32 s60, s60, 18432
s_add_u32 s60, s60, {WS_O}
s_lshr_b32 s61, s3, 1
s_lshl_b32 s68, s5, 2
s_add_u32 s61, s61, s68
s_lshl_b32 s68, s61, 9
s_add_u32 s68, s68, s60
s_lshl_b32 s69, s5, 8
s_add_u32 s69, s69, s60
s_lshr_b32 s61, s3, 1
s_lshl_b32 s61, s61, 2
s_add_u32 s69, s69, s61
s_add_u32 s69, s69, 16384
v_bfe_u32 v5, v1, 4, 1
v_mul_u32_u24 v7, 18432, v5
v_and_b32 v5, 15, v1
v_lshl_add_u32 v167, v5, 4, v7
v_lshrrev_b32 v6, 5, v1
v_lshl_add_u32 v166, v6, 8, v167
""")
def hload():
    e(f"""v_add_u32 v163, 16, v{SO}
buffer_load_dwordx4 v[{HS}:{HS+3}], v{SO}, s[40:43], 0 offen
buffer_load_dword v{HS+4}, v163, s[40:43], 0 offen
v_add_u32 v{SO}, 448, v{SO}""")
def hperm():
    for i in range(4): e(f"v_perm_b32 v{HS+i}, v{HS+i+1}, v{HS+i}, v{SH}")
def hwrite(): e(f"ds_write_b128 v{SL}, v[{HS}:{HS+3}]")
def fload(s):
    r = CF + 4*(s % FD)
    e(f"ds_read_b128 v[{r}:{r+3}], v{AFV} offset:{2048*(s & 1) + 16*(s >> 1)}")
def aload(s):
    if "--noa" in sys.argv: return
    r = CA + 4*(s % 2); o = 8*(s % 14)
    e(f"ds_read2_b32 v[{r}:{r+1}], v{AH} offset0:{o} offset1:{o+1}")
    e(f"ds_read2_b32 v[{r+2}:{r+3}], v{AH} offset0:{o+2} offset1:{o+3}")
FA, FB = 24, 36
def qread(s):
    a = FA + 4*(s % 3); b = FB + 4*(s % 3)
    base = AW0 if s < 18 else AW1
    off = 2304 * (s % 18)
    e(f"ds_read_b64_tr_b16 v[{a}:{a+1}], v{base} offset:{off}\nds_read_b64_tr_b16 v[{a+2}:{a+3}], v{base} offset:{off+576}")
    if s < 20: e(f"ds_read_b128 v[{b}:{b+3}], v{AXA + (s & 3)} offset:{LXA + 128*(s >> 2)}")
    else: e(f"ds_read_b128 v[{b}:{b+3}], v{AXB + ((s-20) & 7)} offset:{LXB + 256*((s-20) >> 3)}")
def qsteps(lo, hi):
    qread(lo); qread(lo + 1)
    for s in range(lo, hi):
        if s + 2 < hi: qread(s + 2)
        left = min(2, hi - 1 - s)
        a = FA + 4*(s % 3); b = FB + 4*(s % 3)
        e(f"s_waitcnt lgkmcnt({3*left})")
        e(f"v_mfma_f32_32x32x16_bf16 v[{S0}:{S0+15}], v[{a}:{a+3}], v[{b}:{b+3}], {'0' if s == 0 else f'v[{S0}:{S0+15}]'}")
e("s_cmp_eq_u32 s70, 0\ns_cbranch_scc1 L_a_wa1\ns_cmp_eq_u32 s70, 2\ns_cbranch_scc1 L_a_wa3\ns_waitcnt vmcnt(5)\ns_branch L_a_wa2\nL_a_wa3:\ns_waitcnt vmcnt(6)\ns_branch L_a_wa2\nL_a_wa1:\ns_waitcnt vmcnt(1)\nL_a_wa2:")
lds_add(C_A)
lds_spin(C_A, 12)
stamp(2)
e("s_setprio 3")
qsteps(0, 20)
lds_add(C_Q1)
e("s_cmp_eq_u32 s70, 2\ns_cbranch_scc1 L_a_wb1\ns_waitcnt vmcnt(0)\nL_a_wb1:\ns_waitcnt vmcnt(1)")
lds_add(C_B)
lds_spin(C_B, 9)
stamp(13)
hload()
e("buffer_load_ushort v94, v95, s[56:59], 0 offen")
qsteps(20, 36)
lds_add(C_Q)
CQ = 18 ** -0.5 * math.log2(math.e)
e(f"s_mov_b32 s60, {f32(CQ)}")
for r in range(4): e(f"v_mov_b32 v{PP+4+r}, 0")
for r in range(12): e(f"v_mul_f32 v{S0+r}, s60, v{S0+r}")
for i in range(6):
    e(f"v_cvt_pk_bf16_f32 v{24+i}, v{S0+2*i}, v{S0+2*i+1}")
    e(f"v_mul_f32 v{32+i}, v{S0+2*i}, v{S0+2*i}")
    e(f"v_fmac_f32 v{32+i}, v{S0+2*i+1}, v{S0+2*i+1}")
for i in range(4): e(f"v_cndmask_b32 v{Q1+i}, v{24+i}, v{25+i}, s[66:67]")
e(f"""v_cndmask_b32 v{Q2}, v28, v29, s[66:67]
v_cndmask_b32 v{Q2}, v{Q2}, 0, s[64:65]
v_cndmask_b32 v40, v32, v36, s[66:67]
v_cndmask_b32 v41, v36, v37, s[66:67]
v_cndmask_b32 v41, v41, 0, s[64:65]
v_add_f32 v40, v40, v41
v_add_f32 v40, v40, v33
v_add_f32 v40, v40, v34
v_add_f32 v40, v40, v35
v_mov_b32 v41, v40
v_permlane32_swap_b32 v40, v41
v_add_f32 v40, v40, v41
v_sqrt_f32 v{QN}, v40
v_mov_b32 v41, {f32(SHIFT)}
v_mov_b32 v7, {L_KC}
v_cvt_pk_bf16_f32 v{Q2+1}, -v{QN}, v41
v_cndmask_b32 v{Q2+1}, v{Q2+1}, 0, s[64:65]
v_mov_b32 v4, {f32(THR)}""")
stamp(3)
lds_spin(C_K0, 2, sleep=0)
stamp(5)
cstamp(14)
def mm_qk1(sn): e(f"v_mfma_f32_32x32x16_bf16 v[{sn}:{sn+15}], v[{K1}:{K1+3}], v[{Q1}:{Q1+3}], 0")
def mm_qk2(sn): e(f"v_mfma_f32_32x32x8_bf16 v[{sn}:{sn+15}], v[{K2}:{K2+1}], v[{Q2}:{Q2+1}], v[{sn}:{sn+15}]")
def mm_pv(v, p): e(f"v_mfma_f32_32x32x16_bf16 v[{OO}:{OO+15}], v[{v}:{v+3}], v[{p}:{p+3}], v[{OO}:{OO+15}]")
def rd_k1(t): e(f"ds_read_b128 v[{K1}:{K1+3}], v{AK1} offset:{TS*t}")
def rd_k2(t): e(f"ds_read_b32 v{K2}, v{AK2} offset:{TS*t}")
def rd_v0(t): e(f"ds_read_b128 v[{V0}:{V0+3}], v{AV0} offset:{TS*t}")
def rd_v1(t): e(f"ds_read_b128 v[{V1}:{V1+3}], v{AV1} offset:{TS*t}")
e(f"ds_read_b32 v{K2+1}, v7\nds_read_b32 v6, v7 offset:4")
rd_k1(0); rd_k2(0); rd_v1(0)
e(f"""s_waitcnt lgkmcnt(3)
v_readfirstlane_b32 s6, v6
v_lshlrev_b32 v5, 16, v{K2+1}
v_mul_f32 v5, v5, v{QN}
v_cmp_nle_f32 vcc, v5, v4
s_cbranch_vccnz L_truemax
L_pass:
s_waitcnt lgkmcnt(0)""")
mm_qk1(S0); mm_qk2(S0)
rd_k1(1); rd_v1(0); rd_k2(1); rd_v0(0)
e("s_mov_b32 s60, 0\ns_mov_b32 s71, 0\ns_setprio 0\ns_nop 7")
def prio(p):
    if "--noprio" in sys.argv: return
    l = L("pr")
    e(f"s_bitcmp1_b32 s95, 2\ns_cbranch_scc0 {l}\ns_setprio {p}\n{l}:")
def bump(n):
    for a in (AK1, AK2, AV0, AV1): e(f"v_add_u32 v{a}, {TS*n}, v{a}")
e(".p2align 6")
e("L_loop:")
for t in range(8):
    s = (S0, S1)[t & 1]; sn = (S0, S1)[(t + 1) & 1]
    ex = lambda i: e(f"v_exp_f32 v{s+i}, v{s+i}")
    cv = lambda i: e(f"v_cvt_pk_bf16_f32 v{PP+i}, v{s+2*i}, v{s+2*i+1}")
    if t == 0: e("s_bitcmp1_b32 s3, 2\ns_cbranch_scc0 L_pr0\ns_setprio 1\nL_pr0:")
    if t == opt("plu", 5): e("s_bitcmp1_b32 s96, 2\ns_cbranch_scc0 L_pr1\ns_setprio 0\nL_pr1:")
    if t == PLO: prio(0)
    e("s_waitcnt lgkmcnt(2)")
    mm_qk1(sn); rd_k1(t + 2)
    ex(0); ex(1); ex(2); ex(3); cv(0)
    mm_pv(V1, PP + 4); rd_v1(t)
    ex(4); ex(5); cv(1); ex(6); ex(7); cv(2)
    e("s_waitcnt lgkmcnt(2)")
    mm_qk2(sn); rd_k2(t + 2)
    ex(8); cv(3); ex(9); ex(10); ex(11); cv(4)
    mm_pv(V0, PP); rd_v0(t + 1)
    ex(12); ex(13); cv(5); ex(14); ex(15); cv(6); cv(7)
bump(8)
e(f"""s_add_u32 s60, s60, 1
s_cmp_eq_u32 s60, 1
s_cbranch_scc1 L_loop
s_cmp_lg_u32 s60, 8
s_cbranch_scc1 L_edge
L_fini:
s_waitcnt lgkmcnt(0)""")
mm_pv(V1, PP + 4)
e("s_setprio 0")
stamp(6)
cstamp(15)
lds_spin(C_M, 1, va=91, vb=93, sleep=1)
e(f"v_rcp_f32 v4, v{OO+10}")
for r in range(10): e(f"v_mul_f32 v{OO+r}, v{OO+r}, v4")
for i in range(5): e(f"v_cvt_pk_bf16_f32 v{8+i}, v{OO+2*i}, v{OO+2*i+1}")
for i in range(5): e(f"v_min_u32 v{8+i}, -2, v{8+i}")
e(f"""buffer_store_dwordx4 v[8:11], v166, s[36:39], s68 offen sc1
s_mov_b32 exec_hi, 0
buffer_store_dword v12, v167, s[36:39], s69 offen sc1
s_mov_b32 exec_hi, -1""")
OA, TA, TB = 28, 30, 31
e(f"""s_and_b32 s60, s3, 3
s_lshr_b32 s61, s3, 2
s_lshl_b32 s62, s4, 2
s_add_u32 s62, s62, s60
s_mul_i32 s62, s62, 18432
s_mul_i32 s64, s61, 9216
s_add_u32 s62, s62, s64
s_add_u32 s64, s62, {WS_O}
s_add_u32 s65, s64, 4096
s_add_u32 s70, s64, 8192
v_lshlrev_b32 v{OA}, 4, v1
v_and_b32 v4, 15, v1
v_lshrrev_b32 v5, 4, v1
s_cmp_eq_u32 s61, 0
s_cselect_b64 s[66:67], 0, -1""")
OF, DD, WF = 40, 76, 96
def oload(i):
    r = OF + 4*i
    e(f"buffer_load_dwordx4 v[{r}:{r+3}], v{OA}, s[36:39], s{(64, 65, 70)[i >> 2]} offen offset:{1024*(i & 3)} sc1")
if opt("oearly", 0):
    for i in range(9): oload(i)
lds_add(C_L, va=13, vb=14)
e(f"""s_lshl_b32 s60, s60, 4
v_add_u32 v36, s60, v4
v_mul_u32_u24 v36, 336, v36
v_lshl_add_u32 v36, v5, 4, v36
s_mul_i32 s60, s61, {LEX2 - LEX}
s_add_u32 s60, s60, {LEX}
v_add_u32 v36, s60, v36
v_lshrrev_b32 v6, 2, v4
v_and_b32 v4, 3, v4
v_lshrrev_b32 v7, 1, v5
v_mul_u32_u24 v7, 18, v7
v_and_b32 v3, 1, v5
v_lshl_add_u32 v7, v3, 2, v7
v_add_u32 v7, v7, v6
v_mul_u32_u24 v7, 144, v7
v_lshl_add_u32 v7, v4, 3, v7
s_mul_i32 s60, s61, {9*5184}
s_add_u32 s60, s60, {LWO}
v_add_u32 v{TA}, s60, v7
v_lshrrev_b32 v3, 1, v6
v_lshl_add_u32 v3, v5, 2, v3
v_mul_u32_u24 v3, 18, v3
v_and_b32 v6, 1, v6
v_add3_u32 v3, v3, v6, 16
v_mul_u32_u24 v3, 144, v3
v_lshl_add_u32 v3, v4, 3, v3
v_add_u32 v3, {LWO}, v3""")
for j, (d0, d1) in enumerate([(7*5184, 0), (7*5184+1152, 5184), (8*5184, 41472), (8*5184+1152, 41472+5184)]):
    e(f"v_add_u32 v6, {d0}, v{TA}\nv_add_u32 v7, {d1}, v3\nv_cndmask_b32 v{TB+j}, v6, v7, s[66:67]")
lds_spin(C_WO, 1, sleep=1)
NW = 18
def wread(u):
    i, ct = divmod(u, 5)
    r = WF + 4*(u % NW)
    if i < 7:
        e(f"ds_read_b64_tr_b16 v[{r}:{r+1}], v{TA} offset:{5184*i + 32*ct}")
        e(f"ds_read_b64_tr_b16 v[{r+2}:{r+3}], v{TA} offset:{5184*i + 32*ct + 1152}")
    else:
        e(f"ds_read_b64_tr_b16 v[{r}:{r+1}], v{TB + 2*(i-7)} offset:{32*ct}")
        e(f"ds_read_b64_tr_b16 v[{r+2}:{r+3}], v{TB + 2*(i-7) + 1} offset:{32*ct}")
AHEAD = 15
OD = opt("od", 4)
for u in range(AHEAD): wread(u)
srd(48, P_OUT, 4718592)
def fin_addr(cexpr, vl, vg):
    e(f"""{cexpr}
v_mul_u32_u24 v6, {M9}, v5
v_lshrrev_b32 v6, 16, v6
v_mul_u32_u24 v7, 9, v6
v_sub_u32 v5, v5, v7
v_mul_u32_u24 v7, 336, v6
v_lshl_add_u32 v{vl}, v5, 5, v7
v_add_u32 v{vl}, {LEX}, v{vl}
v_mul_u32_u24 v7, 2304, v6
v_lshl_add_u32 v{vg}, v5, 4, v7""")
fin_addr("v_mov_b32 v5, v0", 37, 38)
fin_addr("v_add_u32 v5, 512, v0", 35, 39)
e(f"""s_mul_i32 s63, s5, 144
s_mul_i32 s60, s4, {64*2304}
s_add_u32 s63, s63, s60""")
if not opt("oearly", 0):
    lds_spin(C_L, 8, sleep=1)
    if opt("odelay", 0): e(f"s_sleep {opt('odelay', 0)}")
    for i in range(OD): oload(i)
e(f"s_mov_b32 s62, {SPIN}")
stamp(7)
def stale(k, lab, br):
    o = OF + 4*k
    e(f"""v_max3_u32 v3, v{o}, v{o+1}, v{o+2}
v_max_u32 v3, v3, v{o+3}
v_cmp_eq_u32 vcc, -1, v3
{br} {lab}""")
retry = []
for i in range(9):
    o = OF + 4*i
    lo, rt = L("ochk"), L("ort")
    e(f"s_waitcnt vmcnt({min(OD, 9-i) - 1})\n{lo}:")
    stale(i, rt, "s_cbranch_vccnz")
    if i + OD < 9: oload(i + OD)
    retry.append((i, lo, rt))
    nxt = [u for u in range(5*i + AHEAD, 5*i + AHEAD + 5) if u < 45]
    e(f"s_waitcnt lgkmcnt({min(15, 2*min(10, 45 - 5*i - 5))})")
    for ct in range(5):
        u = 5*i + ct
        r = WF + 4*(u % NW); d = DD + 4*ct
        e(f"v_mfma_f32_16x16x32_bf16 v[{d}:{d+3}], v[{r}:{r+3}], v[{o}:{o+3}], {'0' if i == 0 else f'v[{d}:{d+3}]'}")
        if ct < len(nxt): wread(nxt[ct])
stamp(8)
lds_spin(C_L, 8, sleep=0)
for ct in range(5):
    e(f"ds_write_b128 v36, v[{DD+4*ct}:{DD+4*ct+3}] offset:{64*ct}")
lds_add(C_X)
lds_spin(C_X, 8, sleep=0)
def fin(vl, vg):
    e(f"""ds_read_b128 v[8:11], v{vl}
v_add_u32 v3, {LEX2 - LEX}, v{vl}
ds_read_b128 v[16:19], v3
ds_read_b128 v[12:15], v{vl} offset:16
ds_read_b128 v[20:23], v3 offset:16
s_waitcnt lgkmcnt(2)
v_pk_add_f32 v[8:9], v[8:9], v[16:17]
v_pk_add_f32 v[10:11], v[10:11], v[18:19]
s_waitcnt lgkmcnt(0)
v_pk_add_f32 v[12:13], v[12:13], v[20:21]
v_pk_add_f32 v[14:15], v[14:15], v[22:23]
v_cvt_pk_bf16_f32 v24, v8, v9
v_cvt_pk_bf16_f32 v25, v10, v11
v_cvt_pk_bf16_f32 v26, v12, v13
v_cvt_pk_bf16_f32 v27, v14, v15
buffer_store_dwordx4 v[24:27], v{vg}, s[48:51], s63 offen {"sc1" if opt("asc1", 1) else ""}""")
fin(37, 38)
e("s_cmp_lg_u32 s3, 0\ns_cbranch_scc1 L_t_fin\ns_nop 1")
fin(35, 39)
e("L_t_fin:")
stamp(9)
stamp_flush()
e("s_endpgm")
for i, lo, rt in retry:
    e(f"{rt}:\ns_waitcnt vmcnt(0)\ns_sleep {opt('osleep', 2)}")
    oload(i)
    for k in range(i + 1, min(9, i + OD)):
        sk = L("osk")
        stale(k, sk, "s_cbranch_vccz")
        oload(k)
        e(f"{sk}:")
    e("s_sub_u32 s62, s62, 1\ns_waitcnt vmcnt(0)")
    e(f"s_cbranch_scc0 {lo}\ns_endpgm")

def release(c=C_P):
    e(f"v_mov_b32 v91, {c}\ns_mov_b64 exec, 1\nds_add_u32 v91, v92\ns_mov_b64 exec, -1")
e(f"""L_edge:
s_cmp_eq_u32 s60, 2
s_cbranch_scc1 L_chk
s_cmp_eq_u32 s60, 7
s_cbranch_scc1 L_rel2
s_cmp_eq_u32 s60, 5
s_cbranch_scc0 L_loop""")
release()
e("s_waitcnt lgkmcnt(0)\ns_branch L_loop\nL_rel2:")
release(C_P2)
e("s_waitcnt lgkmcnt(0)\ns_branch L_loop\nL_chk:")
cstamp(4)
e(f"v_mov_b32 v91, {C_D}\ns_mov_b64 exec, 1\nds_add_u32 v91, v92\ns_mov_b64 exec, -1")
lds_spin(C_K, 2, va=91, vb=93)
cstamp(10)
e("s_cmp_lt_u32 s90, 1728\ns_cbranch_scc0 L_loop")
class Ctr:
    def __init__(self, init): self.q = list(init)
    def issue(self, tag, n=1): self.q += [tag] * n
    def need(self, *tags):
        last = max((i for i, t in enumerate(self.q) if t in tags), default=-1)
        n = len(self.q) - 1 - last
        self.q = self.q[last + 1:]
        return n if last >= 0 else None
lg = Ctr(["k1_1", "v1_-1", "k2_1", "v0_0"])
vm = Ctr(["h1", "h1"])
def wait(ltags=(), vtags=()):
    a = lg.need(*ltags) if ltags else None
    b = vm.need(*vtags) if vtags else None
    t = []
    if b is not None: t.append(f"vmcnt({min(b, 63)})")
    if a is not None: t.append(f"lgkmcnt({min(a, 15)})")
    if t: e("s_waitcnt " + " ".join(t))
e("L_conv:")
def plain_tile(t, tl):
    s = (S0, S1)[t & 1]; sn = (S0, S1)[(t + 1) & 1]
    ex = lambda i: e(f"v_exp_f32 v{s+i}, v{s+i}")
    cv = lambda i: e(f"v_cvt_pk_bf16_f32 v{PP+i}, v{s+2*i}, v{s+2*i+1}")
    wait([f"k1_{t+1}", f"v1_{t-1}"])
    mm_qk1(sn); rd_k1(tl + 2); lg.issue(f"k1_{t+2}")
    ex(0); ex(1); ex(2); ex(3); cv(0)
    mm_pv(V1, PP + 4); rd_v1(tl); lg.issue(f"v1_{t}")
    ex(4); ex(5); cv(1); ex(6); ex(7); cv(2)
    wait([f"k2_{t+1}", f"v0_{t}"])
    mm_qk2(sn); rd_k2(tl + 2); lg.issue(f"k2_{t+2}")
    ex(8); cv(3); ex(9); ex(10); ex(11); cv(4)
    mm_pv(V0, PP); rd_v0(tl + 1); lg.issue(f"v0_{t+1}")
    ex(12); ex(13); cv(5); ex(14); ex(15); cv(6); cv(7)
def conv_tile(t, tl, k0):
    s = (S0, S1)[t & 1]; sn = (S0, S1)[(t + 1) & 1]
    ex = lambda i: e(f"v_exp_f32 v{s+i}, v{s+i}")
    cv = lambda i: e(f"v_cvt_pk_bf16_f32 v{PP+i}, v{s+2*i}, v{s+2*i+1}")
    def cstep(k):
        a = CA + 4*(k % 2); f = CF + 4*(k % FD)
        newwin = (k + 2) % 14 == 0 and k + 2 < 64
        wait([f"a{k}", f"f{k}"], [f"h{(k+2)//14}"] if newwin else [])
        e(f"v_mfma_f32_32x32x16_bf16 v[{YA}:{YA+15}], v[{a}:{a+3}], v[{f}:{f+3}], v[{YA}:{YA+15}]")
        if newwin:
            hperm(); hwrite(); lg.issue("w")
        if k + 2 < 64: aload(k + 2); lg.issue(f"a{k+2}", 2)
        if k + FD < 64: fload(k + FD); lg.issue(f"f{k+FD}")
        if newwin and k + 16 < 64: hload(); vm.issue(f"h{(k+2)//14+1}", 2)
    wait([f"k1_{t+1}", f"v1_{t-1}"])
    mm_qk1(sn); rd_k1(tl + 2); lg.issue(f"k1_{t+2}")
    ex(0); ex(1); ex(2)
    mm_pv(V1, PP + 4); rd_v1(tl); lg.issue(f"v1_{t}")
    ex(3); cv(0); ex(4); cv(1); ex(5)
    cstep(k0)
    ex(6); ex(7); cv(2); ex(8)
    wait([f"k2_{t+1}", f"v0_{t}"])
    mm_qk2(sn); rd_k2(tl + 2); lg.issue(f"k2_{t+2}")
    cv(3); ex(9); ex(10); ex(11)
    mm_pv(V0, PP); rd_v0(tl + 1); lg.issue(f"v0_{t+1}")
    cv(4); ex(12); ex(13); cv(5)
    cstep(k0 + 1)
    ex(14); ex(15); cv(6); cv(7)
for t in range(48):
    if t in (16, 32): bump(16)
    if t == 24:
        release(); lg.issue("rel")
    if t == 36:
        release(C_P2); lg.issue("rel")
    if t == opt("tt", 0):
        e(f"v_mov_b32 v91, {C_T}\ns_mov_b64 exec, 1\nds_add_u32 v91, v92\ns_mov_b64 exec, -1"); lg.issue("ct")
    if t == opt("st", 43):
        e(f"v_mov_b32 v91, {C_S}\ns_mov_b64 exec, 1\nds_add_u32 v91, v92\ns_mov_b64 exec, -1"); lg.issue("sig")
    tl = t % 16
    isconv = CS <= t < CS + 32
    if t % 8 == 0: prio(1)
    if t % 8 == ((PLC - (t // 8) % 2) if isconv else PLO): prio(0)
    if t == max(CS - 3, 0):
        lds_spin(C_U, 1, va=91, vb=93); lds_spin(C_D, 8, va=91, vb=93); lg.q = []
        e("v_lshlrev_b32 v91, 5, v1\ns_add_u32 s61, s94, 16")
        for k in range(4):
            e(f"s_add_u32 m0, s97, {1024*k}\ns_nop 0\nbuffer_load_dwordx4 v91, s[{(44, 52)[k >> 1]}:{(47, 55)[k >> 1]}], s{(94, 61)[k & 1]} offen sc1 lds")
        cstamp(12)
        e("s_waitcnt vmcnt(4)")
        e(f"""v_lshlrev_b32 v94, 16, v94
v_lshlrev_b32 v91, 16, v{HS+4}
v_add_f32 v91, v91, v94
s_mov_b32 s61, 0xffff
v_cvt_pk_bf16_f32 v91, v91, v91
s_cmp_eq_u32 s91, 1
s_cselect_b32 exec_lo, 0, 8
s_cselect_b32 exec_hi, 0, 8
v_bfi_b32 v{HS+4}, s61, v91, v{HS+4}
s_mov_b64 exec, -1""")
        hperm()
        hwrite(); aload(0); aload(1); lg.issue("w"); lg.issue("a0", 2); lg.issue("a1", 2)
        hload()
    if t == CS - 1:
        e("s_waitcnt vmcnt(2)")
        for k in range(FD): fload(k); lg.issue(f"f{k}")
    if isconv: conv_tile(t, tl, 2*(t - CS))
    else: plain_tile(t, tl)
    if t == CS + 32:
        lds_spin(C_MK, 2, va=91, vb=93); lg.q = []
        for k in range(2):
            r = CF + 4*k
            for j in range(4): e(f"v_cvt_pk_bf16_f32 v{r+j}, v{YA+8*k+2*j}, v{YA+8*k+2*j+1}")
            for j in range(4): e(f"v_min_u32 v{r+j}, -2, v{r+j}")
            e(f"v_permlane32_swap_b32 v{r}, v{r+2}\nv_permlane32_swap_b32 v{r+1}, v{r+3}")
            e(f"buffer_store_dwordx4 v[{r}:{r+3}], v{YAD}, s[36:39], s93 offen offset:{32*k} sc1")
        cstamp(11)
e("s_branch L_fini")
e("L_truemax:")
lds_spin(C_K, 2)
e(f"""v_mov_b32 v{Q2+1}, 0
v_mov_b32 v5, 0xff800000
s_mov_b32 s60, 64
L_fb:""")
rd_k1(0); rd_k2(0)
e("s_waitcnt lgkmcnt(0)")
mm_qk1(S0); mm_qk2(S0)
e(f"v_add_u32 v{AK1}, {TS}, v{AK1}\nv_add_u32 v{AK2}, {TS}, v{AK2}")
for i in range(8): e(f"v_max3_f32 v5, v5, v{S0+2*i}, v{S0+2*i+1}")
e(f"""s_sub_u32 s60, s60, 1
s_cmp_lg_u32 s60, 0
s_cbranch_scc1 L_fb
v_subrev_u32 v{AK1}, {TS*64}, v{AK1}
v_subrev_u32 v{AK2}, {TS*64}, v{AK2}
v_mov_b32 v6, v5
v_permlane32_swap_b32 v5, v6
v_max_f32 v5, v5, v6
v_sub_f32 v5, 0, v5
v_cvt_pk_bf16_f32 v6, v5, v5
v_and_b32 v7, 0xffff0000, v6
v_sub_f32 v5, v5, v7
v_cvt_pk_bf16_f32 v7, v5, v5
v_and_b32 v3, 0xffff0000, v7
v_sub_f32 v5, v5, v3
v_cvt_pk_bf16_f32 v5, v5, 0
v_and_b32 v6, 0xffff, v6
v_or_b32 v6, v6, v3
v_cndmask_b32 v{Q2+1}, v6, v5, s[64:65]
v_mov_b32 v{K2+1}, 0x3f803f80""")
rd_k1(0); rd_k2(0)
e("s_branch L_pass\nL_end:\ns_endpgm")

ref = open(f"cdna_kernels/{NAME}.s.ref").read().split("\n")
head = [l for l in ref if l.startswith(";") and "@launch" not in l and not l.startswith("; Override") and not l.startswith("; grid=")]
txt = "\n".join(head) + f"""
; @launch grid=(256,1,1) block=(768,1,1) lds={LDS_BYTES}
.amdgcn_target "amdgcn-amd-amdhsa--gfx950"
.text
.globl {NAME}_kernel
.p2align 8
.type {NAME}_kernel,@function
{NAME}_kernel:
""" + e.text() + f""".section .rodata,"a"
.p2align 6
.amdhsa_kernel {NAME}_kernel
  .amdhsa_next_free_vgpr 168
  .amdhsa_next_free_sgpr 102
  .amdhsa_accum_offset 168
  .amdhsa_group_segment_fixed_size 0
  .amdhsa_kernarg_size 112
  .amdhsa_user_sgpr_count 2
  .amdhsa_user_sgpr_kernarg_segment_ptr 1
  .amdhsa_system_sgpr_workgroup_id_x 1
.end_amdhsa_kernel
"""
open(OUT, "w").write(txt)
print("wrote", OUT, len(txt), "bytes;", e.nops, "nops inserted")
```

```python
from mb import run
U=8
def rep(fmt, n, base=8):
    return "\n".join("    "+fmt.format(d=base+i, s=base+32+i, s2=base+33+i) for i in range(n))
e = rep("v_exp_f32 v{d}, v{s}",16).split("\n")
m2b = "    v_mfma_f32_32x32x4_2b_bf16 v[80:111], v[112:113], v[116:117], v[80:111]"
run("2b x4 alone", "\n".join([m2b]*4*U), 4, iters=200)
run("2b + 16 exp", "\n".join(([m2b]+e)*U), 4, iters=200)
run("2b + 16 exp", "\n".join(([m2b]+e)*U), 8, iters=200)
run("16 exp", "\n".join(e*U), 4, iters=200)
```
